```python
import torch

def _softmax(x, axis=-1):
    return torch.softmax(x, dim=axis)
def _gelu(x):
    return torch.nn.functional.gelu(x, approximate="tanh")
def _silu(x):
    return torch.nn.functional.silu(x)
def _sigmoid(x):
    return torch.sigmoid(x)
def _layernorm(x, axis=-1, eps=1e-5):
    m = x.mean(dim=axis, keepdim=True)
    v = x.var(dim=axis, keepdim=True, unbiased=False)
    return (x - m) / torch.sqrt(v + eps)
def _scatter_add(tgt, idx, src, axis=0):
    return tgt.clone().index_add_(axis, idx, src)
def _segment_sum(src, seg, n):
    out = torch.zeros((n,) + src.shape[1:], dtype=src.dtype)
    return out.index_add_(0, seg, src)
def _pad(x, pw):
    flat = tuple(v for pair in reversed(pw) for v in pair)
    return torch.nn.functional.pad(x, flat)

kernel_name = 'parallel_sum__ssm_conv_s4d__glu_gated_swiglu__prompt'

def setup_inputs():

    _w = (lambda a: (lambda t: t.to(torch.bfloat16) if t.is_floating_point() else t)(torch.as_tensor(a)))
    def _A_setup():
        Bsz, L, D, N = 1, 2048, 640, 192
        return {
            "u": _w((lambda *s: torch.randn(*s, dtype=torch.bfloat16) * 0.05)(Bsz, L, D)),
            "log_A_real": _w((lambda *s: torch.randn(*s, dtype=torch.bfloat16) * 3.2)(D, N) * 0.5),
            "A_imag": _w((lambda *s: torch.randn(*s, dtype=torch.bfloat16) * 0.05)(D, N) * 3.14),
            "C_real": _w((lambda *s: torch.randn(*s, dtype=torch.bfloat16) * 0.2)(D, N) / N ** 0.5),
            "C_imag": _w((lambda *s: torch.randn(*s, dtype=torch.bfloat16) * 0.2)(D, N) / N ** 0.5),
            "log_dt": _w((lambda *s: torch.randn(*s, dtype=torch.bfloat16) * 0.05)(D) * 0.5 - 4.0),
            "D_skip": _w((lambda *s: torch.randn(*s, dtype=torch.bfloat16) * 0.05)(D)),
        }
    _A_in = _A_setup()

    def _B_setup():
        B, S, D, F = 1, 2048, 640, 1536
        return {
            "x": _w((lambda *s: torch.randn(*s, dtype=torch.bfloat16) * 0.05)(B, S, D)),
            "w1": _w((lambda *s: torch.randn(*s, dtype=torch.bfloat16) * 0.4)(D, F) * (2.0 / D) ** 0.5),
            "w3": _w((lambda *s: torch.randn(*s, dtype=torch.bfloat16) * 0.4)(D, F) * (2.0 / D) ** 0.5),
            "w2": _w((lambda *s: torch.randn(*s, dtype=torch.bfloat16) * 0.4)(F, D) * (2.0 / F) ** 0.5),
        }
    _B_in = _B_setup()

    return {
        "A_u": _A_in["u"],
        "A_log_A_real": _A_in["log_A_real"],
        "A_A_imag": _A_in["A_imag"],
        "A_C_real": _A_in["C_real"],
        "A_C_imag": _A_in["C_imag"],
        "A_log_dt": _A_in["log_dt"],
        "A_D_skip": _A_in["D_skip"],
        "B_x": _B_in["x"],
        "B_w1": _B_in["w1"],
        "B_w3": _B_in["w3"],
        "B_w2": _B_in["w2"],
    }

def reference(A_u, A_log_A_real, A_A_imag, A_C_real, A_C_imag, A_log_dt, A_D_skip, B_x, B_w1, B_w3, B_w2):
    def _A_ref(u, log_A_real, A_imag, C_real, C_imag, log_dt, D_skip):
        L = u.shape[1]
        dt = torch.exp(log_dt)
        A = -torch.exp(log_A_real) + 1j * A_imag
        C = (C_real + 1j * C_imag) * dt[:, None]
        pos = (lambda x, dt: x.to(dt))(torch.arange(L), log_dt.dtype)
        P = torch.exp((A * dt[:, None])[:, :, None] * pos[None, None, :])
        K = 2.0 * torch.einsum("dn,dnl->dl", C, P).real
        L2 = 2 * L
        u_t = (lambda x, *d: x.permute(*d))(u, 0, 2, 1)
        Kf = (lambda x, *a, **k: torch.fft.rfft(x.float(), *a, **k))(K, L2)
        Uf = (lambda x, *a, **k: torch.fft.rfft(x.float(), *a, **k))(u_t, L2)
        y = (lambda x, *a, **k: torch.fft.irfft(x, *a, **k).to(torch.bfloat16))(Uf * Kf[None, :, :], L2)[:, :, :L]
        y = (lambda x, *d: x.permute(*d))(y, 0, 2, 1)
        return y + u * D_skip[None, None, :]

    def _B_ref(x, w1, w3, w2):
        gate = torch.einsum("bsd,df->bsf", x, w1)
        up = torch.einsum("bsd,df->bsf", x, w3)
        h = _silu(gate) * up
        out = torch.einsum("bsf,fd->bsd", h, w2)
        return out

    x = A_u
    xn = _layernorm(x, axis=-1)
    return x + _A_ref(xn, A_log_A_real, A_A_imag, A_C_real, A_C_imag, A_log_dt, A_D_skip) + _B_ref(xn, B_w1, B_w3, B_w2)
```

```python
KMAIN='parallel_sum__ssm_conv_s4d__glu_gated_swiglu__prompt_kernel'
ARG=dict(u=0,logA=8,Aim=16,Cre=24,Cim=32,logdt=40,Dskip=48,Bx=56,w1=64,w3=72,w2=80,out=88,dbg=96,ws=104)
SIZE=dict(u=2621440,logA=245760,Aim=245760,Cre=245760,Cim=245760,logdt=1280,Dskip=1280,Bx=2621440,w1=1966080,w3=1966080,w2=1966080,out=2621440,dbg=256,ws=268435456)
class Asm:
    def __init__(s): s.L=[]; s.kernels=[]; s.launches=[]; s.uid=0
    def __call__(s,t):
        for l in t.split('\n'):
            l=l.rstrip()
            if l.strip()=='' : continue
            ls=l.strip()
            if ls.endswith(':') or ls.startswith('.') : s.L.append(ls)
            else: s.L.append('    '+ls)
    def label(s,base):
        s.uid+=1; return f"L{base}_{s.uid}"
    def begin(s,name):
        s.L.append('.text'); s.L.append(f'.globl {name}'); s.L.append('.p2align 8'); s.L.append(f'.type {name},@function'); s.L.append(f'{name}:')
    def end(s,name,vgpr,sgpr=102,agpr=0,accum=None):
        s.L.append('    s_endpgm')
        if accum is None: accum=(vgpr+3)//4*4
        nfv=accum+agpr if agpr else vgpr
        s.kernels.append((name,nfv,sgpr,accum))
    def launch(s,name,grid,block,lds=0): s.launches.append((name,grid,block,lds))
    def srd(s,dst,ptr,size):
        s(f"s_mov_b32 s{dst}, s{ptr}\ns_and_b32 s{dst+1}, s{ptr+1}, 0xffff\ns_mov_b32 s{dst+2}, {size}\ns_mov_b32 s{dst+3}, 0x20000")
    def text(s,header='',single=False):
        out=[]
        for h in header.strip().split('\n'):
            if h: out.append('; '+h)
        if single:
            n,g,b,l=s.launches[0]; out.append(f'; @launch grid=({g},1,1) block=({b},1,1) lds={l}')
        else:
            for n,g,b,l in s.launches: out.append(f'; @launch kernel={n} grid=({g},1,1) block=({b},1,1) lds={l}')
        out.append('.amdgcn_target "amdgcn-amd-amdhsa--gfx950"')
        out+=s.L
        out.append('.section .rodata,"a"')
        for n,v,sg,ac in s.kernels:
            out+=['.p2align 6',f'.amdhsa_kernel {n}',f'  .amdhsa_next_free_vgpr {v}',f'  .amdhsa_next_free_sgpr {sg}',f'  .amdhsa_accum_offset {ac}',
                  '  .amdhsa_group_segment_fixed_size 0','  .amdhsa_kernarg_size 112','  .amdhsa_user_sgpr_count 2','  .amdhsa_user_sgpr_kernarg_segment_ptr 1',
                  '  .amdhsa_system_sgpr_workgroup_id_x 1','  .amdhsa_float_denorm_mode_32 3','.end_amdhsa_kernel']
        return '\n'.join(out)+'\n'
def magic(d):
    return ((1<<32)+d-1)//d
```

```python
import sys
from asmlib import *
XN=0; XNT=4<<20; KK=8<<20; RR=16<<20; W1T=20<<20; W3T=22<<20; W2T=24<<20; HH=28<<20
A=Asm()
def load_ptrs(A,names,base=4):
    for i,n in enumerate(names): A(f"s_load_dwordx2 s[{base+2*i}:{base+2*i+1}], s[0:1], {ARG[n]}")
    A("s_waitcnt lgkmcnt(0)")
def wave_sum(A,v,t):
    for off in (0x041F,0x081F,0x101F,0x201F,0x401F):
        A(f"ds_swizzle_b32 v{t}, v{v} offset:{off}\ns_waitcnt lgkmcnt(0)\nv_add_f32 v{v}, v{v}, v{t}")
    A(f"s_nop 1\nv_readlane_b32 s40, v{v}, 0\nv_readlane_b32 s41, v{v}, 32\ns_nop 3\nv_mov_b32 v{v}, s40\nv_add_f32 v{v}, s41, v{v}")
def rnd_bf16(A,v,t=None):
    A(f"v_cvt_pk_bf16_f32 v{v}, v{v}, v{v}\nv_lshlrev_b32 v{v}, 16, v{v}")
n='ln_kernel'; A.begin(n)
A("s_cmp_ge_u32 s2, 512\ns_cbranch_scc1 Lln_end")
load_ptrs(A,['u','ws'])
A.srd(8,4,SIZE['u']); A.srd(12,6,SIZE['ws'])
A("""
v_lshrrev_b32 v1, 6, v0            ; wave
v_and_b32 v2, 63, v0               ; lane
s_lshl_b32 s3, s2, 2
v_add_u32 v1, s3, v1               ; row
v_mul_u32_u24 v3, 1280, v1
v_lshl_add_u32 v3, v2, 2, v3
""")
for j in range(5): A(f"buffer_load_dword v{10+j}, v3, s[8:11], 0 offen offset:{256*j}")
A("s_waitcnt vmcnt(0)")
for j in range(5):
    A(f"v_lshlrev_b32 v{20+2*j}, 16, v{10+j}\nv_and_b32 v{21+2*j}, 0xffff0000, v{10+j}")
A("v_mov_b32 v4, 0")
for j in range(10): A(f"v_add_f32 v4, v4, v{20+j}")
wave_sum(A,4,5)
A("v_mul_f32 v4, 0x3acccccd, v4")
A("v_mov_b32 v6, 0")
for j in range(10): A(f"v_sub_f32 v7, v{20+j}, v4\nv_fmac_f32 v6, v7, v7")
wave_sum(A,6,5)
A("v_mul_f32 v6, 0x3acccccd, v6")
rnd_bf16(A,6); A("v_add_f32 v6, 0x3727c5ac, v6"); rnd_bf16(A,6); A("v_sqrt_f32 v6, v6\ns_nop 0"); rnd_bf16(A,6)
rnd_bf16(A,4)
A("v_rcp_f32 v8, v6\ns_nop 0")
for j in range(10):
    A(f"v_sub_f32 v{20+j}, v{20+j}, v4"); rnd_bf16(A,20+j)
    A(f"v_mul_f32 v7, v{20+j}, v8\nv_fma_f32 v9, -v7, v6, v{20+j}\nv_fma_f32 v{20+j}, v9, v8, v7")
for j in range(5):
    A(f"v_cvt_pk_bf16_f32 v{10+j}, v{20+2*j}, v{21+2*j}")
    A(f"buffer_store_dword v{10+j}, v3, s[12:15], 0 offen offset:{256*j}")
A(f"v_lshlrev_b32 v5, 13, v2   ; lane*2*4096\nv_lshl_add_u32 v5, v1, 1, v5\nv_add_u32 v5, {XNT}, v5")
for j in range(5):
    A(f"buffer_store_short v{10+j}, v5, s[12:15], 0 offen\nv_add_u32 v7, 4096, v5\nbuffer_store_short_d16_hi v{10+j}, v7, s[12:15], 0 offen\nv_add_u32 v5, {64*2*4096}, v5")
A("Lln_end:"); A.end(n,32); A.launch(n,512,256)
n='tr_kernel'; A.begin(n)
NW=983040
A(f"s_cmp_ge_u32 s2, {3*NW//256}\ns_cbranch_scc1 Ltr_end")
load_ptrs(A,['w1','w3','w2','ws'])
A.srd(12,10,SIZE['ws'])
nb=NW//256
A(f"""
s_mov_b32 s20, {magic(nb)}
s_mul_hi_u32 s21, s2, s20
s_mul_i32 s22, s21, {nb}
s_sub_u32 s22, s2, s22
s_cmp_eq_u32 s21, 1
s_cselect_b32 s4, s6, s4
s_cselect_b32 s5, s7, s5
s_cmp_eq_u32 s21, 2
s_cselect_b32 s4, s8, s4
s_cselect_b32 s5, s9, s5
s_mov_b32 s27, 1536
s_mov_b32 s28, 640
s_mov_b32 s29, {magic(1536)}
s_cselect_b32 s23, s28, s27       ; ncols
s_cselect_b32 s24, s27, s28       ; nrows
s_cselect_b32 s25, {magic(640)}, s29
s_mul_i32 s26, s21, {2<<20}
s_add_u32 s26, s26, {W1T}
""")
A.srd(16,4,1966080)
A("""
s_lshl_b32 s22, s22, 8
v_add_u32 v1, s22, v0
v_mul_hi_u32 v2, v1, s25           ; row k
v_mul_lo_u32 v3, v2, s23
v_sub_u32 v3, v1, v3               ; col
v_lshlrev_b32 v4, 1, v1
buffer_load_ushort v5, v4, s[16:19], 0 offen
v_mul_lo_u32 v6, v3, s24
v_add_u32 v6, v6, v2
v_lshlrev_b32 v6, 1, v6
v_add_u32 v6, s26, v6
s_waitcnt vmcnt(0)
buffer_store_short v5, v6, s[12:15], 0 offen
Ltr_end:""")
A.end(n,16); A.launch(n,3*NW//256,256)
n='kgen_kernel'; A.begin(n)
A("s_cmp_ge_u32 s2, 640\ns_cbranch_scc1 Lkg_end")
load_ptrs(A,['logA','Aim','Cre','Cim','logdt','ws'])
A.srd(16,4,245760);A.srd(20,6,245760);A.srd(24,8,245760);A.srd(28,10,245760);A.srd(32,12,1280);A.srd(36,14,SIZE['ws'])
A("""
s_mul_i32 s3, s2, 384
v_lshl_add_u32 v1, v0, 1, s3
s_lshl_b32 s40, s2, 1
v_mov_b32 v2, s40
buffer_load_ushort v10, v1, s[16:19], 0 offen
buffer_load_ushort v11, v1, s[20:23], 0 offen
buffer_load_ushort v12, v1, s[24:27], 0 offen
buffer_load_ushort v13, v1, s[28:31], 0 offen
buffer_load_ushort v14, v2, s[32:35], 0 offen
s_waitcnt vmcnt(0)
""")
for r in (10,11,12,13,14): A(f"v_lshlrev_b32 v{r}, 16, v{r}")
A("v_mul_f32 v14, 0x3fb8aa3b, v14\nv_exp_f32 v14, v14\ns_nop 0"); rnd_bf16(A,14)
A("v_mul_f32 v10, 0x3fb8aa3b, v10\nv_exp_f32 v10, v10\ns_nop 0"); rnd_bf16(A,10)
A("""
v_mul_f32 v10, v10, v14            ; |a_re|
v_mul_f32 v10, 0xbfb8aa3b, v10
v_mul_f32 v11, v11, v14
v_mul_f32 v11, 0.15915494, v11
v_mul_f32 v12, v12, v14
v_mul_f32 v13, v13, v14
v_add_f32 v12, v12, v12
v_add_f32 v13, v13, v13
v_lshlrev_b32 v3, 4, v0
ds_write_b128 v3, v[10:13]
s_waitcnt lgkmcnt(0)
s_barrier
""")
for j in range(8):
    A(f"v_add_u32 v4, {256*j}, v0\nv_cvt_f32_u32 v{20+j}, v4"); rnd_bf16(A,20+j); A(f"v_mov_b32 v{30+j}, 0")
A("s_mov_b32 s41, 0\nv_mov_b32 v3, 0\nLkg_loop:")
A("ds_read_b128 v[10:13], v3\ns_waitcnt lgkmcnt(0)")
for j in range(8):
    A(f"""
v_mul_f32 v5, v10, v{20+j}
v_exp_f32 v5, v5
v_mul_f32 v6, v11, v{20+j}
v_fract_f32 v6, v6
v_cos_f32 v7, v6
v_sin_f32 v6, v6
s_nop 0
v_mul_f32 v7, v12, v7
v_fma_f32 v7, -v13, v6, v7
v_fmac_f32 v{30+j}, v5, v7
""")
A("v_add_u32 v3, 16, v3\ns_add_u32 s41, s41, 1\ns_cmp_lt_u32 s41, 192\ns_cbranch_scc1 Lkg_loop")
A(f"s_lshl_b32 s3, s2, 13\ns_add_u32 s3, s3, {KK}\nv_lshl_add_u32 v1, v0, 2, s3")
for j in range(8): A(f"buffer_store_dword v{30+j}, v1, s[36:39], 0 offen offset:{1024*j if j<4 else 0}" if j<4 else f"v_add_u32 v2, {1024*j}, v1\nbuffer_store_dword v{30+j}, v2, s[36:39], 0 offen")
A("Lkg_end:"); A.end(n,48); A.launch(n,640,256,lds=4096)
n='conv_kernel'; A.begin(n)
A("s_cmp_ge_u32 s2, 640\ns_cbranch_scc1 Lcv_end")
load_ptrs(A,['u','Dskip','ws'])
A.srd(16,4,SIZE['u']);A.srd(20,6,1280);A.srd(24,8,SIZE['ws'])
A(f"s_lshl_b32 s3, s2, 13\ns_add_u32 s3, s3, {KK}\nv_lshl_add_u32 v1, v0, 2, s3")
A(f"s_lshl_b32 s3, s2, 12\ns_add_u32 s3, s3, {XNT}\nv_lshl_add_u32 v2, v0, 1, s3")
for j in range(8):
    A(f"v_add_u32 v4, {1024*j}, v1\nbuffer_load_dword v{10+j}, v4, s[24:27], 0 offen\nv_add_u32 v4, {512*j}, v2\nbuffer_load_ushort v{20+j}, v4, s[24:27], 0 offen")
A("s_waitcnt vmcnt(0)\nv_lshlrev_b32 v3, 2, v0\nv_mov_b32 v5, 0")
for j in range(8):
    A(f"v_lshlrev_b32 v{20+j}, 16, v{20+j}\nds_write_b32 v3, v{10+j} offset:{1024*j}\nds_write_b32 v3, v5 offset:{8192+1024*j}\nds_write_b32 v3, v{20+j} offset:{16384+1024*j}")
A("s_waitcnt lgkmcnt(0)\ns_barrier")
for j in range(8): A(f"v_mov_b32 v{30+j}, 0")
A("v_add_u32 v6, 16384, v3   ; &U[l]  decreasing\nv_mov_b32 v7, 0\ns_mov_b32 s41, 0\nLcv_loop:")
A("ds_read_b32 v8, v7")
for j in range(8): A(f"ds_read_b32 v{10+j}, v6 offset:{1024*j}")
A("s_waitcnt lgkmcnt(0)")
for j in range(8): A(f"v_fmac_f32 v{30+j}, v8, v{10+j}")
A("v_add_u32 v7, 4, v7\nv_subrev_u32 v6, 4, v6\ns_add_u32 s41, s41, 1\ns_cmp_lt_u32 s41, 2048\ns_cbranch_scc1 Lcv_loop")
A("s_lshl_b32 s40, s2, 1\nv_mov_b32 v4, s40\nbuffer_load_ushort v9, v4, s[20:23], 0 offen")
A("v_mul_u32_u24 v1, 1280, v0\nv_add_u32 v1, s40, v1")
for j in range(8): A(f"v_add_u32 v4, {256*1280*j}, v1\nbuffer_load_ushort v{10+j}, v4, s[16:19], 0 offen")
A("s_waitcnt vmcnt(0)\nv_lshlrev_b32 v9, 16, v9")
for j in range(8):
    A(f"v_lshlrev_b32 v{10+j}, 16, v{10+j}"); rnd_bf16(A,30+j)
    A(f"v_mul_f32 v{20+j}, v{20+j}, v9"); rnd_bf16(A,20+j)
    A(f"v_add_f32 v{30+j}, v{30+j}, v{20+j}"); rnd_bf16(A,30+j)
    A(f"v_add_f32 v{30+j}, v{30+j}, v{10+j}\nv_cvt_pk_bf16_f32 v{30+j}, v{30+j}, v{30+j}")
    A(f"v_add_u32 v4, {RR+256*1280*j}, v1\nbuffer_store_short v{30+j}, v4, s[24:27], 0 offen")
A("Lcv_end:"); A.end(n,48); A.launch(n,640,256,lds=24576)
def gemm_tile(A,tag,aoff,boffs,K,accs):
    for a in accs:
        for i in range(16): A(f"v_mov_b32 v{a+i}, 0")
    A(f"s_mov_b32 s30, 0\nL{tag}_k:")
    A("buffer_load_dwordx4 v[20:23], v10, s[12:15], s30 offen\nbuffer_load_dwordx4 v[24:27], v11, s[12:15], s30 offen")
    for bi,b in enumerate(boffs):
        A(f"buffer_load_dwordx4 v[{28+8*bi}:{31+8*bi}], v{b}, s[12:15], s30 offen\nbuffer_load_dwordx4 v[{32+8*bi}:{35+8*bi}], v{b+1}, s[12:15], s30 offen")
    A("s_waitcnt vmcnt(0)")
    for bi,a in enumerate(accs):
        A(f"v_mfma_f32_16x16x32_bf16 v[{a}:{a+3}], v[20:23], v[{28+8*bi}:{31+8*bi}], v[{a}:{a+3}]")
        A(f"v_mfma_f32_16x16x32_bf16 v[{a+4}:{a+7}], v[20:23], v[{32+8*bi}:{35+8*bi}], v[{a+4}:{a+7}]")
        A(f"v_mfma_f32_16x16x32_bf16 v[{a+8}:{a+11}], v[24:27], v[{28+8*bi}:{31+8*bi}], v[{a+8}:{a+11}]")
        A(f"v_mfma_f32_16x16x32_bf16 v[{a+12}:{a+15}], v[24:27], v[{32+8*bi}:{35+8*bi}], v[{a+12}:{a+15}]")
    A(f"s_add_u32 s30, s30, 64\ns_cmp_lt_u32 s30, {K*2}\ns_cbranch_scc1 L{tag}_k\ns_nop 15")
n='gemm1_kernel'; A.begin(n)
A("s_cmp_ge_u32 s2, 3072\ns_cbranch_scc1 Lg1_end")
load_ptrs(A,['ws']); A.srd(12,4,SIZE['ws'])
A(f"""
s_mov_b32 s20, {magic(48)}
s_mul_hi_u32 s21, s2, s20      ; by
s_mul_i32 s22, s21, 48
s_sub_u32 s22, s2, s22         ; bx
s_lshl_b32 s21, s21, 5
s_lshl_b32 s22, s22, 5
v_and_b32 v1, 15, v0
v_lshrrev_b32 v2, 4, v0
v_add_u32 v3, s21, v1
v_mul_u32_u24 v10, 1280, v3
v_lshl_add_u32 v10, v2, 4, v10
v_add_u32 v10, {XN}, v10
v_add_u32 v11, {16*1280}, v10
v_add_u32 v3, s22, v1
v_mul_u32_u24 v12, 1280, v3
v_lshl_add_u32 v12, v2, 4, v12
v_add_u32 v14, {W3T}, v12
v_add_u32 v12, {W1T}, v12
v_add_u32 v13, {16*1280}, v12
v_add_u32 v15, {16*1280}, v14
""")
gemm_tile(A,'g1',10,[12,14],640,[48,64])
A(f"""
v_lshlrev_b32 v4, 2, v2
v_add_u32 v4, s21, v4          ; row
v_mul_u32_u24 v4, 3072, v4
v_add_u32 v5, s22, v1
v_lshl_add_u32 v4, v5, 1, v4
v_add_u32 v4, {HH}, v4
""")
for t in range(4):
    for i in range(4):
        g=48+4*t+i; u=64+4*t+i
        rnd_bf16(A,g); rnd_bf16(A,u)
        A(f"v_mul_f32 v6, 0xbfb8aa3b, v{g}\nv_exp_f32 v6, v6\ns_nop 0\nv_add_f32 v6, 1.0, v6\nv_rcp_f32 v6, v6\ns_nop 0\nv_mul_f32 v6, v6, v{g}")
        rnd_bf16(A,6)
        A(f"v_mul_f32 v6, v6, v{u}\nv_cvt_pk_bf16_f32 v6, v6, v6")
        off=(16*(t>>1)+i)*3072+32*(t&1)
        A(f"v_add_u32 v7, {off}, v4\nbuffer_store_short v6, v7, s[12:15], 0 offen")
A("Lg1_end:"); A.end(n,80); A.launch(n,3072,64)
n='gemm2_kernel'; A.begin(n)
A("s_cmp_ge_u32 s2, 1280\ns_cbranch_scc1 Lg2_end")
load_ptrs(A,['ws','out']); A.srd(12,4,SIZE['ws']); A.srd(16,6,SIZE['out'])
A(f"""
s_mov_b32 s20, {magic(20)}
s_mul_hi_u32 s21, s2, s20      ; by
s_mul_i32 s22, s21, 20
s_sub_u32 s22, s2, s22         ; bx
s_lshl_b32 s21, s21, 5
s_lshl_b32 s22, s22, 5
v_and_b32 v1, 15, v0
v_lshrrev_b32 v2, 4, v0
v_add_u32 v3, s21, v1
v_mul_u32_u24 v10, 3072, v3
v_lshl_add_u32 v10, v2, 4, v10
v_add_u32 v10, {HH}, v10
v_add_u32 v11, {16*3072}, v10
v_add_u32 v3, s22, v1
v_mul_u32_u24 v12, 3072, v3
v_lshl_add_u32 v12, v2, 4, v12
v_add_u32 v12, {W2T}, v12
v_add_u32 v13, {16*3072}, v12
""")
gemm_tile(A,'g2',10,[12],1536,[48])
A(f"""
v_lshlrev_b32 v4, 2, v2
v_add_u32 v4, s21, v4          ; row
v_mul_u32_u24 v4, 1280, v4
v_add_u32 v5, s22, v1
v_lshl_add_u32 v4, v5, 1, v4
""")
for t in range(4):
    for i in range(4):
        g=48+4*t+i
        off=(16*(t>>1)+i)*1280+32*(t&1)
        A(f"v_add_u32 v7, {off+RR}, v4\nbuffer_load_ushort v8, v7, s[12:15], 0 offen")
        rnd_bf16(A,g)
        A(f"s_waitcnt vmcnt(0)\nv_lshlrev_b32 v8, 16, v8\nv_add_f32 v6, v8, v{g}\nv_cvt_pk_bf16_f32 v6, v6, v6\nv_add_u32 v7, {off}, v4\nbuffer_store_short v6, v7, s[16:19], 0 offen")
A("Lg2_end:"); A.end(n,80); A.launch(n,1280,64)
nextra=int(sys.argv[2]) if len(sys.argv)>2 else 0
if nextra:
    n='nop_kernel'; A.begin(n); A.end(n,8)
    for i in range(nextra): A.launch(n,256,64)
open(sys.argv[1],'w').write(A.text("naive baseline, multi-launch"))
```

```python
from asmlib import *
XT=4<<20
KTS=704
CP=0; CK=8256; CWAVE=CK+2816
USZ=48*288
CACC=0
CUS=32
CT=96
CVT=112
CVU=120
CLANE=121; CTMP=122
def conv_setup(A,S):
    T=CTMP
    A(f"""
    v_and_b32 v{CLANE}, 63, v0
    v_and_b32 v{T}, 15, v{CLANE}             ; b / a
    v_lshrrev_b32 v{T+1}, 4, v{CLANE}        ; g
    v_lshlrev_b32 v{T+2}, 2, v{T}
    v_lshlrev_b32 v{T+3}, 5, v{T+1}
    v_sub_u32 v{T+2}, v{T+2}, v{T+3}
    s_add_u32 s{S['t0']}, s{S['base']}, {CP+104}
    v_add_u32 v{CVT}, s{S['t0']}, v{T+2}
    """)
    for q in range(1,8): A(f"v_add_u32 v{CVT+q}, {1024*q}, v{CVT}")
    A(f"""
    v_lshl_add_u32 v{T+2}, v{T}, 1, v{T+1}
    v_mul_u32_u24 v{T+2}, 48, v{T+2}
    s_lshl_b32 s{S['t0']}, s{S['cw']}, 4
    s_add_u32 s{S['t0']}, s{S['t0']}, {S['ush']+48*30-192*7}
    v_add_u32 v{CVU}, s{S['t0']}, v{T+2}
    """)
def conv_load_u(A,S,flags=""):
    T=CTMP
    A(f"""
    s_mov_b32 s{S['t1']}, {magic(3)}
    s_lshl_b32 s{S['t0']}, s{S['d0']}, 4
    s_add_u32 s{S['ub']}, s{S['t0']}, {XT}
    s_mov_b32 s{S['ui']}, s{S['cw']}
    Lul:
    s_lshl_b32 s{S['t0']}, s{S['ui']}, 6
    v_add_u32 v{T+4}, s{S['t0']}, v{CLANE}          ; q
    v_mul_hi_u32 v{T+5}, v{T+4}, s{S['t1']}         ; tau
    v_mul_u32_u24 v{T+6}, 3, v{T+5}
    v_sub_u32 v{T+6}, v{T+4}, v{T+6}                ; c
    v_mul_u32_u24 v{T+5}, 10240, v{T+5}
    v_lshl_add_u32 v{T+5}, v{T+6}, 4, v{T+5}
    s_lshl_b32 s{S['t0']}, s{S['ui']}, 10
    s_add_u32 m0, s{S['t0']}, {S['ush']+48*32}
    s_add_u32 s{S['ui']}, s{S['ui']}, s{S['nch']}
    buffer_load_dwordx4 v{T+5}, s[{S['srd']}:{S['srd']+3}], s{S['ub']} offen {flags} lds
    s_cmp_lt_u32 s{S['ui']}, 12
    s_cbranch_scc1 Lul
    s_cmp_eq_u32 s{S['cw']}, 0
    s_cbranch_scc0 Lunz
    v_mul_u32_u24 v{T+5}, 24, v{CLANE}
    v_add_u32 v{T+5}, {S['ush']}, v{T+5}
    v_mov_b32 v{T+6}, 0
    v_mov_b32 v{T+7}, 0
    ds_write_b64 v{T+5}, v[{T+6}:{T+7}] offset:0
    ds_write_b64 v{T+5}, v[{T+6}:{T+7}] offset:8
    ds_write_b64 v{T+5}, v[{T+6}:{T+7}] offset:16
    Lunz:
    """)
def conv_expand(A,S):
    T=CTMP; L=CLANE
    a0=T; a1=T+1; a2=T+2; a3=T+3; pw=T+4
    V=CUS
    A(f"""
    s_add_u32 s{S['t0']}, s{S['base']}, {CK+16}
    v_lshl_add_u32 v{a0}, v{L}, 4, s{S['t0']}        ; s=0: &KT[4L]
    v_lshl_add_u32 v{a1}, v{L}, 3, s{S['t0']}        ; s=1: &KT[2L]
    v_lshl_add_u32 v{a2}, v{L}, 2, s{S['t0']}        ; s=2: &KT[L]
    v_lshrrev_b32 v{a3}, 1, v{L}
    v_lshl_add_u32 v{a3}, v{a3}, 2, s{S['t0']}       ; s=3: &KT[M]
    v_lshlrev_b32 v{pw}, 4, v{L}
    s_add_u32 s{S['t1']}, s{S['base']}, {CP+64}
    v_add_u32 v{pw}, s{S['t1']}, v{pw}               ; &P[4L]
    v_subrev_u32 v{T+5}, 4, v{a0}                    ; &KT[4L-1]
    ; zero P[-16..-1]
    v_mov_b32 v{T+6}, 0
    v_lshlrev_b32 v{T+7}, 2, v{L}
    v_add_u32 v{T+7}, s{S['base']}, v{T+7}
    v_cmp_gt_u32 vcc, 16, v{L}
    s_and_saveexec_b64 s[{S['sv']}:{S['sv']+1}], vcc
    ds_write_b32 v{T+7}, v{T+6} offset:{CP}
    s_mov_b64 exec, s[{S['sv']}:{S['sv']+1}]
    ; reads
    ds_read_b128 v[{V}:{V+3}], v{a0}
    ds_read_b32 v{V+4}, v{T+5}
    ds_read_b64 v[{V+6}:{V+7}], v{a1} offset:{256*4}
    ds_read_b32 v{V+8}, v{a1} offset:{256*4+8}
    ds_read_b32 v{V+9}, v{a2} offset:{255*4}
    """)
    for k,base in enumerate((384,448)):
        A(f"ds_read_b32 v{V+10+2*k}, v{a2} offset:{base*4}\nds_read_b32 v{V+11+2*k}, v{a2} offset:{base*4+4}")
    for k,base in enumerate((512,544,576,608)):
        A(f"ds_read_b32 v{V+14+2*k}, v{a3} offset:{base*4}\nds_read_b32 v{V+15+2*k}, v{a3} offset:{base*4+4}")
    m1=S['m1']; m2=S['m2']; m0=S['m0']
    A(f"""
    v_and_b32 v{T+6}, 1, v{L}
    v_cmp_eq_u32 s[{m1}:{m1+1}], 1, v{T+6}
    v_and_b32 v{T+6}, 3, v{L}
    v_cmp_eq_u32 s[{m2}:{m2+1}], 3, v{T+6}
    v_cmp_eq_u32 s[{m0}:{m0+1}], 0, v{L}
    s_waitcnt lgkmcnt(0)
    """)
    O=V+24
    A(f"""
    v_cvt_pk_bf16_f32 v{O}, v{V}, v{V+4}
    v_cvt_pk_bf16_f32 v{O+1}, v{V+1}, v{V}
    v_cvt_pk_bf16_f32 v{O+2}, v{V+2}, v{V+1}
    v_cvt_pk_bf16_f32 v{O+3}, v{V+3}, v{V+2}
    ds_write_b128 v{pw}, v[{O}:{O+3}] offset:0
    """)
    O2=O+4
    A(f"""
    v_cndmask_b32 v{V+5}, v{V+6}, v{V+9}, s[{m0}:{m0+1}]
    v_cvt_pk_bf16_f32 v{O2+1}, v{V+6}, v{V+6}
    v_cvt_pk_bf16_f32 v{O2+2}, v{V+7}, v{V+6}
    v_cvt_pk_bf16_f32 v{O2+3}, v{V+8}, v{V+7}
    v_cvt_pk_bf16_f32 v{O2}, v{V+6}, v{V+5}
    ds_write_b128 v{pw}, v[{O2}:{O2+3}] offset:1024
    """)
    for k in range(2):
        a=V+10+2*k; b=a+1; o=O+8+4*k
        A(f"""
        v_cndmask_b32 v{V+5}, v{a}, v{b}, s[{m1}:{m1+1}]
        v_cvt_pk_bf16_f32 v{o}, v{a}, v{a}
        v_mov_b32 v{o+1}, v{o}
        v_cvt_pk_bf16_f32 v{o+2}, v{V+5}, v{a}
        v_cvt_pk_bf16_f32 v{o+3}, v{b}, v{V+5}
        ds_write_b128 v{pw}, v[{o}:{o+3}] offset:{2048+1024*k}
        """)
    for k in range(4):
        a=V+14+2*k; b=a+1; o=O+16+4*(k&1)
        A(f"""
        v_cndmask_b32 v{V+4}, v{a}, v{b}, s[{m2}:{m2+1}]
        v_cndmask_b32 v{V+5}, v{a}, v{b}, s[{m1}:{m1+1}]
        v_cvt_pk_bf16_f32 v{o}, v{V+4}, v{a}
        v_cvt_pk_bf16_f32 v{o+1}, v{V+5}, v{V+4}
        v_cvt_pk_bf16_f32 v{o+2}, v{V+5}, v{V+5}
        v_mov_b32 v{o+3}, v{o+2}
        ds_write_b128 v{pw}, v[{o}:{o+3}] offset:{4096+1024*k}
        """)
def conv_main(A):
    seq=[(r,q) for r in range(8) for q in range(8)]
    def tread(i):
        r,q=seq[i]; b=CT+4*(i%4)
        return [f"ds_read2_b32 v[{b}:{b+1}], v{CVT+q} offset0:{32*r+6} offset1:{32*r+4}",
                f"ds_read2_b32 v[{b+2}:{b+3}], v{CVT+q} offset0:{32*r+2} offset1:{32*r}"]
    def uread(r,s):
        b=CUS+32*(r&1)+4*s
        return f"ds_read_b128 v[{b}:{b+3}], v{CVU} offset:{192*(8*s-r+7)}"
    for t in range(8):
        for i in range(4): A(f"v_mov_b32 v{CACC+4*t+i}, 0")
    issued=[]
    def emit(txt,tag): A(txt); issued.append(tag)
    def wait(tag):
        idx=max(i for i,t in enumerate(issued) if t==tag)
        n=len(issued)-1-idx
        A(f"s_waitcnt lgkmcnt({min(n,15)})")
    for s in range(8): emit(uread(0,s),('u',0))
    PF=3
    for i in range(PF):
        for x in tread(i): emit(x,('t',i))
    for i,(r,q) in enumerate(seq):
        wait(('t',i))
        if q==0 and r>0: wait(('u',r))
        b=CT+4*(i%4)
        fill=[]
        if i+PF<64: fill+=[(x,('t',i+PF)) for x in tread(i+PF)]
        if r<7 and q<4: fill+=[(uread(r+1,2*q),('u',r+1)),(uread(r+1,2*q+1),('u',r+1))]
        n=8-q
        for k,t in enumerate(range(q,8)):
            u=CUS+32*(r&1)+4*(t-q)
            A(f"v_mfma_f32_16x16x32_bf16 v[{CACC+4*t}:{CACC+4*t+3}], v[{b}:{b+3}], v[{u}:{u+3}], v[{CACC+4*t}:{CACC+4*t+3}]")
            lo=(len(fill)*k)//n; hi=(len(fill)*(k+1))//n
            for x,tag in fill[lo:hi]: emit(x,tag)
def conv_epilogue(A,S,flags=""):
    T=CTMP
    A(f"""
    v_and_b32 v{T}, 15, v{CLANE}
    v_lshrrev_b32 v{T+1}, 4, v{CLANE}
    v_lshlrev_b32 v{T+2}, 5, v{T}
    v_lshl_add_u32 v{T+2}, v{T+1}, 3, v{T+2}
    v_lshrrev_b32 v{T+4}, 1, v{T+1}                ; g>>1
    v_lshl_add_u32 v{T+4}, v{T}, 1, v{T+4}         ; 2a+(g>>1)
    v_mul_u32_u24 v{T+4}, 48, v{T+4}
    v_and_b32 v{T+5}, 1, v{T+1}
    v_lshl_add_u32 v{T+4}, v{T+5}, 3, v{T+4}
    s_lshl_b32 s{S['t0']}, s{S['cw']}, 4
    s_add_u32 s{S['t0']}, s{S['t0']}, {S['ush']+48*32}
    v_add_u32 v{T+3}, s{S['t0']}, v{T+4}
    s_lshl_b32 s{S['t0']}, s{S['ch']}, 12
    s_add_u32 s{S['t0']}, s{S['t0']}, {AT}
    """)
    for t in range(8): A(f"ds_read_b64 v[{CUS+2*t}:{CUS+2*t+1}], v{T+3} offset:{48*32*t}")
    A("s_waitcnt lgkmcnt(0)")
    W=CUS+16
    for t in range(8):
        u=CUS+2*t; a=CACC+4*t; w=W+4*(t&1)
        A(f"""
        v_lshlrev_b32 v{w}, 16, v{u}
        v_and_b32 v{w+1}, 0xffff0000, v{u}
        v_lshlrev_b32 v{w+2}, 16, v{u+1}
        v_and_b32 v{w+3}, 0xffff0000, v{u+1}
        v_fmac_f32 v{a}, s{S['dsk']}, v{w}
        v_fmac_f32 v{a+1}, s{S['dsk']}, v{w+1}
        v_fmac_f32 v{a+2}, s{S['dsk']}, v{w+2}
        v_fmac_f32 v{a+3}, s{S['dsk']}, v{w+3}
        v_cvt_pk_bf16_f32 v{a}, v{a}, v{a+1}
        v_cvt_pk_bf16_f32 v{a+1}, v{a+2}, v{a+3}
        buffer_store_dwordx2 v[{a}:{a+1}], v{T+2}, s[{S['srd']}:{S['srd']+3}], s{S['t0']} offen offset:{512*t} {flags}
        """)
```

```python
from asmlib import *
from layout import *
import os
XBASE=0; XSLOT=16384; WBASE=3*XSLOT; WSLOT=24832; W3OFF=12320
LDS_G=WBASE+3*WSLOT
STAT=LDS_G
CSL=STAT+1024
HSCR=CSL+1024
NST=10
ACC=0
FA=96
FB=120
VXO=136
VWO=140
VXR=144
VWR=148
VLANE=149; VT0=150
def acc(t,nt): return ACC+(t*2+nt)*16
def g_dma_addr(A,S):
    T=VT0
    A(f"""
    v_and_b32 v{VLANE}, 63, v0
    v_lshrrev_b32 v{T}, 3, v{VLANE}            ; L>>3
    v_and_b32 v{T+1}, 7, v{VLANE}              ; L&7
    v_lshrrev_b32 v{T+2}, 4, v{VLANE}          ; L>>4
    """)
    for jj in range(4):
        A(f"""
        v_add_u32 v{T+3}, {4*jj}, v{T+2}
        v_and_b32 v{T+3}, 7, v{T+3}
        v_xor_b32 v{T+3}, v{T+3}, v{T+1}
        v_lshlrev_b32 v{T+3}, 4, v{T+3}
        v_add_u32 v{T+4}, {8*jj}, v{T}
        v_mul_u32_u24 v{T+4}, 1280, v{T+4}
        v_add_u32 v{VXO+jj}, v{T+3}, v{T+4}
        """)
        if jj: A(f"v_subrev_u32 v{VXO+jj}, {1024*jj}, v{VXO+jj}")
    A(f"s_mov_b32 s{S['t0']}, {magic(12)}")
    for i in range(3):
        A(f"""
        v_add_u32 v{T+3}, {64*i}, v{VLANE}
        v_mul_hi_u32 v{T+4}, v{T+3}, s{S['t0']}
        v_mul_u32_u24 v{T+5}, 12, v{T+4}
        v_sub_u32 v{T+5}, v{T+3}, v{T+5}
        v_mul_u32_u24 v{T+4}, 3072, v{T+4}
        v_lshl_add_u32 v{VWO+i}, v{T+5}, 4, v{T+4}
        """)
        if i: A(f"v_subrev_u32 v{VWO+i}, {1024*i}, v{VWO+i}")
    A(f"""
    s_mul_i32 s{S['sx']}, s{S['rb']}, 163840
    s_mul_i32 s{S['t0']}, s{S['w']}, 40960
    s_add_u32 s{S['sx']}, s{S['sx']}, s{S['t0']}
    s_mul_i32 s{S['sw']}, s{S['cb']}, 192
    s_mul_i32 s{S['t0']}, s{S['w']}, 49152
    s_add_u32 s{S['sw']}, s{S['sw']}, s{S['t0']}
    s_lshl_b32 s{S['t0']}, s{S['rot']}, 7
    s_add_u32 s{S['sx']}, s{S['sx']}, s{S['t0']}
    s_mul_i32 s{S['t0']}, s{S['rot']}, {64*3072}
    s_add_u32 s{S['sw']}, s{S['sw']}, s{S['t0']}
    s_mov_b32 s{S['sl']}, s{S['rot']}
    s_lshl_b32 s{S['mx']}, s{S['w']}, 12
    s_mul_i32 s{S['mw']}, s{S['w']}, 3072
    s_add_u32 s{S['mw']}, s{S['mw']}, {WBASE}
    """)
def g_lds_addr(A,S):
    T=VT0
    A(f"""
    v_and_b32 v{T}, 31, v{VLANE}               ; n
    v_lshrrev_b32 v{T+1}, 5, v{VLANE}          ; g
    v_bfe_u32 v{T+2}, v{VLANE}, 1, 3           ; (n>>1)&7
    v_xor_b32 v{T+2}, v{T+2}, v{T+1}
    v_lshlrev_b32 v{T+2}, 4, v{T+2}
    s_lshl_b32 s{S['t0']}, s{S['wt']}, 6
    v_add_u32 v{T}, s{S['t0']}, v{T}
    v_lshl_add_u32 v{VXR}, v{T}, 7, v{T+2}
    v_xor_b32 v{VXR+1}, 32, v{VXR}
    v_xor_b32 v{VXR+2}, 64, v{VXR}
    v_xor_b32 v{VXR+3}, 96, v{VXR}
    v_bfe_u32 v{T}, v{VLANE}, 2, 2             ; r
    v_lshrrev_b32 v{T+1}, 5, v{VLANE}          ; g
    v_lshl_add_u32 v{T}, v{T+1}, 3, v{T}       ; 8g+r
    v_mul_u32_u24 v{T}, 192, v{T}
    v_bfe_u32 v{T+1}, v{VLANE}, 4, 1           ; grp
    v_lshl_add_u32 v{T}, v{T+1}, 4, v{T}
    v_and_b32 v{T+1}, 1, v{VLANE}
    v_lshl_add_u32 v{T}, v{T+1}, 3, v{T}
    v_bfe_u32 v{T+1}, v{VLANE}, 1, 1           ; c>=2
    v_mul_u32_u24 v{T+1}, {W3OFF}, v{T+1}
    v_add_u32 v{T}, v{T}, v{T+1}
    s_mul_i32 s{S['t0']}, s{S['wf']}, 96
    s_add_u32 s{S['t0']}, s{S['t0']}, {WBASE}
    v_add_u32 v{VWR}, s{S['t0']}, v{T}
    """)
def g_dma(S,stage):
    slot=stage%3; out=[]
    for jj in range(4):
        t=f"buffer_load_dwordx4 v{VXO+jj}, s[{S['srdx']}:{S['srdx']+3}], s{S['sx']} offen offset:{1024*jj} lds"
        if jj==0: t=f"s_add_u32 m0, s{S['mx']}, {XBASE+slot*XSLOT}\ns_nop 0\n"+t
        out.append(t)
    for i in range(3):
        t=f"buffer_load_dwordx4 v{VWO+i}, s[{S['srd1']}:{S['srd1']+3}], s{S['sw']} offen offset:{1024*i} lds"
        if i==0: t=f"s_add_u32 m0, s{S['mw']}, {slot*WSLOT}\ns_nop 0\n"+t
        out.append(t)
    for i in range(3):
        t=f"buffer_load_dwordx4 v{VWO+i}, s[{S['srd3']}:{S['srd3']+3}], s{S['sw']} offen offset:{1024*i} lds"
        if i==0: t=f"s_add_u32 m0, s{S['mw']}, {slot*WSLOT+W3OFF}\ns_nop 0\n"+t
        if i==2: t+=(f"\ns_add_u32 s{S['sl']}, s{S['sl']}, 1\ns_cmp_eq_u32 s{S['sl']}, 10\ns_cselect_b32 s{S['t0']}, 1280, 0"
                     f"\ns_cselect_b32 s{S['t1']}, {640*3072}, 0\ns_cselect_b32 s{S['sl']}, 0, s{S['sl']}"
                     f"\ns_add_u32 s{S['sx']}, s{S['sx']}, 128\ns_add_u32 s{S['sw']}, s{S['sw']}, {64*3072}"
                     f"\ns_sub_u32 s{S['sx']}, s{S['sx']}, s{S['t0']}\ns_sub_u32 s{S['sw']}, s{S['sw']}, s{S['t1']}")
        out.append(t)
    return out
def g_reads(stage,s,p):
    slot=stage%3
    def B(nt): return f"ds_read_b128 v[{FB+p*8+nt*4}:{FB+p*8+nt*4+3}], v{VXR+s} offset:{XBASE+slot*XSLOT+nt*4096}"
    def Aa(t,h):
        r=FA+p*12+t*4+2*h
        return f"ds_read_b64_tr_b16 v[{r}:{r+1}], v{VWR} offset:{slot*WSLOT+3072*s+768*h+32*t}"
    return [B(0),Aa(0,0),Aa(0,1),B(1),Aa(1,0),Aa(1,1),Aa(2,0),Aa(2,1)]
def g_mfma(p):
    out=[]
    for t in range(3):
        for nt in range(2):
            a=acc(t,nt)
            out.append(f"v_mfma_f32_32x32x16_bf16 v[{a}:{a+15}], v[{FA+p*12+t*4}:{FA+p*12+t*4+3}], v[{FB+p*8+nt*4}:{FB+p*8+nt*4+3}], v[{a}:{a+15}]")
    return out
def g_loop(A,S,stamp=None,PRE=2):
    issued=PRE
    for st in range(NST):
        A(f"s_waitcnt vmcnt({(issued-1-st)*10}) lgkmcnt(0)")
        if stamp: stamp(('pre',st))
        A("s_barrier")
        if stamp: stamp(st)
        dma=[]
        while issued<NST and issued-3<st:
            dma+=g_dma(S,issued); issued+=1
        for s in range(4):
            p=s&1
            reads=g_reads(st,s,p)
            dm=dma[(len(dma)*s)//4:(len(dma)*(s+1))//4] if dma else []
            if st==0 and s==0:
                for l in reads: A(l)
                for l in dm: A(l)
                continue
            if s!=0: A("s_waitcnt lgkmcnt(0)")
            m=g_mfma(p^1)
            A(m[0]); [A(l) for l in reads[0:3]]
            A(m[1]); [A(l) for l in reads[3:6]]
            A(m[2]); [A(l) for l in reads[6:8]]
            nd=len(dm); a=(nd+2)//3; b=(2*nd+2)//3
            A(m[3]); [A(l) for l in dm[:a]]
            A(m[4]); [A(l) for l in dm[a:b]]
            A(m[5]); [A(l) for l in dm[b:]]
    A("s_waitcnt lgkmcnt(0)")
    for l in g_mfma(1): A(l)
FS=160
FR=234
CSR=168
VHA=216
EP=218
def g_epilogue(A,S,srd,hbase=HF,flags=""):
    T=VT0
    A(f"""
    v_and_b32 v{T}, 31, v{VLANE}
    s_lshl_b32 s{S['t0']}, s{S['wt']}, 6
    v_add_u32 v{T}, s{S['t0']}, v{T}
    v_lshlrev_b32 v{T}, 3, v{T}
    v_add_u32 v{T}, {STAT}, v{T}
    v_lshrrev_b32 v{T+1}, 5, v{VLANE}
    v_lshlrev_b32 v{T+1}, 4, v{T+1}              ; g*16
    s_mul_i32 s{S['t1']}, s{S['wf']}, 192
    s_add_u32 s{S['t1']}, s{S['t1']}, {CSL}
    v_add_u32 v{T+1}, s{S['t1']}, v{T+1}
    """)
    for nt in range(2): A(f"ds_read_b64 v[{FS+2*nt}:{FS+2*nt+1}], v{T} offset:{256*nt}")
    for t in range(3):
        for q in range(4):
            hq,mat=q>>1,q&1
            A(f"ds_read_b128 v[{CSR+(t*4+q)*4}:{CSR+(t*4+q)*4+3}], v{T+1} offset:{mat*384+t*64+hq*32}")
    A(f"""
    v_and_b32 v{T}, 15, v{VLANE}                 ; n16
    v_bfe_u32 v{T+2}, v{VLANE}, 4, 1
    v_mul_u32_u24 v{T+2}, {48*1024}, v{T+2}
    v_lshl_add_u32 v{T+2}, v{T}, 4, v{T+2}
    v_lshrrev_b32 v{T}, 5, v{VLANE}
    v_lshl_add_u32 v{VHA}, v{T}, 8, v{T+2}       ; + g*256
    s_lshl_b32 s{S['t0']}, s{S['rb']}, 3
    s_lshl_b32 s{S['t1']}, s{S['wt']}, 2
    s_add_u32 s{S['t0']}, s{S['t0']}, s{S['t1']}
    s_mul_i32 s{S['t0']}, s{S['t0']}, 48
    s_mul_i32 s{S['t1']}, s{S['cb']}, 3
    s_add_u32 s{S['t0']}, s{S['t0']}, s{S['t1']}
    s_lshl_b32 s{S['t0']}, s{S['t0']}, 10
    s_add_u32 s{S['hb']}, s{S['t0']}, {hbase}
    """)
    for t in range(3):
        v0=(t>>1)*1024+(t&1)*512; v1=((3+t)>>1)*1024+((3+t)&1)*512
        A(f"s_mul_i32 s{S['t0']}, s{S['wf']}, {v1-v0}\ns_add_u32 s{S['t0']}, s{S['t0']}, {v0}\ns_add_u32 s{S['ho']+t}, s{S['t0']}, s{S['hb']}")
    A("s_waitcnt lgkmcnt(0)")
    for nt in range(2):
        m=FS+2*nt; r=m+1
        A(f"v_mul_f32 v{FR+4*nt}, 0xbfb8aa3b, v{r}\nv_mul_f32 v{FR+4*nt+2}, v{r}, v{r}\nv_sub_f32 v{m}, 0, v{m}")
    E=EP; k=0
    for t in range(3):
        for nt in range(2):
            a=acc(t,nt); negm=FS+2*nt; rp=FR+4*nt
            P=[(hq,ip) for hq in range(2) for ip in range(2)]
            G=lambda hq,ip: a+8*hq+2*ip
            U=lambda hq,ip: a+8*hq+4+2*ip
            CG=lambda hq,ip: CSR+(t*4+2*hq)*4+2*ip
            CU=lambda hq,ip: CSR+(t*4+2*hq+1)*4+2*ip
            O=EP+8+4*(k&1); k+=1
            for hq,ip in P: g=G(hq,ip); A(f"v_pk_fma_f32 v[{g}:{g+1}], v[{negm}:{negm+1}], v[{CG(hq,ip)}:{CG(hq,ip)+1}], v[{g}:{g+1}] op_sel_hi:[0,1,1]")
            for i,(hq,ip) in enumerate(P): g=G(hq,ip); A(f"v_pk_mul_f32 v[{E+2*i}:{E+2*i+1}], v[{g}:{g+1}], v[{rp}:{rp+1}] op_sel_hi:[1,0]")
            for hq,ip in P: u=U(hq,ip); A(f"v_pk_fma_f32 v[{u}:{u+1}], v[{negm}:{negm+1}], v[{CU(hq,ip)}:{CU(hq,ip)+1}], v[{u}:{u+1}] op_sel_hi:[0,1,1]")
            for i in range(8): A(f"v_exp_f32 v{E+i}, v{E+i}")
            for hq,ip in P: g=G(hq,ip); u=U(hq,ip); A(f"v_pk_mul_f32 v[{g}:{g+1}], v[{g}:{g+1}], v[{u}:{u+1}]")
            for i in range(4): A(f"v_pk_add_f32 v[{E+2*i}:{E+2*i+1}], v[{E+2*i}:{E+2*i+1}], 1.0 op_sel_hi:[1,0]")
            for hq,ip in P: g=G(hq,ip); A(f"v_pk_mul_f32 v[{g}:{g+1}], v[{g}:{g+1}], v[{rp+2}:{rp+3}] op_sel_hi:[1,0]")
            for i in range(8): A(f"v_rcp_f32 v{E+i}, v{E+i}")
            A("s_nop 0")
            for i,(hq,ip) in enumerate(P): g=G(hq,ip); A(f"v_pk_mul_f32 v[{g}:{g+1}], v[{g}:{g+1}], v[{E+2*i}:{E+2*i+1}]")
            for i,(hq,ip) in enumerate(P): g=G(hq,ip); A(f"v_cvt_pk_bf16_f32 v{O+i}, v{g}, v{g+1}")
            A(f"s_add_u32 s{S['t0']}, s{S['ho']+t}, {2*nt*48*1024}\ns_nop 0\nbuffer_store_dwordx4 v[{O}:{O+3}], v{VHA}, s[{srd}:{srd+3}], s{S['t0']} offen {flags}")
```

```python
import sys, os
from g32lib import *
from kgenlib import *
from htasks import *
import kgenlib, htasks
DIAG=bool(os.environ.get('DIAG'))
S=dict(x=20,j=21,rb=22,cb=23,hw=24,w=25,wf=26,wt=27,t0=28,t1=29,sx=30,sw=31,mx=32,mw=33,sl=34,rot=35,
       srdx=8,srd1=12,srd3=16,hb=60,ho=61,wg=2,
       ch=88,kb=89,k0=90,k1=91,sv=92,h0=94,h1=95,h2=96,h3=97,lb=98,u=99,m48=100,nch=101,
       sA=40,sI=44,sR=48,sC=52,sD=56,fst=72,fcs=73)
WS=36
KB0=HSCR
LB_L=HSCR+3*KSCR
LB_W=HSCR+2*KSCR
LDS_K1=LB_L+LNSCR+3072
HLANE=11
def h_schedule(A,S,P,budget=700,pre=1500):
    E=Emit(A)
    items=list(P.it); pos=[0]; locked=[0]
    def run_until(cost,window):
        c=0
        while pos[0]<len(items):
            x=items[pos[0]]
            if x[0]=='MARK':
                if x[1]>window: return
                pos[0]+=1; continue
            if x[0]=='MUST': pos[0]+=1; continue
            if x[0]=='LOCK': locked[0]=x[1]; pos[0]+=1; continue
            force=any(y[0]=='MUST' and y[1]<=window for y in items[pos[0]:])
            if c>=cost and not locked[0] and not force: return
            E.item(x); c+=x[2]; pos[0]+=1
    run_until(pre,-1)
    for st in range(NST):
        if DIAG: A(f"s_memtime s[6:7]\ns_waitcnt lgkmcnt(0)\nv_writelane_b32 v31, s6, {16+st}")
        A("s_barrier")
        if DIAG: A(f"s_memtime s[6:7]\ns_waitcnt lgkmcnt(0)\nv_writelane_b32 v31, s6, {st}")
        run_until(budget,st)
    return E,items[pos[0]:]
def mark(P,st): P.it.append(('MARK',st,0))
def must(P,st): P.it.append(('MUST',st,0))
def build(A):
    n='k1_kernel'; A.begin(n)
    if DIAG: A("s_memtime s[82:83]\ns_memrealtime s[62:63]")
    A("s_cmp_ge_u32 s2, 256\ns_cbranch_scc1 Lk1_end")
    A(f"""
    s_load_dwordx2 s[4:5], s[0:1], {ARG['u']}
    s_load_dwordx4 s[76:79], s[0:1], {ARG['w1']}
    s_load_dwordx4 s[84:87], s[0:1], {ARG['dbg']}
    s_load_dwordx8 s[64:71], s[0:1], {ARG['logA']}
    s_load_dwordx2 s[74:75], s[0:1], {ARG['logdt']}
    s_load_dwordx2 s[80:81], s[0:1], {ARG['w2']}
    s_and_b32 s20, s2, 7          ; x
    s_lshr_b32 s21, s2, 3         ; j
    s_and_b32 s22, s20, 1
    s_lshl_b32 s22, s22, 3
    s_and_b32 s23, s21, 7
    s_add_u32 s22, s22, s23       ; rb
    s_lshr_b32 s23, s20, 1
    s_lshl_b32 s23, s23, 2
    s_lshr_b32 s24, s21, 3
    s_add_u32 s23, s23, s24       ; cb
    v_lshrrev_b32 v1, 6, v0
    s_cmp_ge_u32 s22, 10
    s_cselect_b32 s35, 10, 0
    v_readfirstlane_b32 s25, v1   ; wave
    s_sub_u32 s35, s22, s35       ; rot
    s_nop 2
    s_and_b32 s26, s25, 1         ; wf
    s_bfe_u32 s27, s25, 0x10001   ; wt
    s_and_b32 s24, s25, 3         ; hw
    s_cmp_ge_u32 s25, 4
    s_cbranch_scc1 Lhrole
    """)
    g_dma_addr(A,S)
    A("s_waitcnt lgkmcnt(0)")
    A.srd(8,4,SIZE['u']); A.srd(12,76,SIZE['w1']); A.srd(16,78,SIZE['w3']); A.srd(WS,86,SIZE['ws'])
    for l in g_dma(S,0): A(l)
    g_lds_addr(A,S)
    for i in range(48): A(f"v_mov_b32 v{ACC+i}, 0")
    for l in g_dma(S,1): A(l)
    for i in range(48,96): A(f"v_mov_b32 v{ACC+i}, 0")
    def gstamp(st):
        if not DIAG: return
        if st==0: A("s_memtime s[64:65]")
        if st==1: A("s_memtime s[78:79]\ns_memrealtime s[80:81]")
        if st==9: A("s_memtime s[74:75]\ns_memrealtime s[84:85]")
        if isinstance(st,tuple): A(f"s_memtime s[88:89]\ns_waitcnt lgkmcnt(0)\nv_writelane_b32 v250, s88, {16+st[1]}")
        else: A(f"s_memtime s[88:89]\ns_waitcnt lgkmcnt(0)\nv_writelane_b32 v250, s88, {st}")
    g_loop(A,S,gstamp)
    if DIAG: A("s_memtime s[66:67]")
    A("s_barrier")
    if DIAG: A("s_memtime s[76:77]")
    g_epilogue(A,S,WS,HF,os.environ.get('HFLAGS','sc1'))
    if DIAG:
        A("s_memtime s[68:69]\ns_waitcnt vmcnt(0)\ns_memtime s[70:71]\ns_memrealtime s[72:73]\ns_waitcnt lgkmcnt(0)")
        A(f"s_lshl_b32 s27, s2, 11\ns_lshl_b32 s28, s25, 8\ns_add_u32 s27, s27, s28\ns_add_u32 s27, s27, {STAMP}\nv_mov_b32 v9, 0")
        for i,r in enumerate([82,62,64,66,68,70,72,76,78,80,74,84]):
            A(f"v_mov_b32 v10, s{r}\nv_mov_b32 v11, s{r+1}\nbuffer_store_dwordx2 v[10:11], v9, s[36:39], s27 offen offset:{8*i}")
        A("v_mbcnt_lo_u32_b32 v10, -1, 0\nv_mbcnt_hi_u32_b32 v10, -1, v10\nv_lshlrev_b32 v10, 2, v10\ns_add_u32 s27, s27, 128\ns_mov_b64 exec, 0xffffffff\nbuffer_store_dword v250, v10, s[36:39], s27 offen")
    A("s_branch Lk1_end")
    A("Lhrole:")
    if os.environ.get('HPRIO'): A(f"s_setprio {os.environ['HPRIO']}")
    A(f"v_and_b32 v{HLANE}, 63, v0")
    A(f"""
    s_mul_i32 s28, s21, 3
    s_lshl_b32 s29, s21, 1
    s_add_u32 s29, s29, 16
    s_cmp_lt_u32 s21, 16
    s_cselect_b32 s28, s28, s29
    s_cselect_b32 s101, 3, 2          ; nch
    s_mul_i32 s29, s20, 80
    s_add_u32 s28, s28, s29
    s_add_u32 s88, s28, s24           ; channel
    s_mul_i32 s89, s24, {KSCR}
    s_add_u32 s89, s89, {KB0}
    s_waitcnt lgkmcnt(0)
    """)
    A.srd(8,4,SIZE['u']); A.srd(WS,86,SIZE['ws'])
    A("s_cmp_eq_u32 s24, 3\ns_cbranch_scc1 Lrole_l\ns_cmp_lt_u32 s24, s101\ns_cbranch_scc0 Lrole_w")
    def hend(tag,regs):
        if DIAG:
            A("s_memtime s[70:71]\ns_waitcnt vmcnt(0) lgkmcnt(0)")
            A(f"s_lshl_b32 s27, s2, 11\ns_lshl_b32 s28, s25, 8\ns_add_u32 s27, s27, s28\ns_add_u32 s27, s27, {STAMP}\nv_mov_b32 v9, 0")
            for i,r in enumerate([82,62,70]):
                A(f"v_mov_b32 v10, s{r}\nv_mov_b32 v11, s{r+1}\nbuffer_store_dwordx2 v[10:11], v9, s[36:39], s27 offen offset:{8*i}")
            A("v_and_b32 v10, 31, v11\nv_mbcnt_lo_u32_b32 v10, -1, 0\nv_mbcnt_hi_u32_b32 v10, -1, v10\nv_lshlrev_b32 v10, 2, v10\nv_cmp_gt_u32 vcc, 32, v10\ns_add_u32 s27, s27, 128\ns_mov_b64 exec, 0xffffffff\nbuffer_store_dword v31, v10, s[36:39], s27 offen")
        A("s_branch Lk1_end")
    A.srd(40,64,245760); A.srd(44,66,245760); A.srd(48,68,245760); A.srd(52,70,245760); A.srd(56,74,1280)
    P=Prog(); mark(P,-1); kgen_loads(P,S,HLANE,KV); kgen_setup(P,S,HLANE); mark(P,0); kgen_dt(P,S); kgen_groups(P); kgen_out(P,S,HLANE,WS,"")
    P=schedule(P)
    if os.environ.get('NOK'): P=Prog()
    DUM=os.environ.get('DUMMY')
    if DUM:
        P=Prog(); nper=int(os.environ.get('NPER','120'))
        for st in range(10):
            mark(P,st)
            if DUM=='loop':
                if st==0:
                    pass
                P.atom(f"s_getpc_b64 s[66:67]\ns_add_u32 s66, s66, 16\ns_addc_u32 s67, s67, 0\ns_branch Ldumsub\n" if False else "s_nop 0")
            for q in range(nper):
                P.i(f"v_mul_f32 v{40+q%16}, v{60+q%4}, v{70+q%8}" if DUM=='e32' else f"v_fma_f32 v{40+q%16}, v{60+q%4}, v{70+q%8}, v{80+q%4}",cost=1)
    E,rest=h_schedule(A,S,P,budget=int(os.environ.get('KB','560')))
    A("s_barrier")
    for x in rest:
        E.item(x)
    print("K role: total cost",sum(x[2] for x in P.it),"left after loop",sum(x[2] for x in rest))
    hend('K',None)
    A("Lrole_w:")
    A.srd(40,80,SIZE['w2'])
    A(f"s_sub_u32 s99, s21, 16\ns_lshl_b32 s99, s99, 3\ns_add_u32 s99, s99, s20\ns_mov_b32 s100, {magic(48)}\ns_mov_b32 s98, {LB_W}")
    P=Prog(); mark(P,-1); w2_setup(P,S,HLANE)
    for k in range(3):
        mark(P,2*k+1); w2_unit(P,S,k,40,WS,"")
    if os.environ.get('NOW'): P=Prog()
    E,rest=h_schedule(A,S,P)
    A("s_barrier")
    for x in rest:
        E.item(x)
    print("W role: total cost",sum(x[2] for x in P.it),"left after loop",sum(x[2] for x in rest))
    hend('W',None)
    A("Lrole_l:")
    A.srd(40,84,256)
    A(f"s_mov_b32 s98, {LB_L}")
    P=Prog(); mark(P,-1); fl_clear(P,S,WS); mark(P,-1); ln_loads(P,S,HLANE); cs_setup(P,S,HLANE)
    mark(P,0); cs_reads(P,S); P.wl('cs'); must(P,0)
    fl_cleared(P,S,40)
    cs_mfma(P,S); cs_store(P,S,HLANE,WS,"sc1")
    ln_compute(P,S,HLANE,WS,"sc1")
    fl_set(P,S,WS)
    mark(P,6); ga_clr_load(P,S,HLANE,40)
    mark(P,7); ga_clr_check(P,S,HLANE,40,WS,'a')
    mark(P,8); ga_flag_check(P,S,HLANE,WS,'a')
    mark(P,9); ga_finish(P,S,HLANE); must(P,9)
    P=schedule(P)
    if os.environ.get('NOL'): P=Prog()
    E,rest=h_schedule(A,S,P,budget=int(os.environ.get('LB','560')))
    A("s_barrier")
    print("L role: total cost",sum(x[2] for x in P.it),"left after loop",len(rest))
    assert not [x for x in rest if x[0] not in('MARK','MUST','LOCK')]
    hend('L',None)
    A("Lk1_end:")
    A.end(n,256); A.launch(n,256,512,lds=LDS_K1)
if __name__=='__main__':
    A=Asm(); build(A)
    print("LDS",LDS_K1)
    open(sys.argv[1],'w').write(A.text("k1"))
```

```python
import sys, os
from asmlib import *
from layout import *
import convlib
from convlib import *
DIAG=bool(os.environ.get('DIAG'))
DEPTH=int(os.environ.get('DEPTH','3'))
RED=0
ATL=61440
ATRS=136
USH=ATL+11008
CVB=USH+USZ
LDS_K2=CVB+3*CWAVE
def build(A):
    n='k2_kernel'; A.begin(n)
    if DIAG: A("s_memtime s[60:61]\ns_memrealtime s[62:63]")
    A("s_cmp_ge_u32 s2, 256\ns_cbranch_scc1 Lk2_end")
    A(f"""
    s_load_dwordx2 s[6:7], s[0:1], {ARG['ws']}
    s_load_dwordx2 s[4:5], s[0:1], {ARG['u']}
    s_load_dwordx2 s[44:45], s[0:1], {ARG['out']}
    s_load_dwordx2 s[46:47], s[0:1], {ARG['Dskip']}
    s_and_b32 s20, s2, 7          ; x
    s_lshr_b32 s21, s2, 3         ; j
    v_lshrrev_b32 v1, 6, v0
    v_and_b32 v2, 63, v0
    s_nop 0
    v_readfirstlane_b32 s25, v1   ; wave
    s_nop 3
    s_cmp_ge_u32 s25, 4
    s_cbranch_scc1 Lconv
    """)
    A("""
    s_lshr_b32 s22, s20, 1
    s_lshl_b32 s22, s22, 3
    s_and_b32 s23, s21, 7
    s_add_u32 s22, s22, s23       ; lb
    s_and_b32 s23, s20, 1
    s_lshl_b32 s23, s23, 2
    s_lshr_b32 s24, s21, 3
    s_add_u32 s23, s23, s24       ; db
    v_lshlrev_b32 v3, 4, v2       ; lane*16
    v_add_u32 v4, 4096, v3
    v_add_u32 v5, 8192, v3
    s_mul_i32 s26, s25, 12
    """)
    for nt in range(4):
        A(f"s_lshl_b32 s27, s22, 2\ns_add_u32 s27, s27, {nt}\ns_mul_i32 s27, s27, 48\ns_add_u32 s27, s27, s26\ns_lshl_b32 s27, s27, 10\ns_add_u32 s{30+nt}, s27, {HF}")
    for dt in range(5):
        A(f"s_mul_i32 s27, s23, 5\ns_add_u32 s27, s27, {dt}\ns_mul_i32 s27, s27, 48\ns_add_u32 s27, s27, s26\ns_lshl_b32 s27, s27, 10\ns_add_u32 s{34+dt}, s27, {W2F}")
    A("s_waitcnt lgkmcnt(0)")
    A.srd(8,6,SIZE['ws']); A.srd(12,4,SIZE['u']); A.srd(16,44,SIZE['out'])
    ACC=0; FR=80
    XR=FR+36*DEPTH
    assert XR+40<=256
    VL=XR+24; VL4=VL+1; VL8=VL+2; VLN=VL+3; VT=VL+4
    A(f"v_mov_b32 v{VL}, v3\nv_mov_b32 v{VL4}, v4\nv_mov_b32 v{VL8}, v5\nv_mov_b32 v{VLN}, v2")
    vm=[]
    def frag(slot,i): return FR+slot*36+4*i
    def loads(s):
        slot=s%DEPTH; va=VL+(s>>2); imm=1024*(s&3)
        for dt in range(5):
            A(f"buffer_load_dwordx4 v[{frag(slot,dt)}:{frag(slot,dt)+3}], v{va}, s[8:11], s{34+dt} offen offset:{imm}"); vm.append(('f',s))
        for nt in range(4):
            A(f"buffer_load_dwordx4 v[{frag(slot,5+nt)}:{frag(slot,5+nt)+3}], v{va}, s[8:11], s{30+nt} offen offset:{imm}"); vm.append(('f',s))
    def wait(tag):
        idx=max(i for i,t in enumerate(vm) if t==tag); A(f"s_waitcnt vmcnt({min(63,len(vm)-1-idx)})")
    for i in range(80): A(f"v_mov_b32 v{ACC+i}, 0")
    for s in range(DEPTH): loads(s)
    A(f"""
    v_and_b32 v{VT}, 15, v{VLN}
    v_lshrrev_b32 v{VT+1}, 4, v{VLN}
    v_mul_u32_u24 v{VT+2}, 1280, v{VT}
    v_mul_u32_u24 v{VT+3}, 40, v{VT+1}
    v_add_u32 v{XR+10}, v{VT+2}, v{VT+3}        ; row*1280 + 40g
    s_lshl_b32 s27, s22, 6
    s_lshl_b32 s28, s25, 4
    s_add_u32 s27, s27, s28
    s_mul_i32 s27, s27, 1280
    s_mul_i32 s28, s23, 160
    s_add_u32 s40, s27, s28
    """)
    A(f"buffer_load_dwordx4 v[{XR}:{XR+3}], v{XR+10}, s[12:15], s40 offen\nbuffer_load_dwordx4 v[{XR+4}:{XR+7}], v{XR+10}, s[12:15], s40 offen offset:16\nbuffer_load_dwordx2 v[{XR+8}:{XR+9}], v{XR+10}, s[12:15], s40 offen offset:32")
    vm.extend([('x',0)]*3)
    A(f"v_and_b32 v{VT+4}, 31, v{VLN}\nv_lshlrev_b32 v{VT+4}, 7, v{VT+4}\ns_lshl_b32 s41, s23, 12\ns_add_u32 s41, s41, {FD}")
    A(f"""
    v_lshrrev_b32 v{VT+5}, 3, v{VLN}
    v_and_b32 v{VT+6}, 7, v{VLN}               ; chunk
    v_lshlrev_b32 v{VT+7}, 12, v{VT+5}         ; row*4096
    v_lshl_add_u32 v{VT+7}, v{VT+6}, 4, v{VT+7}
    v_mul_u32_u24 v{VT+8}, {ATRS}, v{VT+5}
    v_lshl_add_u32 v{VT+8}, v{VT+6}, 4, v{VT+8}
    s_mul_i32 s27, s23, {80*4096}
    s_lshl_b32 s28, s22, 7
    s_add_u32 s27, s27, s28
    s_lshl_b32 s28, s25, 15                    ; w*8 rows*4096
    s_add_u32 s27, s27, s28
    s_add_u32 s42, s27, {AT}
    s_mul_i32 s28, s25, {8*ATRS}
    s_add_u32 s43, s28, {ATL}
    v_add_u32 v{VT+8}, s43, v{VT+8}
    """)
    A("s_barrier")
    A("s_mov_b32 s44, 0")
    def atloads(u):
        for i in range(3):
            if i<2: A(f"s_add_u32 s27, s42, {i*32*4096}\nbuffer_load_dwordx4 v[{XR+12+4*i}:{XR+15+4*i}], v{VT+7}, s[8:11], s27 offen sc1")
            else: A(f"s_cmp_lt_u32 s25, 2\ns_cbranch_scc0 Lnoat{u}\ns_add_u32 s27, s42, {i*32*4096}\nbuffer_load_dwordx4 v[{XR+12+4*i}:{XR+15+4*i}], v{VT+7}, s[8:11], s27 offen sc1\nLnoat{u}:")
    POLL=8; PF=VT+12; assert PF%2==0 and PF+4<=256
    for s in range(12):
        slot=s%DEPTH
        if s<=POLL+2: wait(('f',s))
        if DIAG and s==0: A("s_memtime s[64:65]")
        for nt in range(4):
            for dt in range(5):
                a=ACC+(nt*5+dt)*4
                A(f"v_mfma_f32_16x16x32_bf16 v[{a}:{a+3}], v[{frag(slot,dt)}:{frag(slot,dt)+3}], v[{frag(slot,5+nt)}:{frag(slot,5+nt)+3}], v[{a}:{a+3}]")
        if s+DEPTH<12: loads(s+DEPTH)
        if s==POLL:
            A(f"buffer_load_dwordx4 v[{PF}:{PF+3}], v{VT+4}, s[8:11], s41 offen sc1"); vm.append(('p',0))
        if s==POLL+2:
            wait(('p',0))
            A(f"""
            v_and_b32 v{PF}, v{PF}, v{PF+1}
            v_and_b32 v{PF}, v{PF}, v{PF+2}
            v_cmp_eq_u32 vcc, 1, v{PF}
            s_nop 1
            s_cmp_eq_u64 vcc, exec
            s_cbranch_scc0 Lnotyet
            s_mov_b32 s44, 1
            """)
            atloads('e')
            A("Lnotyet:")
    if DIAG: A("s_memtime s[66:67]")
ATL=61440
ATRS=136
USH=ATL+11008
CVB=USH+USZ
LDS_K2=CVB+3*CWAVE
def build(A):
    n='k2_kernel'; A.begin(n)
    if DIAG: A("s_memtime s[60:61]\ns_memrealtime s[62:63]")
    A("s_cmp_ge_u32 s2, 256\ns_cbranch_scc1 Lk2_end")
    A(f"""
    s_load_dwordx2 s[6:7], s[0:1], {ARG['ws']}
    s_load_dwordx2 s[4:5], s[0:1], {ARG['u']}
    s_load_dwordx2 s[44:45], s[0:1], {ARG['out']}
    s_load_dwordx2 s[46:47], s[0:1], {ARG['Dskip']}
    s_and_b32 s20, s2, 7          ; x
    s_lshr_b32 s21, s2, 3         ; j
    v_lshrrev_b32 v1, 6, v0
    v_and_b32 v2, 63, v0
    s_nop 0
    v_readfirstlane_b32 s25, v1   ; wave
    s_nop 3
    s_cmp_ge_u32 s25, 4
    s_cbranch_scc1 Lconv
    """)
    A("""
    s_lshr_b32 s22, s20, 1
    s_lshl_b32 s22, s22, 3
    s_and_b32 s23, s21, 7
    s_add_u32 s22, s22, s23       ; lb
    s_and_b32 s23, s20, 1
    s_lshl_b32 s23, s23, 2
    s_lshr_b32 s24, s21, 3
    s_add_u32 s23, s23, s24       ; db
    v_lshlrev_b32 v3, 4, v2       ; lane*16
    v_add_u32 v4, 4096, v3
    v_add_u32 v5, 8192, v3
    s_mul_i32 s26, s25, 12
    """)
    for nt in range(4):
        A(f"s_lshl_b32 s27, s22, 2\ns_add_u32 s27, s27, {nt}\ns_mul_i32 s27, s27, 48\ns_add_u32 s27, s27, s26\ns_lshl_b32 s27, s27, 10\ns_add_u32 s{30+nt}, s27, {HF}")
    for dt in range(5):
        A(f"s_mul_i32 s27, s23, 5\ns_add_u32 s27, s27, {dt}\ns_mul_i32 s27, s27, 48\ns_add_u32 s27, s27, s26\ns_lshl_b32 s27, s27, 10\ns_add_u32 s{34+dt}, s27, {W2F}")
    A("s_waitcnt lgkmcnt(0)")
    A.srd(8,6,SIZE['ws']); A.srd(12,4,SIZE['u']); A.srd(16,44,SIZE['out'])
    ACC=0; FR=80
    XR=FR+36*DEPTH
    assert XR+40<=256
    VL=XR+24; VL4=VL+1; VL8=VL+2; VLN=VL+3; VT=VL+4
    A(f"v_mov_b32 v{VL}, v3\nv_mov_b32 v{VL4}, v4\nv_mov_b32 v{VL8}, v5\nv_mov_b32 v{VLN}, v2")
    vm=[]
    def frag(slot,i): return FR+slot*36+4*i
    def loads(s):
        slot=s%DEPTH; va=VL+(s>>2); imm=1024*(s&3)
        for dt in range(5):
            A(f"buffer_load_dwordx4 v[{frag(slot,dt)}:{frag(slot,dt)+3}], v{va}, s[8:11], s{34+dt} offen offset:{imm}"); vm.append(('f',s))
        for nt in range(4):
            A(f"buffer_load_dwordx4 v[{frag(slot,5+nt)}:{frag(slot,5+nt)+3}], v{va}, s[8:11], s{30+nt} offen offset:{imm}"); vm.append(('f',s))
    def wait(tag):
        idx=max(i for i,t in enumerate(vm) if t==tag); A(f"s_waitcnt vmcnt({min(63,len(vm)-1-idx)})")
    for i in range(80): A(f"v_mov_b32 v{ACC+i}, 0")
    for s in range(DEPTH): loads(s)
    A(f"""
    v_and_b32 v{VT}, 15, v{VLN}
    v_lshrrev_b32 v{VT+1}, 4, v{VLN}
    v_mul_u32_u24 v{VT+2}, 1280, v{VT}
    v_mul_u32_u24 v{VT+3}, 40, v{VT+1}
    v_add_u32 v{XR+10}, v{VT+2}, v{VT+3}        ; row*1280 + 40g
    s_lshl_b32 s27, s22, 6
    s_lshl_b32 s28, s25, 4
    s_add_u32 s27, s27, s28
    s_mul_i32 s27, s27, 1280
    s_mul_i32 s28, s23, 160
    s_add_u32 s40, s27, s28
    """)
    A(f"buffer_load_dwordx4 v[{XR}:{XR+3}], v{XR+10}, s[12:15], s40 offen\nbuffer_load_dwordx4 v[{XR+4}:{XR+7}], v{XR+10}, s[12:15], s40 offen offset:16\nbuffer_load_dwordx2 v[{XR+8}:{XR+9}], v{XR+10}, s[12:15], s40 offen offset:32")
    vm.extend([('x',0)]*3)
    A(f"v_and_b32 v{VT+4}, 31, v{VLN}\nv_lshlrev_b32 v{VT+4}, 7, v{VT+4}\ns_lshl_b32 s41, s23, 12\ns_add_u32 s41, s41, {FD}")
    A(f"""
    v_lshrrev_b32 v{VT+5}, 3, v{VLN}
    v_and_b32 v{VT+6}, 7, v{VLN}               ; chunk
    v_lshlrev_b32 v{VT+7}, 12, v{VT+5}         ; row*4096
    v_lshl_add_u32 v{VT+7}, v{VT+6}, 4, v{VT+7}
    v_mul_u32_u24 v{VT+8}, {ATRS}, v{VT+5}
    v_lshl_add_u32 v{VT+8}, v{VT+6}, 4, v{VT+8}
    s_mul_i32 s27, s23, {80*4096}
    s_lshl_b32 s28, s22, 7
    s_add_u32 s27, s27, s28
    s_lshl_b32 s28, s25, 15                    ; w*8 rows*4096
    s_add_u32 s27, s27, s28
    s_add_u32 s42, s27, {AT}
    s_mul_i32 s28, s25, {8*ATRS}
    s_add_u32 s43, s28, {ATL}
    v_add_u32 v{VT+8}, s43, v{VT+8}
    """)
    A("s_barrier")
    A("s_mov_b32 s44, 0")
    def atloads(u):
        for i in range(3):
            if i<2: A(f"s_add_u32 s27, s42, {i*32*4096}\nbuffer_load_dwordx4 v[{XR+12+4*i}:{XR+15+4*i}], v{VT+7}, s[8:11], s27 offen sc1")
            else: A(f"s_cmp_lt_u32 s25, 2\ns_cbranch_scc0 Lnoat{u}\ns_add_u32 s27, s42, {i*32*4096}\nbuffer_load_dwordx4 v[{XR+12+4*i}:{XR+15+4*i}], v{VT+7}, s[8:11], s27 offen sc1\nLnoat{u}:")
    POLL=8; PF=VT+12; assert PF%2==0 and PF+4<=256
    for s in range(12):
        slot=s%DEPTH
        if s<=POLL+2: wait(('f',s))
        if DIAG and s==0: A("s_memtime s[64:65]")
        for nt in range(4):
            for dt in range(5):
                a=ACC+(nt*5+dt)*4
                A(f"v_mfma_f32_16x16x32_bf16 v[{a}:{a+3}], v[{frag(slot,dt)}:{frag(slot,dt)+3}], v[{frag(slot,5+nt)}:{frag(slot,5+nt)+3}], v[{a}:{a+3}]")
        if s+DEPTH<12: loads(s+DEPTH)
        if s==POLL:
            A(f"buffer_load_dwordx4 v[{PF}:{PF+3}], v{VT+4}, s[8:11], s41 offen sc1"); vm.append(('p',0))
        if s==POLL+2:
            wait(('p',0))
            A(f"""
            v_and_b32 v{PF}, v{PF}, v{PF+1}
            v_and_b32 v{PF}, v{PF}, v{PF+2}
            v_cmp_eq_u32 vcc, 1, v{PF}
            s_nop 1
            s_cmp_eq_u64 vcc, exec
            s_cbranch_scc0 Lnotyet
            s_mov_b32 s44, 1
            """)
            atloads('e')
            A("Lnotyet:")
    if DIAG: A("s_memtime s[66:67]")
    A("s_waitcnt vmcnt(0)")
    for i in range(3):
        if i<2:
            for h in range(2): A(f"ds_write_b64 v{VT+8}, v[{XR+12+4*i+2*h}:{XR+13+4*i+2*h}] offset:{i*32*ATRS+8*h}")
        else:
            A(f"s_cmp_lt_u32 s25, 2\ns_cbranch_scc0 Lnoat2")
            for h in range(2): A(f"ds_write_b64 v{VT+8}, v[{XR+12+4*i+2*h}:{XR+13+4*i+2*h}] offset:{i*32*ATRS+8*h}")
            A("Lnoat2:")
    A(f"v_mov_b32 v{VT+9}, v{VL}")
    R0=FR
    def late(w):
        A(f"""
        s_cmp_eq_u32 s44, 1
        s_cbranch_scc1 Lhave{w}
        Lpoll{w}:
        buffer_load_dwordx4 v[{PF}:{PF+3}], v{VT+4}, s[8:11], s41 offen sc1
        s_waitcnt vmcnt(0)
        v_and_b32 v{PF}, v{PF}, v{PF+1}
        v_and_b32 v{PF}, v{PF}, v{PF+2}
        v_cmp_eq_u32 vcc, 1, v{PF}
        s_nop 1
        s_cmp_eq_u64 vcc, exec
        s_cbranch_scc1 Lpok{w}
        s_sleep 1
        s_branch Lpoll{w}
        Lpok{w}:
        """)
        atloads(f'l{w}')
        A(f"Lhave{w}:\ns_waitcnt vmcnt(0)")
        for i in range(3):
            if i==2 and w>=2: continue
            for h in range(2): A(f"ds_write_b64 v{VT+8}, v[{XR+12+4*i+2*h}:{XR+13+4*i+2*h}] offset:{i*32*ATRS+8*h}")
    for w in range(4):
        lab=A.label('w')
        if w<3: A(f"s_cmp_lg_u32 s25, {w}\ns_cbranch_scc1 {lab}")
        for nt in range(4):
            if nt==w: continue
            src = w if w<nt else w-1
            for dt in range(5):
                a=ACC+(nt*5+dt)*4
                A(f"ds_write_b128 v{VL}, v[{a}:{a+3}] offset:{RED+(nt*15+src*5+dt)*1024}")
        A(f"s_branch Lk2_w{w}" if False else "")
        late(w)
        A("s_waitcnt lgkmcnt(0)\ns_barrier")
        for src in range(3):
            for dt in range(5):
                A(f"ds_read_b128 v[{R0+(src*5+dt)*4}:{R0+(src*5+dt)*4+3}], v{VL} offset:{RED+(w*15+src*5+dt)*1024}")
        if w:
            for r in range(20): A(f"v_mov_b32 v{ACC+r}, v{ACC+w*20+r}")
        A("s_branch Lk2_red" if w<3 else "")
        if w<3: A(f"{lab}:")
    A("Lk2_red:")
    A(f"""
    v_lshrrev_b32 v{VT}, 4, v{VLN}
    v_mul_u32_u24 v{VT}, 20, v{VT}
    v_bfe_u32 v{VT+1}, v{VLN}, 2, 2
    v_add_u32 v{VT}, v{VT}, v{VT+1}
    v_mul_u32_u24 v{VT}, {ATRS}, v{VT}
    v_and_b32 v{VT+1}, 3, v{VLN}
    v_lshl_add_u32 v{VT}, v{VT+1}, 3, v{VT}
    s_lshl_b32 s27, s25, 5
    s_add_u32 s27, s27, {ATL}
    v_add_u32 v{VT}, s27, v{VT}
    """)
    AR=R0+60
    for dt in range(5): A(f"ds_read_b64_tr_b16 v[{AR+2*dt}:{AR+2*dt+1}], v{VT} offset:{4*dt*ATRS}")
    A(f"s_waitcnt lgkmcnt(5)")
    for src in range(3):
        for r in range(20): A(f"v_add_f32 v{ACC+r}, v{ACC+r}, v{R0+src*20+r}")
    if DIAG: A("s_memtime s[68:69]")
    A("s_waitcnt lgkmcnt(0)")
    W=R0
    for e2 in range(10):
        x=XR+e2; a=AR+e2; b0=ACC+2*e2; b1=b0+1; w=W+4*(e2%4)
        A(f"""
        v_lshlrev_b32 v{w}, 16, v{x}
        v_and_b32 v{w+1}, 0xffff0000, v{x}
        v_lshlrev_b32 v{w+2}, 16, v{a}
        v_and_b32 v{w+3}, 0xffff0000, v{a}
        v_add_f32 v{w}, v{w}, v{w+2}
        v_add_f32 v{w+1}, v{w+1}, v{w+3}
        v_cvt_pk_bf16_f32 v{w+2}, v{b0}, v{b1}
        v_cvt_pk_bf16_f32 v{w}, v{w}, v{w+1}
        v_lshlrev_b32 v{b0}, 16, v{w+2}
        v_and_b32 v{b1}, 0xffff0000, v{w+2}
        v_lshlrev_b32 v{w+2}, 16, v{w}
        v_and_b32 v{w+3}, 0xffff0000, v{w}
        v_add_f32 v{b0}, v{b0}, v{w+2}
        v_add_f32 v{b1}, v{b1}, v{w+3}
        v_cvt_pk_bf16_f32 v{W+20+e2}, v{b0}, v{b1}
        """)
    A(f"buffer_store_dwordx4 v[{W+20}:{W+23}], v{XR+10}, s[16:19], s40 offen")
    A(f"buffer_store_dwordx4 v[{W+24}:{W+27}], v{XR+10}, s[16:19], s40 offen offset:16\nbuffer_store_dwordx2 v[{W+28}:{W+29}], v{XR+10}, s[16:19], s40 offen offset:32")
    if DIAG:
        A("s_waitcnt vmcnt(0)\ns_memtime s[70:71]\ns_memrealtime s[72:73]\ns_waitcnt lgkmcnt(0)")
        A(f"s_lshl_b32 s27, s2, 11\ns_lshl_b32 s28, s25, 8\ns_add_u32 s27, s27, s28\ns_add_u32 s27, s27, {STAMP+(2<<20)}\nv_mov_b32 v9, 0")
        for i,r in enumerate([60,62,64,66,68,70,72]):
            A(f"v_mov_b32 v10, s{r}\nv_mov_b32 v11, s{r+1}\nbuffer_store_dwordx2 v[10:11], v9, s[8:11], s27 offen offset:{8*i}")
    A("s_branch Lk2_end")
    A("Lconv:")
    S=dict(base=30,ch=31,srd=8,t0=28,t1=29,sv=50,m0=52,m1=54,m2=56,dsk=33,cw=25,d0=22,nch=24,ub=34,ui=35,ush=USH)
    A(f"""
    s_sub_u32 s25, s25, 4
    s_mul_i32 s22, s21, 3
    s_lshl_b32 s23, s21, 1
    s_add_u32 s23, s23, 16
    s_cmp_lt_u32 s21, 16
    s_cselect_b32 s22, s22, s23
    s_cselect_b32 s24, 3, 2          ; nch
    s_mul_i32 s23, s20, 80
    s_add_u32 s22, s22, s23
    s_add_u32 s31, s22, s25          ; channel
    s_cmp_ge_u32 s25, s24
    s_cbranch_scc1 Lk2_end
    s_mul_i32 s30, s25, {CWAVE}
    s_add_u32 s30, s30, {CVB}
    """)
    A(f"s_setprio 3\nv_and_b32 v{CLANE}, 63, v0")
    A("s_waitcnt lgkmcnt(0)")
    A.srd(8,6,SIZE['ws']); A.srd(16,46,SIZE['Dskip'])
    T=CTMP
    A(f"s_mul_i32 s28, s31, {768*4}\ns_add_u32 s28, s28, {KTG}\nv_lshlrev_b32 v{T+8}, 4, v{CLANE}")
    for i in range(3): A(f"buffer_load_dwordx4 v[{CUS+4*i}:{CUS+4*i+3}], v{T+8}, s[8:11], s28 offen offset:{1024*i}")
    A(f"s_lshl_b32 s29, s31, 1\nv_mov_b32 v{T+9}, s29\nbuffer_load_ushort v{T+10}, v{T+9}, s[16:19], 0 offen")
    conv_load_u(A,S)
    conv_setup(A,S)
    A(f"v_lshlrev_b32 v{T+8}, 4, v{CLANE}\nv_add_u32 v{T+8}, s30, v{T+8}\nv_mov_b32 v{T+11}, 0\nv_mov_b32 v{T+9}, s30\nds_write_b32 v{T+9}, v{T+11} offset:{CK+12}")
    A("s_waitcnt vmcnt(0) lgkmcnt(0)\ns_barrier")
    for i in range(3):
        if i<2: A(f"ds_write_b128 v{T+8}, v[{CUS+4*i}:{CUS+4*i+3}] offset:{CK+16+1024*i}")
        else: A(f"s_mov_b64 s[50:51], exec\ns_mov_b32 exec_lo, -1\ns_mov_b32 exec_hi, 1\nds_write_b128 v{T+8}, v[{CUS+4*i}:{CUS+4*i+3}] offset:{CK+16+1024*i}\ns_mov_b64 exec, s[50:51]")
    A(f"v_lshlrev_b32 v{T+10}, 16, v{T+10}\ns_nop 0\nv_readfirstlane_b32 s33, v{T+10}")
    A("s_waitcnt lgkmcnt(0)")
    if DIAG: A("s_memtime s[64:65]")
    conv_expand(A,S)
    A("s_waitcnt lgkmcnt(0)")
    if DIAG: A("s_memtime s[66:67]")
    A(f"s_setprio {os.environ.get('CPRIO','1')}")
    conv_main(A)
    A("s_nop 7")
    if DIAG: A("s_memtime s[68:69]")
    conv_epilogue(A,S,"sc1")
    A(f"""
    s_waitcnt vmcnt(0)
    s_lshl_b32 s28, s20, 5
    s_add_u32 s28, s28, s21
    s_lshl_b32 s28, s28, 7
    s_lshl_b32 s29, s25, 2
    s_add_u32 s28, s28, s29
    s_add_u32 s28, s28, {FD}
    v_mov_b32 v{T}, 0
    v_mov_b32 v{T+1}, 1
    s_mov_b64 s[50:51], exec
    s_mov_b64 exec, 1
    buffer_store_dword v{T+1}, v{T}, s[8:11], s28 offen sc1
    s_mov_b64 exec, s[50:51]
    """)
    if DIAG:
        A("s_waitcnt vmcnt(0)\ns_memtime s[70:71]\ns_memrealtime s[72:73]\ns_waitcnt lgkmcnt(0)")
        A(f"s_lshl_b32 s27, s2, 11\ns_add_u32 s28, s25, 4\ns_lshl_b32 s28, s28, 8\ns_add_u32 s27, s27, s28\ns_add_u32 s27, s27, {STAMP+(2<<20)}\nv_mov_b32 v9, 0")
        for i,r in enumerate([60,62,64,66,68,70,72]):
            A(f"v_mov_b32 v10, s{r}\nv_mov_b32 v11, s{r+1}\nbuffer_store_dwordx2 v[10:11], v9, s[8:11], s27 offen offset:{8*i}")
    A("Lk2_end:")
    A.end(n,256); A.launch(n,256,448,lds=LDS_K2)
    return XR,VT
if __name__=='__main__':
    A=Asm(); print(build(A),"LDS",LDS_K2)
    open(sys.argv[1],'w').write(A.text("k2"))
```

```python
import os
from asmlib import *
from sched import *
from layout import *
from g32lib import WBASE,WSLOT,W3OFF,STAT,CSL,HSCR
LNRS=1344
LNSCR=8*LNRS
LR=32
LF=72
LS=232
def ln_loads(P,S,lane):
    t=LS
    P.i(f"""
    v_lshrrev_b32 v{t}, 3, v{lane}
    v_and_b32 v{t+1}, 7, v{lane}
    v_mul_u32_u24 v{t+2}, 1280, v{t}
    v_lshl_add_u32 v{t+2}, v{t+1}, 4, v{t+2}
    s_mul_i32 s{S['h0']}, s{S['wg']}, {8*1280}
    """)
    for i in range(10):
        P.vl(f"buffer_load_dwordx4 v[{LR+4*i}:{LR+4*i+3}], v{t+2}, s[{S['srdx']}:{S['srdx']+3}], s{S['h0']} offen offset:{128*i}",'ln')
def ln_compute(P,S,lane,srd,flags):
    t=LS; SM=LS+4; SQ=LS+6
    P.wv('ln')
    P.i(f"v_mov_b32 v{SM}, 0\nv_mov_b32 v{SM+1}, 0\nv_mov_b32 v{SQ}, 0\nv_mov_b32 v{SQ+1}, 0\nv_mov_b32 v{SM+4}, 0\nv_mov_b32 v{SM+5}, 0\nv_mov_b32 v{SQ+4}, 0\nv_mov_b32 v{SQ+5}, 0")
    for k in range(40):
        f=LF+2*k; a=SM+4*(k&1); b=SQ+4*(k&1)
        P.i(f"v_lshlrev_b32 v{f}, 16, v{LR+k}\nv_and_b32 v{f+1}, 0xffff0000, v{LR+k}")
        P.i(f"v_add_f32 v{a}, v{a}, v{f}\nv_add_f32 v{a+1}, v{a+1}, v{f+1}\nv_fmac_f32 v{b}, v{f}, v{f}\nv_fmac_f32 v{b+1}, v{f+1}, v{f+1}",cost=5)
    P.i(f"""
    v_add_f32 v{SM}, v{SM}, v{SM+4}
    v_add_f32 v{SM+1}, v{SM+1}, v{SM+5}
    v_add_f32 v{SQ}, v{SQ}, v{SQ+4}
    v_add_f32 v{SQ+1}, v{SQ+1}, v{SQ+5}
    v_add_f32 v{SM}, v{SM}, v{SM+1}
    v_add_f32 v{SQ}, v{SQ}, v{SQ+1}
    """)
    for mod in ("quad_perm:[1,0,3,2]","quad_perm:[2,3,0,1]","row_half_mirror"):
        P.atom(f"s_nop 1\nv_add_f32_dpp v{SM}, v{SM}, v{SM} {mod} row_mask:0xf bank_mask:0xf\nv_add_f32_dpp v{SQ}, v{SQ}, v{SQ} {mod} row_mask:0xf bank_mask:0xf",cost=16)
    M=SM; R=SQ; NR=LS+12
    P.i(f"""
    v_mul_f32 v{M}, 0x3acccccd, v{M}
    v_mul_f32 v{R}, 0x3acccccd, v{R}
    v_fma_f32 v{R}, -v{M}, v{M}, v{R}
    v_max_f32 v{R}, 0, v{R}
    v_cvt_pk_bf16_f32 v{R}, v{R}, v{R}
    v_cvt_pk_bf16_f32 v{M}, v{M}, v{M}
    v_lshlrev_b32 v{R}, 16, v{R}
    v_lshlrev_b32 v{M}, 16, v{M}
    v_add_f32 v{R}, 0x3727c5ac, v{R}
    v_cvt_pk_bf16_f32 v{R}, v{R}, v{R}
    v_lshlrev_b32 v{R}, 16, v{R}
    v_sqrt_f32 v{R}, v{R}
    s_nop 0
    v_cvt_pk_bf16_f32 v{R}, v{R}, v{R}
    v_lshlrev_b32 v{R}, 16, v{R}
    v_rcp_f32 v{R}, v{R}
    s_nop 0
    v_mov_b32 v{M+1}, v{R}
    v_mul_f32 v{NR}, v{M}, v{R}
    v_sub_f32 v{NR}, 0, v{NR}
    v_mov_b32 v{NR+1}, v{R}
    """)
    sv=S['sv']
    P.i(f"v_lshrrev_b32 v{t}, 3, v{lane}\nv_lshlrev_b32 v{t+1}, 3, v{t}\ns_lshl_b32 s{S['h0']}, s{S['wg']}, 6\ns_add_u32 s{S['h0']}, s{S['h0']}, {STG}")
    P.lock()
    P.atom(f"s_mov_b64 s[{sv}:{sv+1}], exec\ns_mov_b32 exec_lo, 0x01010101\ns_mov_b32 exec_hi, 0x01010101")
    P.vs(f"buffer_store_dwordx2 v[{M}:{M+1}], v{t+1}, s[{srd}:{srd+3}], s{S['h0']} offen {flags}",'pub')
    P.atom(f"s_mov_b64 exec, s[{sv}:{sv+1}]")
    P.unlock()
    P.i(f"""
    v_and_b32 v{t+1}, 7, v{lane}
    v_mul_u32_u24 v{t+2}, {LNRS}, v{t}
    v_lshl_add_u32 v{t+2}, v{t+1}, 4, v{t+2}
    v_add_u32 v{t+2}, s{S['lb']}, v{t+2}
    """)
    for i in range(10):
        for k in range(4):
            f=LF+2*(4*i+k)
            if True:
                P.i(f"v_fma_f32 v{f}, v{f}, v{NR+1}, v{NR}\nv_fma_f32 v{f+1}, v{f+1}, v{NR+1}, v{NR}")
            else:
                P.i(f"v_pk_fma_f32 v[{f}:{f+1}], v[{f}:{f+1}], v[{NR}:{NR+1}], v[{NR}:{NR+1}] op_sel:[0,1,0] op_sel_hi:[1,1,0]",cost=5)
            P.i(f"v_cvt_pk_bf16_f32 v{LR+4*i+k}, v{f}, v{f+1}",cost=5)
        P.l(f"ds_write_b128 v{t+2}, v[{LR+4*i}:{LR+4*i+3}] offset:{128*i}",cost=16)
    P.i(f"""
    v_bfe_u32 v{t}, v{lane}, 2, 2
    v_mul_u32_u24 v{t}, {LNRS}, v{t}
    v_lshrrev_b32 v{t+1}, 4, v{lane}
    v_lshl_add_u32 v{t}, v{t+1}, 5, v{t}
    v_and_b32 v{t+1}, 3, v{lane}
    v_lshl_add_u32 v{t}, v{t+1}, 3, v{t}
    v_add_u32 v{t}, s{S['lb']}, v{t}
    v_lshlrev_b32 v{t+3}, 4, v{lane}
    s_mul_i32 s{S['h0']}, s{S['wg']}, 10240
    s_add_u32 s{S['h0']}, s{S['h0']}, {XT}
    """)
    if os.environ.get('LNWAIT'): P.wl()
    for i2 in range(10):
        for h in range(2):
            P.l(f"ds_read_b64_tr_b16 v[{LF+4*i2+2*h}:{LF+4*i2+2*h+1}], v{t} offset:{128*i2+4*LNRS*h}",('lt',i2))
        if os.environ.get('LNWAIT') and i2%4==3: P.wl()
    for i2 in range(10):
        P.wl(('lt',i2))
        if i2%4==0 and i2: P.i(f"s_add_u32 s{S['h0']}, s{S['h0']}, 4096")
        P.vs(f"buffer_store_dwordx4 v[{LF+4*i2}:{LF+4*i2+3}], v{t+3}, s[{srd}:{srd+3}], s{S['h0']} offen offset:{1024*(i2%4)} {flags}",'pub')
CFR=72
CD=168
CONE=216
CA=220
CF=226
def cs_setup(P,S,lane):
    t=CF
    P.i(f"""
    v_lshrrev_b32 v{t+1}, 4, v{lane}          ; g
    v_bfe_u32 v{t}, v{lane}, 2, 2             ; r
    v_lshl_add_u32 v{t}, v{t+1}, 3, v{t}
    v_mul_u32_u24 v{t}, 192, v{t}
    v_and_b32 v{t+2}, 3, v{lane}
    v_lshl_add_u32 v{t}, v{t+2}, 3, v{t}
    v_add_u32 v{CA}, {WBASE}, v{t}
    """)
    for i in range(4): P.i(f"v_mov_b32 v{CONE+i}, 0x3f803f80")
    for i in range(48): P.i(f"v_mov_b32 v{CD+i}, 0")
CSEQ=[(s,mat,c) for s in range(2) for mat in range(2) for c in range(6)]
def cs_reads(P,S):
    for i,(s,mat,c) in enumerate(CSEQ):
        b=CFR+4*i
        for h in range(2): P.l(f"ds_read_b64_tr_b16 v[{b+2*h}:{b+2*h+1}], v{CA} offset:{mat*W3OFF+6144*s+768*h+32*c}",'cs')
def cs_mfma(P,S):
    P.wl('cs')
    P.lock(); P.atom("s_setprio 1")
    for i,(s,mat,c) in enumerate(CSEQ):
        b=CFR+4*i; d=CD+(mat*6+c)*4
        P.i(f"v_mfma_f32_16x16x32_bf16 v[{d}:{d+3}], v[{b}:{b+3}], v[{CONE}:{CONE+3}], v[{d}:{d+3}]",cost=17)
    P.atom("s_setprio 0"); P.unlock()
def cs_store(P,S,lane,srd,flags):
    sv=S['sv']; t=CF
    P.i(f"""
    s_nop 7
    v_lshrrev_b32 v{t}, 4, v{lane}
    v_lshlrev_b32 v{t}, 4, v{t}
    s_mul_i32 s{S['h0']}, s{S['cb']}, {16*768}
    s_mul_i32 s{S['h1']}, s{S['rb']}, 768
    s_add_u32 s{S['h0']}, s{S['h0']}, s{S['h1']}
    s_add_u32 s{S['h0']}, s{S['h0']}, {PCS}
    """)
    P.lock()
    P.atom(f"s_mov_b64 s[{sv}:{sv+1}], exec\ns_mov_b32 exec_lo, 0x00010001\ns_mov_b32 exec_hi, 0x00010001")
    for mat in range(2):
        for c in range(6):
            d=CD+(mat*6+c)*4
            P.vs(f"buffer_store_dwordx4 v[{d}:{d+3}], v{t}, s[{srd}:{srd+3}], s{S['h0']} offen offset:{mat*384+c*64} {flags}",'pub')
    P.atom(f"s_mov_b64 exec, s[{sv}:{sv+1}]")
    P.unlock()
WA=32
WR=38
WF=40
def w2_setup(P,S,lane):
    t=WF
    P.i(f"s_mov_b32 s{S['h0']}, {magic(10)}")
    for i in range(5):
        P.i(f"""
        v_add_u32 v{t}, {64*i}, v{lane}
        v_mul_hi_u32 v{t+1}, v{t}, s{S['h0']}
        v_mul_u32_u24 v{t+2}, 10, v{t+1}
        v_sub_u32 v{t+2}, v{t}, v{t+2}
        v_mul_u32_u24 v{t+1}, 1280, v{t+1}
        v_lshl_add_u32 v{WA+i}, v{t+2}, 4, v{t+1}
        """)
    P.i(f"""
    v_bfe_u32 v{t}, v{lane}, 5, 1
    v_lshlrev_b32 v{t}, 4, v{t}               ; 16*(g>>1)
    v_bfe_u32 v{t+1}, v{lane}, 4, 1
    v_lshl_add_u32 v{t}, v{t+1}, 2, v{t}      ; +4*(g&1)
    v_bfe_u32 v{t+1}, v{lane}, 2, 2
    v_add_u32 v{t}, v{t}, v{t+1}              ; +r
    v_mul_u32_u24 v{t}, 160, v{t}
    v_and_b32 v{t+1}, 3, v{lane}
    v_mul_u32_u24 v{t+1}, 40, v{t+1}
    v_add_u32 v{t}, v{t}, v{t+1}
    v_add_u32 v{WR}, s{S['lb']}, v{t}
    v_lshlrev_b32 v{WR+1}, 4, v{lane}
    """)
def w2_unit(P,S,k,srdw2,srd,flags):
    h0,h1,h2=S['h0'],S['h1'],S['h2']
    P.i(f"""
    s_mul_i32 s{h0}, s{S['u']}, 3
    s_add_u32 s{h0}, s{h0}, {k}
    s_mul_hi_u32 s{h1}, s{h0}, s{S['m48']}     ; db
    s_mul_i32 s{h2}, s{h1}, 48
    s_sub_u32 s{h0}, s{h0}, s{h2}              ; sigma
    s_mul_i32 s{h2}, s{h0}, {32*1280}
    s_mul_i32 s{S['h3']}, s{h1}, 160
    s_add_u32 s{h2}, s{h2}, s{S['h3']}
    """)
    for i in range(5):
        P.vl(f"s_add_u32 m0, s{S['lb']}, {1024*i}\ns_nop 0\nbuffer_load_dwordx4 v{WA+i}, s[{srdw2}:{srdw2+3}], s{h2} offen lds",('w2',k),cost=53)
    P.i(f"""
    s_mul_i32 s{h1}, s{h1}, {5*48}
    s_add_u32 s{h1}, s{h1}, s{h0}
    s_lshl_b32 s{h1}, s{h1}, 10
    s_add_u32 s{h1}, s{h1}, {W2F}
    """)
    P.wv(('w2',k))
    for dt in range(5):
        for h in range(2):
            P.l(f"ds_read_b64_tr_b16 v[{WF+4*dt+2*h}:{WF+4*dt+2*h+1}], v{WR} offset:{8*dt+1280*h}",('wt',k,dt))
    for dt in range(5):
        P.wl(('wt',k,dt))
        P.vs(f"buffer_store_dwordx4 v[{WF+4*dt}:{WF+4*dt+3}], v{WR+1}, s[{srd}:{srd+3}], s{h1} offen {flags}")
        if dt<4: P.i(f"s_add_u32 s{h1}, s{h1}, {48*1024}")

FV=248
def fl_clear(P,S,srd):
    t=FV
    P.i(f"""
    v_mov_b32 v{t}, 0
    v_mov_b32 v{t+1}, 0
    s_lshr_b32 s{S['h0']}, s{S['wg']}, 4
    s_lshl_b32 s{S['h0']}, s{S['h0']}, 7
    s_and_b32 s{S['h1']}, s{S['wg']}, 15
    s_lshl_b32 s{S['h1']}, s{S['h1']}, 2
    s_add_u32 s{S['h0']}, s{S['h0']}, s{S['h1']}
    s_add_u32 s{S['fst']}, s{S['h0']}, {FST}
    s_lshl_b32 s{S['h0']}, s{S['cb']}, 7
    s_lshl_b32 s{S['h1']}, s{S['rb']}, 2
    s_add_u32 s{S['h0']}, s{S['h0']}, s{S['h1']}
    s_add_u32 s{S['fcs']}, s{S['h0']}, {FCS}
    s_lshl_b32 s{S['h0']}, s{S['x']}, 5
    s_add_u32 s{S['h0']}, s{S['h0']}, s{S['j']}
    s_lshl_b32 s{S['h0']}, s{S['h0']}, 7
    s_add_u32 s{S['h0']}, s{S['h0']}, {FD}
    s_sub_u32 s{S['h1']}, 3, s{S['nch']}
    v_mov_b32 v{t+4}, 0
    v_mov_b32 v{t+5}, 0
    v_mov_b32 v{t+6}, s{S['h1']}
    v_mov_b32 v{t+7}, 0
    """)
    sv=S['sv']
    P.lock()
    P.atom(f"s_mov_b64 s[{sv}:{sv+1}], exec\ns_mov_b64 exec, 1")
    P.vs(f"buffer_store_dword v{t}, v{t+1}, s[{srd}:{srd+3}], s{S['fst']} offen sc1",'clr')
    P.vs(f"buffer_store_dword v{t}, v{t+1}, s[{srd}:{srd+3}], s{S['fcs']} offen sc1",'clr')
    P.vs(f"buffer_store_dwordx4 v[{t+4}:{t+7}], v{t+1}, s[{srd}:{srd+3}], s{S['h0']} offen sc1",'clr')
    P.atom(f"s_mov_b64 exec, s[{sv}:{sv+1}]")
    P.unlock()
def fl_cleared(P,S,srddbg):
    t=FV; sv=S['sv']
    P.wv('clr')
    P.i(f"s_and_b32 s{S['h0']}, s{S['wg']}, 1\ns_lshl_b32 s{S['h0']}, s{S['h0']}, 7\nv_mov_b32 v{t+2}, 1\nv_mov_b32 v{t+1}, 0")
    P.lock()
    P.atom(f"s_mov_b64 s[{sv}:{sv+1}], exec\ns_mov_b64 exec, 1")
    P.vs(f"buffer_atomic_add v{t+2}, v{t+1}, s[{srddbg}:{srddbg+3}], s{S['h0']} offen sc1")
    P.atom(f"s_mov_b64 exec, s[{sv}:{sv+1}]")
    P.unlock()
def fl_set(P,S,srd):
    t=FV; sv=S['sv']
    P.wv('pub')
    P.i(f"v_mov_b32 v{t+2}, 1\nv_mov_b32 v{t+1}, 0")
    P.lock()
    P.atom(f"s_mov_b64 s[{sv}:{sv+1}], exec\ns_mov_b64 exec, 1")
    P.vs(f"buffer_store_dword v{t+2}, v{t+1}, s[{srd}:{srd+3}], s{S['fst']} offen sc1")
    P.vs(f"buffer_store_dword v{t+2}, v{t+1}, s[{srd}:{srd+3}], s{S['fcs']} offen sc1")
    P.atom(f"s_mov_b64 exec, s[{sv}:{sv+1}]")
    P.unlock()
GA=32
def ga_clr_load(P,S,lane,srddbg):
    P.i(f"v_and_b32 v{GA}, 1, v{lane}\nv_lshlrev_b32 v{GA}, 7, v{GA}")
    P.vl(f"buffer_load_dword v{GA+1}, v{GA}, s[{srddbg}:{srddbg+3}], 0 offen sc1",'g1')
def ga_clr_check(P,S,lane,srddbg,srd,uid):
    P.wv('g1')
    P.atom(f"""
    Lgc{uid}:
    v_cmp_eq_u32 vcc, 128, v{GA+1}
    s_nop 1
    s_cmp_eq_u64 vcc, exec
    s_cbranch_scc1 Lgcok{uid}
    s_sleep 2
    buffer_load_dword v{GA+1}, v{GA}, s[{srddbg}:{srddbg+3}], 0 offen sc1
    s_waitcnt vmcnt(0)
    s_branch Lgc{uid}
    Lgcok{uid}:
    """,cost=20)
    P.i(f"""
    v_and_b32 v{GA+2}, 15, v{lane}
    v_lshlrev_b32 v{GA+2}, 2, v{GA+2}
    s_lshl_b32 s{S['h0']}, s{S['rb']}, 7
    s_add_u32 s{S['h0']}, s{S['h0']}, {FST}
    s_lshl_b32 s{S['h1']}, s{S['cb']}, 7
    s_add_u32 s{S['h1']}, s{S['h1']}, {FCS}
    v_add_u32 v{GA+3}, s{S['h0']}, v{GA+2}
    v_add_u32 v{GA+4}, s{S['h1']}, v{GA+2}
    v_mov_b32 v{GA+5}, s{S['h0']}
    v_cmp_gt_u32 vcc, 16, v{lane}
    s_nop 1
    v_cndmask_b32 v{GA+4}, v{GA+4}, v{GA+3}, vcc
    v_cmp_lt_u32 vcc, 25, v{lane}
    s_nop 1
    v_cndmask_b32 v{GA+4}, v{GA+4}, v{GA+5}, vcc
    """)
    P.vl(f"buffer_load_dword v{GA+6}, v{GA+4}, s[{srd}:{srd+3}], 0 offen sc1",'g2')
def ga_flag_check(P,S,lane,srd,uid):
    P.wv('g2')
    P.atom(f"""
    Lgf{uid}:
    v_cmp_eq_u32 vcc, 1, v{GA+6}
    s_nop 1
    s_cmp_eq_u64 vcc, exec
    s_cbranch_scc1 Lgfok{uid}
    s_sleep 2
    buffer_load_dword v{GA+6}, v{GA+4}, s[{srd}:{srd+3}], 0 offen sc1
    s_waitcnt vmcnt(0)
    s_branch Lgf{uid}
    Lgfok{uid}:
    """,cost=20)
    P.i(f"""
    v_lshlrev_b32 v{GA+7}, 4, v{lane}
    s_lshl_b32 s{S['h0']}, s{S['rb']}, 10
    s_add_u32 s{S['h0']}, s{S['h0']}, {STG}
    s_mul_i32 s{S['h1']}, s{S['cb']}, {16*768}
    s_add_u32 s{S['h1']}, s{S['h1']}, {PCS}
    """)
    P.vl(f"buffer_load_dwordx4 v[{GA+8}:{GA+11}], v{GA+7}, s[{srd}:{srd+3}], s{S['h0']} offen sc1",'g3')
    for r in range(10):
        P.vl(f"s_add_u32 s{S['h2']}, s{S['h1']}, {768*r}\nbuffer_load_dwordx4 v[{GA+12+4*r}:{GA+15+4*r}], v{GA+7}, s[{srd}:{srd+3}], s{S['h2']} offen sc1",'g3')
def ga_finish(P,S,lane):
    P.wv('g3')
    b=GA+12
    for r in range(1,10):
        for k in range(4): P.i(f"v_add_f32 v{b+k}, v{b+k}, v{b+4*r+k}",cost=5)
    sv=S['sv']
    P.i(f"v_add_u32 v{GA+6}, {STAT}, v{GA+7}\nv_add_u32 v{GA+5}, {CSL}, v{GA+7}")
    P.l(f"ds_write_b128 v{GA+6}, v[{GA+8}:{GA+11}]")
    P.lock()
    P.atom(f"s_mov_b64 s[{sv}:{sv+1}], exec\ns_mov_b32 exec_lo, -1\ns_mov_b32 exec_hi, 0xffff")
    P.l(f"ds_write_b128 v{GA+5}, v[{b}:{b+3}]")
    P.atom(f"s_mov_b64 exec, s[{sv}:{sv+1}]")
    P.unlock()
    P.wl()
```

```python
import os
from asmlib import *
from sched import *
from layout import *
KTS=768
KROW=272
KSCR=5888
KP=32
KDT=44
KWA=48
KRA=56
KD=68
KAF=84
KBF=116
KV=132
def cmul(P,d,a,b,t):
    P.i(f"""
    v_pk_mul_f32 v[{t}:{t+1}], v[{a}:{a+1}], v[{b}:{b+1}] op_sel:[1,1] op_sel_hi:[1,0] neg_lo:[1,0]
    v_pk_fma_f32 v[{d}:{d+1}], v[{a}:{a+1}], v[{b}:{b+1}], v[{t}:{t+1}] op_sel:[0,0,0] op_sel_hi:[0,1,1]
    """,cost=5)
def edirect(P,dr,di,al,be,p,t):
    P.i(f"""
    v_mul_f32 v{t}, {p}, v{al}
    v_mul_f32 v{t+1}, {p}, v{be}
    v_exp_f32 v{t}, v{t}
    v_fract_f32 v{t+1}, v{t+1}
    v_cos_f32 v{dr}, v{t+1}
    v_sin_f32 v{di}, v{t+1}
    s_nop 0
    v_mul_f32 v{dr}, v{dr}, v{t}
    v_mul_f32 v{di}, v{di}, v{t}
    """)
def kgen_loads(P,S,lane,tmp):
    P.i(f"s_mul_i32 s{S['k0']}, s{S['ch']}, 384\nv_lshlrev_b32 v{tmp}, 1, v{lane}\ns_lshl_b32 s{S['k1']}, s{S['ch']}, 1\nv_mov_b32 v{tmp+1}, s{S['k1']}")
    for g in range(3):
        for k,nm in enumerate(('sA','sI','sR','sC')):
            P.vl(f"buffer_load_ushort v{KP+4*g+k}, v{tmp}, s[{S[nm]}:{S[nm]+3}], s{S['k0']} offen offset:{128*g}",'kp')
    P.vl(f"buffer_load_ushort v{KDT}, v{tmp+1}, s[{S['sD']}:{S['sD']+3}], 0 offen",'kp')
def kgen_setup(P,S,lane):
    t=KV
    P.i(f"v_lshlrev_b32 v{t}, 2, v{lane}\nv_add_u32 v{KWA}, s{S['kb']}, v{t}")
    for c in range(1,6): P.i(f"v_add_u32 v{KWA+c}, {4*KROW*c}, v{KWA}")
    P.i(f"""
    v_and_b32 v{t}, 15, v{lane}
    v_lshrrev_b32 v{t+1}, 4, v{lane}
    v_mul_u32_u24 v{t}, {KROW}, v{t}
    v_lshl_add_u32 v{t+1}, v{t+1}, 4, v{t}
    v_add_u32 v{KRA}, s{S['kb']}, v{t+1}
    """)
    for i in range(16): P.i(f"v_mov_b32 v{KD+i}, 0")
def kgen_dt(P,S):
    d=KDT
    P.wv('kp')
    P.i(f"""
    v_lshlrev_b32 v{d}, 16, v{d}
    v_mul_f32 v{d}, 0x3fb8aa3b, v{d}
    v_exp_f32 v{d}, v{d}
    s_nop 0
    v_cvt_pk_bf16_f32 v{d}, v{d}, v{d}
    v_lshlrev_b32 v{d}, 16, v{d}
    """)
class KG:
    V=KV
    def __init__(s,g,pk=False):
        V=s.V; s.g=g; s.pk=pk
        s.AL,s.BE,s.C=V,V+1,V+2
        s.E1,s.E2,s.E4,s.E8,s.E256,s.E16=V+4,V+8,V+12,V+16,V+20,V+24
        s.buf={'X':[V+28,V+30],'Y':[V+32,V+34],'Z':[V+36,V+38],'W':[V+40,V+42]}
        s.cur={}
        s.TT=[V+44+2*i for i in range(4)]; s.tk=0; s.OUT=V+52; s.k=0; s.held={}
    def T(s): s.tk=(s.tk+1)%4; return s.TT[s.tk]
    def mul(s,P,name,a,E):
        b=s.buf[name]; d=b[0] if s.cur.get(name)!=b[0] else b[1]
        if s.pk: cmul(P,d,a,E,s.T())
        else:
            P.i(f"""
            v_mul_f32 v{d}, v{a}, v{E}
            v_mul_f32 v{d+1}, v{a}, v{E+1}
            v_fmac_f32 v{d}, v{a+1}, v{E+2}
            v_fmac_f32 v{d+1}, v{a+1}, v{E}
            """,cost=5)
        s.cur[name]=d; return d
    def sq(s,P,d,a):
        t=s.T()
        P.i(f"""
        v_mul_f32 v{d}, v{a}, v{a}
        v_mul_f32 v{d+1}, v{a}, v{a+1}
        v_fmac_f32 v{d}, v{a+1}, v{a+2}
        v_add_f32 v{d+1}, v{d+1}, v{d+1}
        v_sub_f32 v{d+2}, 0, v{d+1}
        """,cost=5)
    def pack(s,P,v,r,neg):
        o=s.OUT+(s.k%8); s.k+=1
        P.i(f"v_cvt_pk_bf16_f32 v{o}, v{r}, {'-' if neg else ''}v{r+1}",cost=5); s.held[v]=o
    def wr2(s,P,v):
        a=KWA+(v>>2); o0=(v&3)*68
        if os.environ.get('WPRIO'):
            P.l(f"s_setprio 1\nds_write2_b32 v{a}, v{s.held[v]}, v{s.held[v+1]} offset0:{o0} offset1:{o0+68}\ns_setprio 0",cost=30)
        else:
            P.l(f"ds_write2_b32 v{a}, v{s.held[v]}, v{s.held[v+1]} offset0:{o0} offset1:{o0+68}",cost=30)
    def wr1(s,P,v): P.l(f"ds_write_b32 v{KWA+(v>>2)}, v{s.held[v]} offset:{(v&3)*KROW}",cost=14)
    def setup(s,P):
        AL,BE,C=s.AL,s.BE,s.C; p=KP+4*s.g; d=KDT
        P.i(f"""
        v_lshlrev_b32 v{AL}, 16, v{p}
        v_lshlrev_b32 v{BE}, 16, v{p+1}
        v_mul_f32 v{AL}, 0x3fb8aa3b, v{AL}
        v_lshlrev_b32 v{C}, 16, v{p+2}
        v_exp_f32 v{AL}, v{AL}
        v_lshlrev_b32 v{C+1}, 16, v{p+3}
        v_mul_f32 v{BE}, v{BE}, v{d}
        v_cvt_pk_bf16_f32 v{AL}, v{AL}, v{AL}
        v_mul_f32 v{C}, v{C}, v{d}
        v_lshlrev_b32 v{AL}, 16, v{AL}
        v_mul_f32 v{C+1}, v{C+1}, v{d}
        v_mul_f32 v{AL}, v{AL}, v{d}
        v_mul_f32 v{BE}, 0.15915494, v{BE}
        v_mul_f32 v{AL}, 0xbfb8aa3b, v{AL}
        v_add_f32 v{C}, v{C}, v{C}
        v_add_f32 v{C+1}, v{C+1}, v{C+1}
        """,cost=5)
        for E,p_ in ((s.E1,"1.0"),(s.E256,"0x43800000"),(s.E8,"0x41000000")):
            edirect(P,E,E+1,AL,BE,p_,s.T()); P.i(f"v_sub_f32 v{E+2}, 0, v{E+1}",cost=5)
        s.sq(P,s.E2,s.E1); s.sq(P,s.E16,s.E8); s.sq(P,s.E4,s.E2)
    def rows(s,P):
        C=s.C; E1,E2,E4,E256=s.E1,s.E2,s.E4,s.E256
        pk=lambda v,r: s.pack(P,v,r,True); wr2=lambda v:s.wr2(P,v); M=lambda n,a,E:s.mul(P,n,a,E)
        c=s.cur
        pk(0,C)
        M('X',C,E1); M('Y',C,E256)
        pk(1,c['X']); pk(8,c['Y']); wr2(0)
        M('X',c['X'],E1); M('Z',c['Y'],E2); M('Y',c['Y'],E256)
        pk(2,c['X']); pk(9,c['Z']); pk(12,c['Y']); wr2(8)
        M('X',c['X'],E1); M('Z',c['Z'],E2); M('W',c['Y'],E4); M('Y',c['Y'],E256)
        pk(3,c['X']); pk(13,c['W']); wr2(2); wr2(12); pk(10,c['Z']); pk(14,c['Y'])
        M('X',c['X'],E1); M('Z',c['Z'],E2); M('W',c['Y'],E4); M('Y',c['Y'],E256)
        pk(11,c['Z']); pk(15,c['W']); wr2(10); wr2(14); pk(4,c['X']); pk(16,c['Y'])
        M('X',c['X'],E1); M('Y',c['Y'],E256)
        pk(5,c['X']); pk(17,c['Y']); wr2(4); wr2(16)
        M('X',c['X'],E1); M('Y',c['Y'],E256)
        pk(6,c['X']); pk(18,c['Y'])
        M('X',c['X'],E1); M('Y',c['Y'],E256)
        pk(7,c['X']); pk(19,c['Y']); wr2(6); wr2(18)
        M('Y',c['Y'],E256); pk(20,c['Y']); s.wr1(P,20)
    def readA(s,P):
        for mt in range(2):
            for ks in range(4):
                b=KAF+(mt*4+ks)*4
                P.l(f"ds_read_b128 v[{b}:{b+3}], v{KRA} offset:{16*KROW*mt+64*ks}",('ka',s.g),cost=6)
    def cols(s,P,nh):
        E8,E16=s.E8,s.E16; c=s.cur
        if nh==0:
            o0=s.OUT+(s.k%8); s.k+=1
            P.i(f"v_mov_b32 v{o0}, 0x3f80",cost=5); s.held[0]=o0
            c['X']=E16; c['Z']=E8
        for jp in range(8):
            je=16*nh+2*jp
            if je==0: s.pack(P,1,c['Z'],False); s.wr2(P,0)
            elif je==2: s.mul(P,'Z',c['Z'],E16); s.pack(P,2,c['X'],False); s.pack(P,3,c['Z'],False); s.wr2(P,2)
            else:
                s.mul(P,'X',c['X'],E16); s.mul(P,'Z',c['Z'],E16)
                s.pack(P,je&15,c['X'],False); s.pack(P,(je&15)+1,c['Z'],False); s.wr2(P,je&15)
    def readB(s,P,nh):
        for ks in range(4):
            b=KBF+ks*4
            P.l(f"ds_read_b128 v[{b}:{b+3}], v{KRA} offset:{64*ks}",('kb',s.g,nh),cost=6)
    def mfma(s,P,nh):
        P.wl(('kb',s.g,nh))
        P.lock(); P.atom("s_setprio 1")
        for ks in range(4):
            for mt in range(2):
                a=KAF+(mt*4+ks)*4; b=KBF+ks*4; dd=KD+(mt*2+nh)*4
                P.i(f"v_mfma_f32_16x16x32_bf16 v[{dd}:{dd+3}], v[{a}:{a+3}], v[{b}:{b+3}], v[{dd}:{dd+3}]",cost=17)
        P.atom("s_setprio 0"); P.unlock()
def kgen_groups(P,pk=(False,False,False)):
    G=[KG(g,pk[g]) for g in range(3)]
    G[0].setup(P); G[0].rows(P)
    for g in range(3):
        k=G[g]
        k.readA(P); k.cols(P,0); k.readB(P,0); k.cols(P,1); k.mfma(P,0); k.readB(P,1)
        if g<2:
            G[g+1].setup(P); k.mfma(P,1); G[g+1].rows(P)
        else: k.mfma(P,1)
def kgen_out(P,S,lane,srd,flags=""):
    t=KV
    P.i(f"""
    s_nop 7
    v_and_b32 v{t}, 15, v{lane}
    v_lshrrev_b32 v{t+1}, 4, v{lane}
    v_lshlrev_b32 v{t+2}, 3, v{t}              ; 8jj
    v_cmp_eq_u32 vcc, 1, v{t+1}
    v_add_u32 v{t+3}, 4, v{t+2}
    s_nop 0
    v_cndmask_b32 v{t+2}, v{t+2}, v{t+3}, vcc
    v_mov_b32 v{t+4}, 128
    v_cmp_eq_u32 vcc, 2, v{t+1}
    v_lshlrev_b32 v{t+3}, 2, v{t}
    v_add_u32 v{t+3}, 256, v{t+3}
    v_cndmask_b32 v{t+2}, v{t+2}, v{t+3}, vcc
    v_cndmask_b32 v{t+4}, v{t+4}, 64, vcc
    v_cmp_eq_u32 vcc, 3, v{t+1}
    v_lshlrev_b32 v{t+3}, 1, v{t}
    v_add_u32 v{t+3}, 384, v{t+3}
    v_cndmask_b32 v{t+2}, v{t+2}, v{t+3}, vcc
    v_cndmask_b32 v{t+4}, v{t+4}, 32, vcc
    """)
    P.i(f"""
    v_mov_b32 v{t+5}, 2
    v_mov_b32 v{t+7}, 64
    v_cndmask_b32 v{t+5}, v{t+5}, v{t+7}, vcc
    v_lshlrev_b32 v{t+2}, 2, v{t+2}
    v_add_u32 v{t+2}, s{S['kb']}, v{t+2}       ; addr i=0 (i=1: +4)
    v_lshl_add_u32 v{t+3}, v{t+5}, 2, v{t+2}   ; addr i=2 (i=3: +4)
    v_lshl_add_u32 v{t+6}, v{t+4}, 2, v{t+2}   ; nh=1
    v_lshl_add_u32 v{t+7}, v{t+4}, 2, v{t+3}
    v_lshlrev_b32 v{t+8}, 2, v{t}
    v_add_u32 v{t+8}, s{S['kb']}, v{t+8}
    """)
    for nh in range(2):
        a0,a2=(t+2,t+3) if nh==0 else (t+6,t+7)
        dd=KD+nh*4
        P.l(f"ds_write_b32 v{a0}, v{dd}"); P.l(f"ds_write_b32 v{a0}, v{dd+1} offset:4")
        P.l(f"ds_write_b32 v{a2}, v{dd+2}"); P.l(f"ds_write_b32 v{a2}, v{dd+3} offset:4")
    sv=S['sv']
    P.lock()
    P.atom(f"s_mov_b64 s[{sv}:{sv+1}], exec\ns_mov_b64 exec, 0xffff")
    for nh in range(2):
        dd=KD+8+nh*4
        for i in range(4): P.l(f"ds_write_b32 v{t+8}, v{dd+i} offset:{4*(512+32*i+16*nh)}")
    P.atom(f"s_mov_b64 exec, 0x10000")
    P.l(f"ds_write_b32 v{t+8}, v{KD+8} offset:{4*640}")
    P.atom(f"s_mov_b64 exec, s[{sv}:{sv+1}]")
    P.unlock()
    P.i(f"v_lshlrev_b32 v{t+9}, 4, v{lane}\nv_add_u32 v{t+10}, s{S['kb']}, v{t+9}")
    P.wl()
    for i in range(3): P.l(f"ds_read_b128 v[{KAF+4*i}:{KAF+4*i+3}], v{t+10} offset:{1024*i}",'ko')
    P.i(f"s_mul_i32 s{S['k0']}, s{S['ch']}, {KTS*4}\ns_add_u32 s{S['k0']}, s{S['k0']}, {KTG}")
    P.wl('ko')
    for i in range(3): P.vs(f"buffer_store_dwordx4 v[{KAF+4*i}:{KAF+4*i+3}], v{t+9}, s[{srd}:{srd+3}], s{S['k0']} offen offset:{1024*i} {flags}")
```

```python
class Prog:
    def __init__(s): s.it=[]
    def i(s,t,cost=None):
        for l in t.strip().split('\n'):
            l=l.strip()
            if not l: continue
            c=cost if cost is not None else (8 if l.split()[0] in ('v_exp_f32','v_rcp_f32','v_sin_f32','v_cos_f32','v_sqrt_f32','v_log_f32','v_rsq_f32') else (16 if 'mfma' in l else 4))
            s.it.append(('I',l,c))
    def atom(s,t,cost=None):
        n=len([l for l in t.strip().split('\n') if l.strip()])
        s.it.append(('I',t.strip(),cost if cost is not None else 4*n))
    def vl(s,t,tag,cost=20): s.it.append(('VL',t.strip(),cost,tag))
    def vs(s,t,tag=None,cost=20): s.it.append(('VS',t.strip(),cost,tag))
    def wv(s,tag): s.it.append(('WV',tag,4))
    def l(s,t,tag=None,cost=4): s.it.append(('L',t.strip(),cost,tag))
    def wl(s,tag=None): s.it.append(('WL',tag,4))
    def lock(s): s.it.append(('LOCK',1,0))
    def unlock(s): s.it.append(('LOCK',0,0))
    def ext(s,o): s.it+=o.it
    def cost(s): return sum(x[2] for x in s.it)
class Emit:
    def __init__(s,A): s.A=A; s.vm=[]; s.lg=[]
    def dma(s,t,tag): s.A(t); s.vm.append(('L',tag))
    def wait_vm(s,tag):
        idx=[i for i,(k,t) in enumerate(s.vm) if t==tag]
        assert idx,tag
        idx=max(idx)
        n=sum(1 for k,t in s.vm[idx+1:] if k=='L')
        s.A(f"s_waitcnt vmcnt({min(n,63)})")
    def wait_vm_all(s): s.A("s_waitcnt vmcnt(0)")
    def wait_lg(s,tag):
        if tag is None: s.A("s_waitcnt lgkmcnt(0)"); return
        idx=max(i for i,t in enumerate(s.lg) if t==tag)
        n=len(s.lg)-1-idx
        s.A(f"s_waitcnt lgkmcnt({min(n,15)})")
    def item(s,x):
        k=x[0]
        if k=='I': s.A(x[1])
        elif k=='VL': s.A(x[1]); s.vm.append(('L',x[3]))
        elif k=='VS': s.A(x[1]); s.vm.append(('S',x[3]))
        elif k=='WV':
            if x[1]=='ALL': s.wait_vm_all()
            else: s.wait_vm(x[1])
        elif k=='L': s.A(x[1]); s.lg.append(x[3])
        elif k=='WL': s.wait_lg(x[1])
        elif k in('LOCK','MARK','MUST'): pass
    def run(s,p):
        for x in p.it: s.item(x)

import re
_TRANS=('v_exp_f32','v_rcp_f32','v_sin_f32','v_cos_f32','v_sqrt_f32','v_log_f32','v_rsq_f32')
def _regs(tok):
    tok=tok.strip().lstrip('-').replace('|','')
    m=re.match(r'^abs\((.*)\)$',tok)
    if m: tok=m.group(1)
    m=re.match(r'^([va])\[(\d+):(\d+)\]$',tok)
    if m: return [(m.group(1),i) for i in range(int(m.group(2)),int(m.group(3))+1)]
    m=re.match(r'^([va])(\d+)$',tok)
    if m: return [(m.group(1),int(m.group(2)))]
    m=re.match(r'^s\[(\d+):(\d+)\]$',tok)
    if m: return [('s',i) for i in range(int(m.group(1)),int(m.group(2))+1)]
    m=re.match(r'^s(\d+)$',tok)
    if m: return [('s',int(m.group(1)))]
    if tok=='vcc': return [('vcc',0)]
    if tok=='exec': return [('exec',0)]
    if tok=='m0': return [('m0',0)]
    return []
def parse(text):
    t=text.split(';')[0].strip()
    if '\n' in text.strip(): return (None,set(),set(),False)
    op=t.split()[0]; rest=t[len(op):].strip()
    ops=[x.strip() for x in re.split(r',(?![^\[]*\])',rest)] if rest else []
    if ops: ops[-1]=re.split(r'\s+(?=offset|op_sel|neg_|offen|sc0|sc1|nt|lds|row_|quad_|bank_|bound|clamp|mul:|div:)',ops[-1])[0]
    W=set();R=set()
    if op.startswith('ds_write') or op.startswith('ds_add'):
        for o in ops: R|=set(_regs(o))
        return (op,W,R,True)
    if op.startswith('ds_read'):
        W|=set(_regs(ops[0]))
        for o in ops[1:]: R|=set(_regs(o))
        return (op,W,R,True)
    if op.startswith('v_cmp'):
        W|=set(_regs(ops[0]))
        for o in ops[1:]: R|=set(_regs(o))
        return (op,W,R,True)
    if op.startswith('v_mfma') or op.startswith('v_permlane') or op.startswith('v_readlane') or op.startswith('v_readfirstlane') or op.startswith('v_writelane'):
        return (op,set(),set(),False)
    if op.startswith('v_'):
        W|=set(_regs(ops[0]))
        for o in ops[1:]: R|=set(_regs(o))
        if op.startswith('v_fmac') or op.startswith('v_dot2c'): R|=W
        if op.startswith('v_cndmask') and len(ops)==3: R.add(('vcc',0))
        if '_dpp' in op or 'row_' in t or 'quad_perm' in t: return (op,W,R,False)
        return (op,W,R,True)
    if op=='s_nop': return (op,set(),set(),True)
    return (op,set(),set(),False)
def schedule(P,window=48,lat_valu=2,lat_trans=3):
    out=[]; run=[]
    def flush():
        if not run: return
        n=len(run); info=[parse(x[1]) for x in run]
        keep=[i for i in range(n) if info[i][0]!='s_nop']
        preds={i:set() for i in keep}
        lastw={}; lastr={}; lastlds=None
        for i in keep:
            op,W,R,_=info[i]
            for r in R:
                if r in lastw: preds[i].add((lastw[r],'raw'))
            for r in W:
                if r in lastw: preds[i].add((lastw[r],'waw'))
                for j in lastr.get(r,[]):
                    if j!=i: preds[i].add((j,'war'))
            if op.startswith('ds_'):
                if lastlds is not None: preds[i].add((lastlds,'ord'))
                lastlds=i
            for r in R: lastr.setdefault(r,[]).append(i)
            for r in W: lastw[r]=i; lastr[r]=[]
        done={}; order=[]; rem=list(keep); slot=0
        while rem:
            cand=[i for i in rem[:window] if all(p in done for p,_ in preds[i])]
            def ready_at(i):
                t=0
                for p,k in preds[i]:
                    if k=='raw':
                        op=info[p][0]
                        l=lat_trans if op in _TRANS else lat_valu
                        if op.startswith('v_cmp'): l=3
                        t=max(t,done[p]+l)
                    else: t=max(t,done[p]+1)
                return t
            ok=[i for i in cand if ready_at(i)<=slot]
            if ok: c=ok[0]
            else: c=min(cand,key=lambda i:(ready_at(i),i))
            need=0
            for p,k in preds[c]:
                if k=='raw':
                    op=info[p][0]
                    if op in _TRANS and info[c][0] not in _TRANS: need=max(need,done[p]+2-slot)
                    if op.startswith('v_cmp'): need=max(need,done[p]+3-slot)
            if need>0:
                order.append(('I',f"s_nop {need-1}",4*need)); slot+=need
            order.append(run[c]); done[c]=slot; slot+=1; rem.remove(c)
        out.extend(order); run.clear()
    for x in P.it:
        if x[0] in ('I','L') and parse(x[1])[3]: run.append(x)
        else: flush(); out.append(x)
    flush()
    Q=Prog(); Q.it=out; return Q
```

```python
import sys
from asmlib import *
import gen_k1, gen_k2
A=Asm()
gen_k1.build(A); gen_k2.build(A)
open(sys.argv[1],'w').write(A.text("S2: K1 = GEMM1 + helpers (LN^T, colsum, Kgen, w2 pack) ; K2 = GEMM2 + conv + join"))
```

```python
from asmlib import *
from layout import XT,AT
CP=0; CU=8256; CW3=CU+4608
CACC=0; CUS=32; CT=96; CVT=112; CVU=120; CLANE=121; CTMP=122
CUL=196
def u_loads(A,S):
    t=CUL+16
    A(f"""
    v_mul_u32_u24 v{t}, 10240, v{S['lane']}
    s_lshl_b32 s{S['t0']}, s{S['ch']}, 4
    s_add_u32 s{S['t0']}, s{S['t0']}, {XT}
    """)
    for i in range(4):
        A(f"s_add_u32 s{S['t1']}, s{S['t0']}, {64*10240*i}\nbuffer_load_dwordx4 v[{CUL+4*i}:{CUL+4*i+3}], v{t}, s[{S['srd']}:{S['srd']+3}], s{S['t1']} offen sc1")
def u_store(A,S):
    t=CUL+16
    A(f"""
    v_lshlrev_b32 v{t}, 4, v{S['lane']}
    v_add_u32 v{t}, s{S['base']}, v{t}
    v_lshlrev_b32 v{t+1}, 3, v{S['lane']}
    v_add_u32 v{t+1}, s{S['base']}, v{t+1}
    v_mov_b32 v{t+2}, 0
    v_mov_b32 v{t+3}, 0
    ds_write_b64 v{t+1}, v[{t+2}:{t+3}] offset:{CU}
    """)
    for i in range(4): A(f"ds_write_b128 v{t}, v[{CUL+4*i}:{CUL+4*i+3}] offset:{CU+512+1024*i}")
def conv_setup(A,S):
    T=CTMP
    A(f"""
    v_mov_b32 v{CLANE}, v{S['lane']}
    v_and_b32 v{T}, 15, v{CLANE}
    v_lshrrev_b32 v{T+1}, 4, v{CLANE}
    v_lshlrev_b32 v{T+2}, 2, v{T}
    v_lshlrev_b32 v{T+3}, 5, v{T+1}
    v_sub_u32 v{T+2}, v{T+2}, v{T+3}
    s_add_u32 s{S['t0']}, s{S['base']}, {CP+104}
    v_add_u32 v{CVT}, s{S['t0']}, v{T+2}
    """)
    for q in range(1,8): A(f"v_add_u32 v{CVT+q}, {1024*q}, v{CVT}")
    A(f"""
    v_lshlrev_b32 v{T+2}, 5, v{T}
    v_lshl_add_u32 v{T+2}, v{T+1}, 4, v{T+2}
    s_add_u32 s{S['t0']}, s{S['base']}, {CU+32}
    v_add_u32 v{CVU}, s{S['t0']}, v{T+2}
    """)
def conv_expand(A,S):
    T=CTMP; L=CLANE
    a0=T; a1=T+1; a2=T+2; a3=T+3; pw=T+4
    V=CUS
    A(f"""
    v_lshl_add_u32 v{a0}, v{L}, 4, s{S['kt']}
    v_lshl_add_u32 v{a1}, v{L}, 3, s{S['kt']}
    v_lshl_add_u32 v{a2}, v{L}, 2, s{S['kt']}
    v_lshrrev_b32 v{a3}, 1, v{L}
    v_lshl_add_u32 v{a3}, v{a3}, 2, s{S['kt']}
    v_lshlrev_b32 v{pw}, 4, v{L}
    s_add_u32 s{S['t1']}, s{S['base']}, {CP+64}
    v_add_u32 v{pw}, s{S['t1']}, v{pw}
    v_subrev_u32 v{T+5}, 4, v{a0}
    v_mov_b32 v{T+6}, 0
    v_lshlrev_b32 v{T+7}, 2, v{L}
    v_add_u32 v{T+7}, s{S['base']}, v{T+7}
    v_cmp_gt_u32 vcc, 16, v{L}
    s_and_saveexec_b64 s[{S['sv']}:{S['sv']+1}], vcc
    ds_write_b32 v{T+7}, v{T+6} offset:{CP}
    s_mov_b64 exec, s[{S['sv']}:{S['sv']+1}]
    ds_read_b128 v[{V}:{V+3}], v{a0}
    ds_read_b32 v{V+4}, v{T+5}
    ds_read_b64 v[{V+6}:{V+7}], v{a1} offset:{256*4}
    ds_read_b32 v{V+8}, v{a1} offset:{256*4+8}
    ds_read_b32 v{V+9}, v{a2} offset:{255*4}
    """)
    for k,base in enumerate((384,448)):
        A(f"ds_read2_b32 v[{V+10+2*k}:{V+11+2*k}], v{a2} offset0:0 offset1:1".replace(f"v{a2} offset0:0 offset1:1",f"v{T+8+k} offset0:0 offset1:1") if False else f"ds_read_b32 v{V+10+2*k}, v{a2} offset:{base*4}\nds_read_b32 v{V+11+2*k}, v{a2} offset:{base*4+4}")
    A("s_waitcnt lgkmcnt(4)")
    for k,base in enumerate((512,544,576,608)):
        A(f"ds_read_b32 v{V+14+2*k}, v{a3} offset:{base*4}\nds_read_b32 v{V+15+2*k}, v{a3} offset:{base*4+4}")
    m1=S['m1']; m2=S['m2']; m0=S['m0']
    A(f"""
    v_and_b32 v{T+6}, 1, v{L}
    v_cmp_eq_u32 s[{m1}:{m1+1}], 1, v{T+6}
    v_and_b32 v{T+6}, 3, v{L}
    v_cmp_eq_u32 s[{m2}:{m2+1}], 3, v{T+6}
    v_cmp_eq_u32 s[{m0}:{m0+1}], 0, v{L}
    s_waitcnt lgkmcnt(0)
    """)
    O=V+24
    A(f"""
    v_cvt_pk_bf16_f32 v{O}, v{V}, v{V+4}
    v_cvt_pk_bf16_f32 v{O+1}, v{V+1}, v{V}
    v_cvt_pk_bf16_f32 v{O+2}, v{V+2}, v{V+1}
    v_cvt_pk_bf16_f32 v{O+3}, v{V+3}, v{V+2}
    ds_write_b128 v{pw}, v[{O}:{O+3}] offset:0
    """)
    O2=O+4
    A(f"""
    v_cndmask_b32 v{V+5}, v{V+6}, v{V+9}, s[{m0}:{m0+1}]
    v_cvt_pk_bf16_f32 v{O2+1}, v{V+6}, v{V+6}
    v_cvt_pk_bf16_f32 v{O2+2}, v{V+7}, v{V+6}
    v_cvt_pk_bf16_f32 v{O2+3}, v{V+8}, v{V+7}
    v_cvt_pk_bf16_f32 v{O2}, v{V+6}, v{V+5}
    ds_write_b128 v{pw}, v[{O2}:{O2+3}] offset:1024
    """)
    for k in range(2):
        a=V+10+2*k; b=a+1; o=O+8+4*k
        A(f"""
        v_cndmask_b32 v{V+5}, v{a}, v{b}, s[{m1}:{m1+1}]
        v_cvt_pk_bf16_f32 v{o}, v{a}, v{a}
        v_mov_b32 v{o+1}, v{o}
        v_cvt_pk_bf16_f32 v{o+2}, v{V+5}, v{a}
        v_cvt_pk_bf16_f32 v{o+3}, v{b}, v{V+5}
        ds_write_b128 v{pw}, v[{o}:{o+3}] offset:{2048+1024*k}
        """)
    for k in range(4):
        a=V+14+2*k; b=a+1; o=O+16+4*(k&1)
        A(f"""
        v_cndmask_b32 v{V+4}, v{a}, v{b}, s[{m2}:{m2+1}]
        v_cndmask_b32 v{V+5}, v{a}, v{b}, s[{m1}:{m1+1}]
        v_cvt_pk_bf16_f32 v{o}, v{V+4}, v{a}
        v_cvt_pk_bf16_f32 v{o+1}, v{V+5}, v{V+4}
        v_cvt_pk_bf16_f32 v{o+2}, v{V+5}, v{V+5}
        v_mov_b32 v{o+3}, v{o+2}
        ds_write_b128 v{pw}, v[{o}:{o+3}] offset:{4096+1024*k}
        """)
def conv_main(A):
    seq=[(r,q) for r in range(8) for q in range(8)]
    def tread(i):
        r,q=seq[i]; b=CT+4*(i%4)
        return [f"ds_read2_b32 v[{b}:{b+1}], v{CVT+q} offset0:{32*r+6} offset1:{32*r+4}",
                f"ds_read2_b32 v[{b+2}:{b+3}], v{CVT+q} offset0:{32*r+2} offset1:{32*r}"]
    def uread(r,s):
        b=CUS+32*(r&1)+4*s
        return f"ds_read_b128 v[{b}:{b+3}], v{CVU} offset:{512*s+64*(7-r)}"
    for t in range(8):
        for i in range(4): A(f"v_mov_b32 v{CACC+4*t+i}, 0")
    issued=[]
    def emit(txt,tag): A(txt); issued.append(tag)
    def wait(tag):
        idx=max(i for i,t in enumerate(issued) if t==tag)
        n=len(issued)-1-idx
        A(f"s_waitcnt lgkmcnt({min(n,15)})")
    for s in range(8): emit(uread(0,s),('u',0))
    PF=3
    for i in range(PF):
        for x in tread(i): emit(x,('t',i))
    for i,(r,q) in enumerate(seq):
        wait(('t',i))
        if q==0 and r>0: wait(('u',r))
        b=CT+4*(i%4)
        fill=[]
        if i+PF<64: fill+=[(x,('t',i+PF)) for x in tread(i+PF)]
        if r<7 and q<4: fill+=[(uread(r+1,2*q),('u',r+1)),(uread(r+1,2*q+1),('u',r+1))]
        n=8-q
        for k,t in enumerate(range(q,8)):
            u=CUS+32*(r&1)+4*(t-q)
            A(f"v_mfma_f32_16x16x32_bf16 v[{CACC+4*t}:{CACC+4*t+3}], v[{b}:{b+3}], v[{u}:{u+3}], v[{CACC+4*t}:{CACC+4*t+3}]")
            lo=(len(fill)*k)//n; hi=(len(fill)*(k+1))//n
            for x,tag in fill[lo:hi]: emit(x,tag)
def conv_epilogue(A,S,flags=""):
    T=CTMP
    A(f"""
    v_and_b32 v{T}, 15, v{CLANE}
    v_lshrrev_b32 v{T+1}, 4, v{CLANE}
    v_lshlrev_b32 v{T+2}, 5, v{T}
    v_lshl_add_u32 v{T+2}, v{T+1}, 3, v{T+2}
    s_add_u32 s{S['t0']}, s{S['base']}, {CU+512}
    v_add_u32 v{T+3}, s{S['t0']}, v{T+2}
    s_lshl_b32 s{S['t0']}, s{S['ch']}, 12
    s_add_u32 s{S['t0']}, s{S['t0']}, {AT}
    """)
    for t in range(8): A(f"ds_read_b64 v[{CUS+2*t}:{CUS+2*t+1}], v{T+3} offset:{512*t}")
    A("s_waitcnt lgkmcnt(0)")
    W=CUS+16
    A(f"v_and_b32 v{T+4}, 15, v{CLANE}\nv_lshlrev_b32 v{T+4}, 5, v{T+4}\nv_bfe_u32 v{T+5}, v{CLANE}, 5, 1\nv_lshl_add_u32 v{T+4}, v{T+5}, 4, v{T+4}\nv_bfe_u32 v{T+5}, v{CLANE}, 4, 1\nv_lshl_add_u32 v{T+4}, v{T+5}, 9, v{T+4}")
    for tp in range(4):
        for t in (2*tp,2*tp+1):
            u=CUS+2*t; a=CACC+4*t; w=W+4*(t&1)
            A(f"""
            v_lshlrev_b32 v{w}, 16, v{u}
            v_and_b32 v{w+1}, 0xffff0000, v{u}
            v_lshlrev_b32 v{w+2}, 16, v{u+1}
            v_and_b32 v{w+3}, 0xffff0000, v{u+1}
            v_fmac_f32 v{a}, s{S['dsk']}, v{w}
            v_fmac_f32 v{a+1}, s{S['dsk']}, v{w+1}
            v_fmac_f32 v{a+2}, s{S['dsk']}, v{w+2}
            v_fmac_f32 v{a+3}, s{S['dsk']}, v{w+3}
            """)
        a=CACC+8*tp; b=a+4; o=W+8+4*(tp&1)
        A(f"""
        v_cvt_pk_bf16_f32 v{o}, v{a}, v{a+1}
        v_cvt_pk_bf16_f32 v{o+1}, v{a+2}, v{a+3}
        v_cvt_pk_bf16_f32 v{o+2}, v{b}, v{b+1}
        v_cvt_pk_bf16_f32 v{o+3}, v{b+2}, v{b+3}
        s_nop 1
        v_permlane16_swap_b32 v{o}, v{o+2}
        v_permlane16_swap_b32 v{o+1}, v{o+3}
        s_nop 0
        buffer_store_dwordx4 v[{o}:{o+3}], v{T+4}, s[{S['srd']}:{S['srd']+3}], s{S['t0']} offen offset:{1024*tp} {flags}
        """)
```

```python
import os
from asmlib import *
from sched import *
from layout import *
from g32lib import WBASE,WSLOT,W3OFF,STAT,CSL,HSCR
LNRS=1344
LNSCR=8*LNRS
LR=32
LF=72
LS=232
def ln_loads(P,S,lane):
    t=LS
    P.i(f"""
    v_lshrrev_b32 v{t}, 3, v{lane}
    v_and_b32 v{t+1}, 7, v{lane}
    v_mul_u32_u24 v{t+2}, 1280, v{t}
    v_lshl_add_u32 v{t+2}, v{t+1}, 4, v{t+2}
    s_mul_i32 s{S['h0']}, s{S['wg']}, {8*1280}
    """)
    for i in range(10):
        P.vl(f"buffer_load_dwordx4 v[{LR+4*i}:{LR+4*i+3}], v{t+2}, s[{S['srdx']}:{S['srdx']+3}], s{S['h0']} offen offset:{128*i}",'ln',cost=30)
def ln_stats(P,S,lane,srd,flags,pk=True):
    t=LS; SM=LS+4; SQ=LS+6
    P.wv('ln')
    P.i(f"v_mov_b32 v{SM}, 0\nv_mov_b32 v{SM+1}, 0\nv_mov_b32 v{SQ}, 0\nv_mov_b32 v{SQ+1}, 0\nv_mov_b32 v{SM+4}, 0\nv_mov_b32 v{SM+5}, 0\nv_mov_b32 v{SQ+4}, 0\nv_mov_b32 v{SQ+5}, 0")
    for k in range(40):
        f=LF+2*k; a=SM+4*(k&1); b=SQ+4*(k&1)
        P.i(f"v_lshlrev_b32 v{f}, 16, v{LR+k}\nv_and_b32 v{f+1}, 0xffff0000, v{LR+k}")
        if pk:
            P.i(f"v_pk_add_f32 v[{a}:{a+1}], v[{a}:{a+1}], v[{f}:{f+1}]",cost=5)
            P.i(f"v_pk_fma_f32 v[{b}:{b+1}], v[{f}:{f+1}], v[{f}:{f+1}], v[{b}:{b+1}]",cost=5)
        else:
            P.i(f"v_add_f32 v{a}, v{a}, v{f}\nv_add_f32 v{a+1}, v{a+1}, v{f+1}\nv_fmac_f32 v{b}, v{f}, v{f}\nv_fmac_f32 v{b+1}, v{f+1}, v{f+1}",cost=6)
    P.i(f"""
    v_add_f32 v{SM}, v{SM}, v{SM+4}
    v_add_f32 v{SM+1}, v{SM+1}, v{SM+5}
    v_add_f32 v{SQ}, v{SQ}, v{SQ+4}
    v_add_f32 v{SQ+1}, v{SQ+1}, v{SQ+5}
    v_add_f32 v{SM}, v{SM}, v{SM+1}
    v_add_f32 v{SQ}, v{SQ}, v{SQ+1}
    """)
    for mod in ("quad_perm:[1,0,3,2]","quad_perm:[2,3,0,1]","row_half_mirror"):
        P.atom(f"s_nop 1\nv_add_f32_dpp v{SM}, v{SM}, v{SM} {mod} row_mask:0xf bank_mask:0xf\nv_add_f32_dpp v{SQ}, v{SQ}, v{SQ} {mod} row_mask:0xf bank_mask:0xf",cost=16)
    M=SM; R=SQ; NR=LS+12
    P.i(f"""
    v_mul_f32 v{M}, 0x3acccccd, v{M}
    v_mul_f32 v{R}, 0x3acccccd, v{R}
    v_fma_f32 v{R}, -v{M}, v{M}, v{R}
    v_max_f32 v{R}, 0, v{R}
    v_cvt_pk_bf16_f32 v{R}, v{R}, v{R}
    v_cvt_pk_bf16_f32 v{M}, v{M}, v{M}
    v_lshlrev_b32 v{R}, 16, v{R}
    v_lshlrev_b32 v{M}, 16, v{M}
    v_add_f32 v{R}, 0x3727c5ac, v{R}
    v_cvt_pk_bf16_f32 v{R}, v{R}, v{R}
    v_lshlrev_b32 v{R}, 16, v{R}
    v_sqrt_f32 v{R}, v{R}
    s_nop 0
    v_cvt_pk_bf16_f32 v{R}, v{R}, v{R}
    v_lshlrev_b32 v{R}, 16, v{R}
    v_rcp_f32 v{R}, v{R}
    s_nop 0
    v_mov_b32 v{M+1}, v{R}
    v_mul_f32 v{NR}, v{M}, v{R}
    v_sub_f32 v{NR}, 0, v{NR}
    v_mov_b32 v{NR+1}, v{R}
    """)
    sv=S['sv']
    P.i(f"v_lshrrev_b32 v{t}, 3, v{lane}\nv_lshlrev_b32 v{t+1}, 3, v{t}\ns_lshl_b32 s{S['h0']}, s{S['wg']}, 6\ns_add_u32 s{S['h0']}, s{S['h0']}, {STG}")
    P.lock()
    P.atom(f"s_mov_b64 s[{sv}:{sv+1}], exec\ns_mov_b32 exec_lo, 0x01010101\ns_mov_b32 exec_hi, 0x01010101")
    P.vs(f"buffer_store_dwordx2 v[{M}:{M+1}], v{t+1}, s[{srd}:{srd+3}], s{S['h0']} offen {flags}",'pub')
    P.atom(f"s_mov_b64 exec, s[{sv}:{sv+1}]")
    P.unlock()
def ln_norm(P,S,lane,srd,flags):
    t=LS; NR=LS+12
    P.i(f"""
    v_lshrrev_b32 v{t}, 3, v{lane}
    v_and_b32 v{t+1}, 7, v{lane}
    v_mul_u32_u24 v{t+2}, {LNRS}, v{t}
    v_lshl_add_u32 v{t+2}, v{t+1}, 4, v{t+2}
    v_add_u32 v{t+2}, s{S['lb']}, v{t+2}
    """)
    for i in range(10):
        for k in range(4):
            f=LF+2*(4*i+k)
            if True:
                P.i(f"v_fma_f32 v{f}, v{f}, v{NR+1}, v{NR}\nv_fma_f32 v{f+1}, v{f+1}, v{NR+1}, v{NR}")
            else:
                P.i(f"v_pk_fma_f32 v[{f}:{f+1}], v[{f}:{f+1}], v[{NR}:{NR+1}], v[{NR}:{NR+1}] op_sel:[0,1,0] op_sel_hi:[1,1,0]",cost=5)
            P.i(f"v_cvt_pk_bf16_f32 v{LR+4*i+k}, v{f}, v{f+1}",cost=5)
        P.l(f"ds_write_b128 v{t+2}, v[{LR+4*i}:{LR+4*i+3}] offset:{128*i}",cost=30)
    P.i(f"""
    v_bfe_u32 v{t}, v{lane}, 2, 2
    v_mul_u32_u24 v{t}, {LNRS}, v{t}
    v_lshrrev_b32 v{t+1}, 4, v{lane}
    v_lshl_add_u32 v{t}, v{t+1}, 5, v{t}
    v_and_b32 v{t+1}, 3, v{lane}
    v_lshl_add_u32 v{t}, v{t+1}, 3, v{t}
    v_add_u32 v{t}, s{S['lb']}, v{t}
    v_lshlrev_b32 v{t+3}, 4, v{lane}
    s_mul_i32 s{S['h0']}, s{S['wg']}, 10240
    s_add_u32 s{S['h0']}, s{S['h0']}, {XT}
    """)
    if os.environ.get('LNWAIT'): P.wl()
    for i2 in range(10):
        for h in range(2):
            P.l(f"ds_read_b64_tr_b16 v[{LF+4*i2+2*h}:{LF+4*i2+2*h+1}], v{t} offset:{128*i2+4*LNRS*h}",('lt',i2))
        if os.environ.get('LNWAIT') and i2%4==3: P.wl()
    for i2 in range(10):
        P.wl(('lt',i2))
        if i2%4==0 and i2: P.i(f"s_add_u32 s{S['h0']}, s{S['h0']}, 4096")
        P.vs(f"buffer_store_dwordx4 v[{LF+4*i2}:{LF+4*i2+3}], v{t+3}, s[{srd}:{srd+3}], s{S['h0']} offen offset:{1024*(i2%4)} {flags}",'pub',cost=50)
CFR=152
CD=32
CONE=216
CA=220
CF=226
def CDR(i): return 32+4*i if i<10 else 200+4*(i-10)
def cs_setup(P,S,lane):
    t=CF
    P.i(f"""
    v_lshrrev_b32 v{t+1}, 4, v{lane}          ; g
    v_bfe_u32 v{t}, v{lane}, 2, 2             ; r
    v_lshl_add_u32 v{t}, v{t+1}, 3, v{t}
    v_mul_u32_u24 v{t}, 192, v{t}
    v_and_b32 v{t+2}, 3, v{lane}
    v_lshl_add_u32 v{t}, v{t+2}, 3, v{t}
    v_add_u32 v{CA}, {WBASE}, v{t}
    """)
    for i in range(4): P.i(f"v_mov_b32 v{CONE+i}, 0x3f803f80")

CSEQ=[(mat,c) for mat in range(2) for c in range(6)]
CFR2=208
def cs_reads(P,S,s):
    for i,(mat,c) in enumerate(CSEQ):
        b=CFR+4*i
        for h in range(2): P.l(f"ds_read_b64_tr_b16 v[{b+2*h}:{b+2*h+1}], v{CA} offset:{mat*W3OFF+6144*s+768*h+32*c}",('cs',s),cost=8)
def cs_mfma(P,S,s):
    P.wl(('cs',s))
    P.lock(); P.atom("s_setprio 1")
    for i,(mat,c) in enumerate(CSEQ):
        b=CFR+4*i; d=CDR(i)
        src=f"v[{d}:{d+3}]" if s else "0"
        P.i(f"v_mfma_f32_16x16x32_bf16 v[{d}:{d+3}], v[{b}:{b+3}], v[{CONE}:{CONE+3}], {src}",cost=17)
    P.atom("s_setprio 0"); P.unlock()
def cs_store(P,S,lane,srd,flags):
    sv=S['sv']; t=CF
    P.i(f"""
    s_nop 7
    v_lshrrev_b32 v{t}, 4, v{lane}
    v_lshlrev_b32 v{t}, 4, v{t}
    v_add_u32 v{t}, s{S['lb']}, v{t}
    v_lshlrev_b32 v{t+1}, 4, v{lane}
    v_add_u32 v{t+2}, s{S['lb']}, v{t+1}
    s_mul_i32 s{S['h0']}, s{S['cb']}, {16*768}
    s_mul_i32 s{S['h1']}, s{S['rb']}, 768
    s_add_u32 s{S['h0']}, s{S['h0']}, s{S['h1']}
    s_add_u32 s{S['h0']}, s{S['h0']}, {PCS}
    """)
    P.lock()
    P.atom(f"s_mov_b64 s[{sv}:{sv+1}], exec\ns_mov_b32 exec_lo, 0x00010001\ns_mov_b32 exec_hi, 0x00010001")
    for i,(mat,c) in enumerate(CSEQ):
        d=CDR(i)
        P.l(f"ds_write_b128 v{t}, v[{d}:{d+3}] offset:{mat*384+c*64}",cost=12)
    P.atom(f"s_mov_b32 exec_lo, -1\ns_mov_b32 exec_hi, 0xffff")
    P.l(f"ds_read_b128 v[{CFR}:{CFR+3}], v{t+2}",'cso')
    P.wl('cso')
    P.vs(f"buffer_store_dwordx4 v[{CFR}:{CFR+3}], v{t+1}, s[{srd}:{srd+3}], s{S['h0']} offen {flags}",'pub',cost=50)
    P.atom(f"s_mov_b64 exec, s[{sv}:{sv+1}]")
    P.unlock()
WA=32
WR=38
WF=40
def w2_setup(P,S,lane):
    t=WF
    P.i(f"s_mov_b32 s{S['h0']}, {magic(10)}")
    for i in range(5):
        P.i(f"""
        v_add_u32 v{t}, {64*i}, v{lane}
        v_mul_hi_u32 v{t+1}, v{t}, s{S['h0']}
        v_mul_u32_u24 v{t+2}, 10, v{t+1}
        v_sub_u32 v{t+2}, v{t}, v{t+2}
        v_mul_u32_u24 v{t+1}, 1280, v{t+1}
        v_lshl_add_u32 v{WA+i}, v{t+2}, 4, v{t+1}
        """)
    P.i(f"""
    v_bfe_u32 v{t}, v{lane}, 5, 1
    v_lshlrev_b32 v{t}, 4, v{t}               ; 16*(g>>1)
    v_bfe_u32 v{t+1}, v{lane}, 4, 1
    v_lshl_add_u32 v{t}, v{t+1}, 2, v{t}      ; +4*(g&1)
    v_bfe_u32 v{t+1}, v{lane}, 2, 2
    v_add_u32 v{t}, v{t}, v{t+1}              ; +r
    v_mul_u32_u24 v{t}, 160, v{t}
    v_and_b32 v{t+1}, 3, v{lane}
    v_mul_u32_u24 v{t+1}, 40, v{t+1}
    v_add_u32 v{t}, v{t}, v{t+1}
    v_add_u32 v{WR}, s{S['lb']}, v{t}
    v_lshlrev_b32 v{WR+1}, 4, v{lane}
    """)
def w2_unit(P,S,k,srdw2,srd,flags):
    h0,h1,h2=S['h0'],S['h1'],S['h2']
    P.i(f"""
    s_mul_i32 s{h0}, s{S['u']}, 3
    s_add_u32 s{h0}, s{h0}, {k}
    s_mul_hi_u32 s{h1}, s{h0}, s{S['m48']}     ; db
    s_mul_i32 s{h2}, s{h1}, 48
    s_sub_u32 s{h0}, s{h0}, s{h2}              ; sigma
    s_mul_i32 s{h2}, s{h0}, {32*1280}
    s_mul_i32 s{S['h3']}, s{h1}, 160
    s_add_u32 s{h2}, s{h2}, s{S['h3']}
    """)
    for i in range(5):
        P.vl(f"s_add_u32 m0, s{S['lb']}, {1024*i}\ns_nop 0\nbuffer_load_dwordx4 v{WA+i}, s[{srdw2}:{srdw2+3}], s{h2} offen lds",('w2',k),cost=53)
    P.i(f"""
    s_mul_i32 s{h1}, s{h1}, {5*48}
    s_add_u32 s{h1}, s{h1}, s{h0}
    s_lshl_b32 s{h1}, s{h1}, 10
    s_add_u32 s{h1}, s{h1}, {W2F}
    """)
    P.wv(('w2',k))
    for dt in range(5):
        for h in range(2):
            P.l(f"ds_read_b64_tr_b16 v[{WF+4*dt+2*h}:{WF+4*dt+2*h+1}], v{WR} offset:{8*dt+1280*h}",('wt',k,dt))
    for dt in range(5):
        P.wl(('wt',k,dt))
        P.vs(f"buffer_store_dwordx4 v[{WF+4*dt}:{WF+4*dt+3}], v{WR+1}, s[{srd}:{srd+3}], s{h1} offen {flags}")
        if dt<4: P.i(f"s_add_u32 s{h1}, s{h1}, {48*1024}")

FV=248
def fl_clear(P,S,srd):
    t=FV
    P.i(f"""
    v_mov_b32 v{t}, 0
    v_mov_b32 v{t+1}, 0
    s_lshr_b32 s{S['h0']}, s{S['wg']}, 4
    s_lshl_b32 s{S['h0']}, s{S['h0']}, 7
    s_and_b32 s{S['h1']}, s{S['wg']}, 15
    s_lshl_b32 s{S['h1']}, s{S['h1']}, 2
    s_add_u32 s{S['h0']}, s{S['h0']}, s{S['h1']}
    s_add_u32 s{S['fst']}, s{S['h0']}, {FST}
    s_lshl_b32 s{S['h0']}, s{S['cb']}, 7
    s_lshl_b32 s{S['h1']}, s{S['rb']}, 2
    s_add_u32 s{S['h0']}, s{S['h0']}, s{S['h1']}
    s_add_u32 s{S['fcs']}, s{S['h0']}, {FCS}
    s_lshl_b32 s{S['h0']}, s{S['x']}, 5
    s_add_u32 s{S['h0']}, s{S['h0']}, s{S['j']}
    s_lshl_b32 s{S['h0']}, s{S['h0']}, 7
    s_add_u32 s{S['h0']}, s{S['h0']}, {FD}
    s_sub_u32 s{S['h1']}, 3, s{S['nch']}
    v_mov_b32 v{t+4}, 0
    v_mov_b32 v{t+5}, 0
    v_mov_b32 v{t+6}, s{S['h1']}
    v_mov_b32 v{t+7}, 0
    """)
    sv=S['sv']
    P.lock()
    P.atom(f"s_mov_b64 s[{sv}:{sv+1}], exec\ns_mov_b64 exec, 1")
    P.vs(f"buffer_store_dword v{t}, v{t+1}, s[{srd}:{srd+3}], s{S['fst']} offen sc1",'clr')
    P.vs(f"buffer_store_dword v{t}, v{t+1}, s[{srd}:{srd+3}], s{S['fcs']} offen sc1",'clr')
    P.vs(f"buffer_store_dwordx4 v[{t+4}:{t+7}], v{t+1}, s[{srd}:{srd+3}], s{S['h0']} offen sc1",'clr')
    P.atom(f"s_mov_b64 exec, s[{sv}:{sv+1}]")
    P.unlock()
def fl_cleared(P,S,srddbg):
    t=FV; sv=S['sv']
    P.wv('clr')
    P.i(f"s_and_b32 s{S['h0']}, s{S['wg']}, 1\ns_lshl_b32 s{S['h0']}, s{S['h0']}, 7\nv_mov_b32 v{t+2}, 1\nv_mov_b32 v{t+1}, 0")
    P.lock()
    P.atom(f"s_mov_b64 s[{sv}:{sv+1}], exec\ns_mov_b64 exec, 1")
    P.vs(f"buffer_atomic_add v{t+2}, v{t+1}, s[{srddbg}:{srddbg+3}], s{S['h0']} offen sc1")
    P.atom(f"s_mov_b64 exec, s[{sv}:{sv+1}]")
    P.unlock()
def fl_set(P,S,srd):
    t=FV; sv=S['sv']
    P.wv('pub')
    P.i(f"v_mov_b32 v{t+2}, 1\nv_mov_b32 v{t+1}, 0")
    P.lock()
    P.atom(f"s_mov_b64 s[{sv}:{sv+1}], exec\ns_mov_b64 exec, 1")
    P.vs(f"buffer_store_dword v{t+2}, v{t+1}, s[{srd}:{srd+3}], s{S['fst']} offen sc1")
    P.vs(f"buffer_store_dword v{t+2}, v{t+1}, s[{srd}:{srd+3}], s{S['fcs']} offen sc1")
    P.atom(f"s_mov_b64 exec, s[{sv}:{sv+1}]")
    P.unlock()
GA=32
def ga_clr_load(P,S,lane,srddbg):
    P.i(f"v_and_b32 v{GA}, 1, v{lane}\nv_lshlrev_b32 v{GA}, 7, v{GA}")
    P.vl(f"buffer_load_dword v{GA+1}, v{GA}, s[{srddbg}:{srddbg+3}], 0 offen sc1",'g1')
def ga_clr_check(P,S,lane,srddbg,srd,uid):
    P.wv('g1')
    P.atom(f"""
    Lgc{uid}:
    v_cmp_eq_u32 vcc, 128, v{GA+1}
    s_nop 1
    s_cmp_eq_u64 vcc, exec
    s_cbranch_scc1 Lgcok{uid}
    s_sleep 2
    buffer_load_dword v{GA+1}, v{GA}, s[{srddbg}:{srddbg+3}], 0 offen sc1
    s_waitcnt vmcnt(0)
    s_branch Lgc{uid}
    Lgcok{uid}:
    """,cost=20)
    P.i(f"""
    v_and_b32 v{GA+2}, 15, v{lane}
    v_lshlrev_b32 v{GA+2}, 2, v{GA+2}
    s_lshl_b32 s{S['h0']}, s{S['rb']}, 7
    s_add_u32 s{S['h0']}, s{S['h0']}, {FST}
    s_lshl_b32 s{S['h1']}, s{S['cb']}, 7
    s_add_u32 s{S['h1']}, s{S['h1']}, {FCS}
    v_add_u32 v{GA+3}, s{S['h0']}, v{GA+2}
    v_add_u32 v{GA+4}, s{S['h1']}, v{GA+2}
    v_mov_b32 v{GA+5}, s{S['h0']}
    v_cmp_gt_u32 vcc, 16, v{lane}
    s_nop 1
    v_cndmask_b32 v{GA+4}, v{GA+4}, v{GA+3}, vcc
    v_cmp_lt_u32 vcc, 25, v{lane}
    s_nop 1
    v_cndmask_b32 v{GA+4}, v{GA+4}, v{GA+5}, vcc
    """)
    P.vl(f"buffer_load_dword v{GA+6}, v{GA+4}, s[{srd}:{srd+3}], 0 offen sc1",'g2')
def ga_flag_check(P,S,lane,srd,uid):
    P.wv('g2')
    P.atom(f"""
    Lgf{uid}:
    v_cmp_eq_u32 vcc, 1, v{GA+6}
    s_nop 1
    s_cmp_eq_u64 vcc, exec
    s_cbranch_scc1 Lgfok{uid}
    s_sleep 2
    buffer_load_dword v{GA+6}, v{GA+4}, s[{srd}:{srd+3}], 0 offen sc1
    s_waitcnt vmcnt(0)
    s_branch Lgf{uid}
    Lgfok{uid}:
    """,cost=20)
    P.i(f"""
    v_lshlrev_b32 v{GA+7}, 4, v{lane}
    s_lshl_b32 s{S['h0']}, s{S['rb']}, 10
    s_add_u32 s{S['h0']}, s{S['h0']}, {STG}
    s_mul_i32 s{S['h1']}, s{S['cb']}, {16*768}
    s_add_u32 s{S['h1']}, s{S['h1']}, {PCS}
    """)
    P.vl(f"buffer_load_dwordx4 v[{GA+8}:{GA+11}], v{GA+7}, s[{srd}:{srd+3}], s{S['h0']} offen sc1",'g3')
    for r in range(10):
        P.vl(f"s_add_u32 s{S['h2']}, s{S['h1']}, {768*r}\nbuffer_load_dwordx4 v[{GA+12+4*r}:{GA+15+4*r}], v{GA+7}, s[{srd}:{srd+3}], s{S['h2']} offen sc1",'g3')
def ga_finish(P,S,lane):
    P.wv('g3')
    b=GA+12
    for r in range(1,10):
        for k in range(4): P.i(f"v_add_f32 v{b+k}, v{b+k}, v{b+4*r+k}",cost=5)
    sv=S['sv']
    P.i(f"v_add_u32 v{GA+6}, {STAT}, v{GA+7}\nv_add_u32 v{GA+5}, {CSL}, v{GA+7}")
    P.l(f"ds_write_b128 v{GA+6}, v[{GA+8}:{GA+11}]")
    P.lock()
    P.atom(f"s_mov_b64 s[{sv}:{sv+1}], exec\ns_mov_b32 exec_lo, -1\ns_mov_b32 exec_hi, 0xffff")
    P.l(f"ds_write_b128 v{GA+5}, v[{b}:{b+3}]")
    P.atom(f"s_mov_b64 exec, s[{sv}:{sv+1}]")
    P.unlock()
    P.wl()

SPIN=1<<17
def s3_clear(P,S,srd):
    t=FV
    P.i(f"""
    v_mov_b32 v{t}, 0
    v_mov_b32 v{t+1}, 0
    s_lshl_b32 s{S['h0']}, s{S['wg']}, 2
    s_add_u32 s{S['fst']}, s{S['h0']}, {FL}
    s_sub_u32 s{S['h0']}, s{S['j']}, 16
    s_lshl_b32 s{S['h0']}, s{S['h0']}, 3
    s_add_u32 s{S['h0']}, s{S['h0']}, s{S['x']}
    s_and_b32 s{S['h1']}, s{S['wg']}, 127
    s_add_u32 s{S['h1']}, s{S['h1']}, 128
    """)
    P.atom(f"s_cmp_ge_u32 s{S['j']}, 16\ns_cselect_b32 s{S['h0']}, s{S['h0']}, s{S['h1']}")
    P.i(f"""
    s_lshl_b32 s{S['h0']}, s{S['h0']}, 2
    s_add_u32 s{S['h2']}, s{S['h0']}, {FW}
    s_lshl_b32 s{S['h0']}, s{S['rb']}, 4
    s_add_u32 s{S['h0']}, s{S['h0']}, s{S['cb']}
    s_lshl_b32 s{S['h0']}, s{S['h0']}, 7
    s_add_u32 s{S['h3']}, s{S['h0']}, {FH}
    s_lshl_b32 s{S['h0']}, s{S['x']}, 5
    s_add_u32 s{S['h0']}, s{S['h0']}, s{S['j']}
    s_lshl_b32 s{S['h0']}, s{S['h0']}, 7
    s_add_u32 s{S['h0']}, s{S['h0']}, {FD}
    s_sub_u32 s{S['h1']}, 3, s{S['nch']}
    v_mov_b32 v{t+4}, 0
    v_mov_b32 v{t+5}, 0
    v_mov_b32 v{t+6}, s{S['h1']}
    v_mov_b32 v{t+7}, 0
    """)
    sv=S['sv']
    P.lock()
    P.atom(f"s_mov_b64 s[{sv}:{sv+1}], exec\ns_mov_b64 exec, 1")
    for r in ('fst','h2','h3'):
        P.vs(f"buffer_store_dword v{t}, v{t+1}, s[{srd}:{srd+3}], s{S[r]} offen sc1",'clr',cost=30)
    P.vs(f"buffer_store_dwordx4 v[{t+4}:{t+7}], v{t+1}, s[{srd}:{srd+3}], s{S['h0']} offen sc1",'clr',cost=30)
    P.atom(f"s_mov_b64 exec, s[{sv}:{sv+1}]")
    P.unlock()
def s3_set_fl(P,S,srd):
    t=FV; sv=S['sv']
    P.wv('pub')
    P.i(f"v_mov_b32 v{t+2}, 1\nv_mov_b32 v{t+1}, 0")
    P.lock()
    P.atom(f"s_mov_b64 s[{sv}:{sv+1}], exec\ns_mov_b64 exec, 1")
    P.vs(f"buffer_store_dword v{t+2}, v{t+1}, s[{srd}:{srd+3}], s{S['fst']} offen sc1",cost=30)
    P.atom(f"s_mov_b64 exec, s[{sv}:{sv+1}]")
    P.unlock()
def s3_set_fw(P,S,srd,t):
    sv=S['sv']
    P.wv('ALL')
    P.i(f"v_mov_b32 v{t}, 1\nv_mov_b32 v{t+1}, 0\ns_lshl_b32 s{S['h0']}, s{S['u']}, 2\ns_add_u32 s{S['h0']}, s{S['h0']}, {FW}")
    P.lock()
    P.atom(f"s_mov_b64 s[{sv}:{sv+1}], exec\ns_mov_b64 exec, 1")
    P.vs(f"buffer_store_dword v{t}, v{t+1}, s[{srd}:{srd+3}], s{S['h0']} offen sc1",cost=30)
    P.atom(f"s_mov_b64 exec, s[{sv}:{sv+1}]")
    P.unlock()
def spin(uid,load,check,S,endlab):
    return f"""
    s_mov_b32 s{S['spin']}, 0
    Lsp{uid}:
    {check}
    s_nop 1
    s_cmp_eq_u64 vcc, exec
    s_cbranch_scc1 Lspok{uid}
    s_add_u32 s{S['spin']}, s{S['spin']}, 1
    s_cmp_gt_u32 s{S['spin']}, {SPIN}
    s_cbranch_scc1 {endlab}
    s_sleep 1
    {load}
    s_waitcnt vmcnt(0)
    s_branch Lsp{uid}
    Lspok{uid}:
    """
def s3_ga_clr_load(P,S,lane,srddbg):
    P.i(f"v_and_b32 v{GA}, 1, v{lane}\nv_lshlrev_b32 v{GA}, 7, v{GA}")
    P.vl(f"buffer_load_dword v{GA+1}, v{GA}, s[{srddbg}:{srddbg+3}], 0 offen sc1",'g1',cost=30)
def s3_ga_clr_check(P,S,lane,srddbg,srd,endlab):
    P.wv('g1')
    P.atom(spin('clr',f"buffer_load_dword v{GA+1}, v{GA}, s[{srddbg}:{srddbg+3}], 0 offen sc1",f"v_cmp_eq_u32 vcc, 128, v{GA+1}",S,endlab),cost=30)
    P.i(f"""
    v_lshlrev_b32 v{GA+2}, 4, v{lane}
    v_and_b32 v{GA+3}, 15, v{lane}
    v_lshlrev_b32 v{GA+3}, 2, v{GA+3}
    s_lshl_b32 s{S['h0']}, s{S['db']}, 6
    s_add_u32 s{S['h3']}, s{S['h0']}, {FW}
    s_mov_b32 s{S['h2']}, {FL}
    """)
    P.vl(f"buffer_load_dwordx4 v[{GA+4}:{GA+7}], v{GA+2}, s[{srd}:{srd+3}], s{S['h2']} offen sc1",'g2',cost=30)
    P.vl(f"buffer_load_dword v{GA+8}, v{GA+3}, s[{srd}:{srd+3}], s{S['h3']} offen sc1",'g2',cost=30)
def s3_ga_flag_check(P,S,lane,srd,endlab):
    P.wv('g2')
    ld=f"buffer_load_dwordx4 v[{GA+4}:{GA+7}], v{GA+2}, s[{srd}:{srd+3}], s{S['h2']} offen sc1\nbuffer_load_dword v{GA+8}, v{GA+3}, s[{srd}:{srd+3}], s{S['h3']} offen sc1"
    ck=f"v_and_b32 v{GA+9}, v{GA+4}, v{GA+5}\nv_and_b32 v{GA+10}, v{GA+6}, v{GA+7}\nv_and_b32 v{GA+9}, v{GA+9}, v{GA+10}\nv_and_b32 v{GA+9}, v{GA+9}, v{GA+8}\nv_cmp_eq_u32 vcc, 1, v{GA+9}"
    P.atom(spin('fl',ld,ck,S,endlab),cost=40)
    G2=GA+12
    P.i(f"""
    v_lshlrev_b32 v{GA+7}, 4, v{lane}
    s_lshl_b32 s{S['h0']}, s{S['rb']}, 10
    s_add_u32 s{S['h0']}, s{S['h0']}, {STG}
    s_mul_i32 s{S['h1']}, s{S['cb']}, {16*768}
    s_add_u32 s{S['h1']}, s{S['h1']}, {PCS}
    """)
    P.vl(f"buffer_load_dwordx4 v[{GA+8}:{GA+11}], v{GA+7}, s[{srd}:{srd+3}], s{S['h0']} offen sc1",'g3',cost=30)
    for r in range(10):
        P.vl(f"s_add_u32 s{S['h2']}, s{S['h1']}, {768*r}\nbuffer_load_dwordx4 v[{GA+12+4*r}:{GA+15+4*r}], v{GA+7}, s[{srd}:{srd+3}], s{S['h2']} offen sc1",'g3',cost=30)
```

```python
import os
from asmlib import *
from sched import *
from layout import *
KTS=768
KROW=272
KSCR=5888
KP=32
KDT=44
KWA=48
KRA=56
KD=68
KAF=84
KBF=116
KV=132
def cmul(P,d,a,b,t):
    P.i(f"""
    v_pk_mul_f32 v[{t}:{t+1}], v[{a}:{a+1}], v[{b}:{b+1}] op_sel:[1,1] op_sel_hi:[1,0] neg_lo:[1,0]
    v_pk_fma_f32 v[{d}:{d+1}], v[{a}:{a+1}], v[{b}:{b+1}], v[{t}:{t+1}] op_sel:[0,0,0] op_sel_hi:[0,1,1]
    """,cost=5)
def edirect(P,dr,di,al,be,p,t):
    P.i(f"""
    v_mul_f32 v{t}, {p}, v{al}
    v_mul_f32 v{t+1}, {p}, v{be}
    v_exp_f32 v{t}, v{t}
    v_fract_f32 v{t+1}, v{t+1}
    v_cos_f32 v{dr}, v{t+1}
    v_sin_f32 v{di}, v{t+1}
    s_nop 0
    v_mul_f32 v{dr}, v{dr}, v{t}
    v_mul_f32 v{di}, v{di}, v{t}
    """)
def kgen_loads(P,S,lane,tmp):
    P.i(f"s_mul_i32 s{S['k0']}, s{S['ch']}, 384\nv_lshlrev_b32 v{tmp}, 2, v{lane}\nv_lshlrev_b32 v{tmp+2}, 1, v{lane}\ns_lshl_b32 s{S['k1']}, s{S['ch']}, 1\nv_mov_b32 v{tmp+1}, s{S['k1']}")
    P.vl(f"buffer_load_ushort v{KDT}, v{tmp+1}, s[{S['sD']}:{S['sD']+3}], 0 offen",'kp',cost=30)
    for k,nm in enumerate(('sA','sI','sR','sC')):
        P.vl(f"buffer_load_dword v{KP+k}, v{tmp}, s[{S[nm]}:{S[nm]+3}], s{S['k0']} offen",'kp',cost=30)
    for k,nm in enumerate(('sA','sI','sR','sC')):
        P.vl(f"buffer_load_ushort v{KP+4+k}, v{tmp+2}, s[{S[nm]}:{S[nm]+3}], s{S['k0']} offen offset:256",'kp2',cost=30)
def kgen_setup(P,S,lane):
    t=KV
    P.i(f"v_lshlrev_b32 v{t}, 2, v{lane}\nv_add_u32 v{KWA}, s{S['kb']}, v{t}")
    for c in range(1,6): P.i(f"v_add_u32 v{KWA+c}, {4*KROW*c}, v{KWA}")
    P.i(f"""
    v_and_b32 v{t}, 15, v{lane}
    v_lshrrev_b32 v{t+1}, 4, v{lane}
    v_mul_u32_u24 v{t}, {KROW}, v{t}
    v_lshl_add_u32 v{t+1}, v{t+1}, 4, v{t}
    v_add_u32 v{KRA}, s{S['kb']}, v{t+1}
    """)
    for i in range(16): P.i(f"v_mov_b32 v{KD+i}, 0")
def kgen_dt(P,S):
    d=KDT
    P.wv('kp')
    P.i(f"""
    v_lshlrev_b32 v{d}, 16, v{d}
    v_mul_f32 v{d}, 0x3fb8aa3b, v{d}
    v_exp_f32 v{d}, v{d}
    s_nop 0
    v_cvt_pk_bf16_f32 v{d}, v{d}, v{d}
    v_lshlrev_b32 v{d}, 16, v{d}
    """)
class KG:
    V=KV
    def __init__(s,g,pk=False):
        V=s.V; s.g=g; s.pk=pk
        s.AL,s.BE,s.C=V,V+1,V+2
        s.E1,s.E2,s.E4,s.E8,s.E256,s.E16=V+4,V+8,V+12,V+16,V+20,V+24
        s.buf={'X':[V+28,V+30],'Y':[V+32,V+34],'Z':[V+36,V+38],'W':[V+40,V+42]}
        s.cur={}
        s.TT=[V+44+2*i for i in range(4)]; s.tk=0; s.OUT=V+52; s.k=0; s.held={}
    def T(s): s.tk=(s.tk+1)%4; return s.TT[s.tk]
    def mul(s,P,name,a,E):
        b=s.buf[name]; d=b[0] if s.cur.get(name)!=b[0] else b[1]
        if s.pk: cmul(P,d,a,E,s.T())
        else:
            P.i(f"""
            v_mul_f32 v{d}, v{a}, v{E}
            v_mul_f32 v{d+1}, v{a}, v{E+1}
            v_fmac_f32 v{d}, v{a+1}, v{E+2}
            v_fmac_f32 v{d+1}, v{a+1}, v{E}
            """,cost=5)
        s.cur[name]=d; return d
    def sq(s,P,d,a):
        t=s.T()
        P.i(f"""
        v_mul_f32 v{d}, v{a}, v{a}
        v_mul_f32 v{d+1}, v{a}, v{a+1}
        v_fmac_f32 v{d}, v{a+1}, v{a+2}
        v_add_f32 v{d+1}, v{d+1}, v{d+1}
        v_sub_f32 v{d+2}, 0, v{d+1}
        """,cost=5)
    def pack(s,P,v,r,neg):
        o=s.OUT+(s.k%8); s.k+=1
        P.i(f"v_cvt_pk_bf16_f32 v{o}, v{r}, {'-' if neg else ''}v{r+1}",cost=5); s.held[v]=o
    def wr2(s,P,v):
        a=KWA+(v>>2); o0=(v&3)*68
        if os.environ.get('WPRIO'):
            P.l(f"s_setprio 1\nds_write2_b32 v{a}, v{s.held[v]}, v{s.held[v+1]} offset0:{o0} offset1:{o0+68}\ns_setprio 0",cost=30)
        else:
            P.l(f"ds_write2_b32 v{a}, v{s.held[v]}, v{s.held[v+1]} offset0:{o0} offset1:{o0+68}",cost=30)
    def wr1(s,P,v): P.l(f"ds_write_b32 v{KWA+(v>>2)}, v{s.held[v]} offset:{(v&3)*KROW}",cost=14)
    def setup(s,P):
        AL,BE,C=s.AL,s.BE,s.C; d=KDT
        p=KP+(4 if s.g==2 else 0)
        up=(lambda dst,src: f"v_and_b32 v{dst}, 0xffff0000, v{src}") if s.g==1 else (lambda dst,src: f"v_lshlrev_b32 v{dst}, 16, v{src}")
        P.i(f"""
        {up(AL,p)}
        {up(BE,p+1)}
        v_mul_f32 v{AL}, 0x3fb8aa3b, v{AL}
        {up(C,p+2)}
        v_exp_f32 v{AL}, v{AL}
        {up(C+1,p+3)}
        v_mul_f32 v{BE}, v{BE}, v{d}
        v_cvt_pk_bf16_f32 v{AL}, v{AL}, v{AL}
        v_mul_f32 v{C}, v{C}, v{d}
        v_lshlrev_b32 v{AL}, 16, v{AL}
        v_mul_f32 v{C+1}, v{C+1}, v{d}
        v_mul_f32 v{AL}, v{AL}, v{d}
        v_mul_f32 v{BE}, 0.15915494, v{BE}
        v_mul_f32 v{AL}, 0xbfb8aa3b, v{AL}
        v_add_f32 v{C}, v{C}, v{C}
        v_add_f32 v{C+1}, v{C+1}, v{C+1}
        """,cost=5)
        for E,p_ in ((s.E1,"1.0"),(s.E256,"0x43800000"),(s.E8,"0x41000000")):
            edirect(P,E,E+1,AL,BE,p_,s.T()); P.i(f"v_sub_f32 v{E+2}, 0, v{E+1}",cost=5)
        s.sq(P,s.E2,s.E1); s.sq(P,s.E16,s.E8); s.sq(P,s.E4,s.E2)
    def rows(s,P):
        C=s.C; E1,E2,E4,E256=s.E1,s.E2,s.E4,s.E256
        pk=lambda v,r: s.pack(P,v,r,True); wr2=lambda v:s.wr2(P,v); M=lambda n,a,E:s.mul(P,n,a,E)
        c=s.cur
        pk(0,C)
        M('X',C,E1); M('Y',C,E256)
        pk(1,c['X']); pk(8,c['Y']); wr2(0)
        M('X',c['X'],E1); M('Z',c['Y'],E2); M('Y',c['Y'],E256)
        pk(2,c['X']); pk(9,c['Z']); pk(12,c['Y']); wr2(8)
        M('X',c['X'],E1); M('Z',c['Z'],E2); M('W',c['Y'],E4); M('Y',c['Y'],E256)
        pk(3,c['X']); pk(13,c['W']); wr2(2); wr2(12); pk(10,c['Z']); pk(14,c['Y'])
        M('X',c['X'],E1); M('Z',c['Z'],E2); M('W',c['Y'],E4); M('Y',c['Y'],E256)
        pk(11,c['Z']); pk(15,c['W']); wr2(10); wr2(14); pk(4,c['X']); pk(16,c['Y'])
        M('X',c['X'],E1); M('Y',c['Y'],E256)
        pk(5,c['X']); pk(17,c['Y']); wr2(4); wr2(16)
        M('X',c['X'],E1); M('Y',c['Y'],E256)
        pk(6,c['X']); pk(18,c['Y'])
        M('X',c['X'],E1); M('Y',c['Y'],E256)
        pk(7,c['X']); pk(19,c['Y']); wr2(6); wr2(18)
        M('Y',c['Y'],E256); pk(20,c['Y']); s.wr1(P,20)
    def readA(s,P):
        for mt in range(2):
            for ks in range(4):
                b=KAF+(mt*4+ks)*4
                P.l(f"ds_read_b128 v[{b}:{b+3}], v{KRA} offset:{16*KROW*mt+64*ks}",('ka',s.g),cost=6)
    def cols(s,P,nh):
        E8,E16=s.E8,s.E16; c=s.cur
        if nh==0:
            o0=s.OUT+(s.k%8); s.k+=1
            P.i(f"v_mov_b32 v{o0}, 0x3f80",cost=5); s.held[0]=o0
            c['X']=E16; c['Z']=E8
        for jp in range(8):
            je=16*nh+2*jp
            if je==0: s.pack(P,1,c['Z'],False); s.wr2(P,0)
            elif je==2: s.mul(P,'Z',c['Z'],E16); s.pack(P,2,c['X'],False); s.pack(P,3,c['Z'],False); s.wr2(P,2)
            else:
                s.mul(P,'X',c['X'],E16); s.mul(P,'Z',c['Z'],E16)
                s.pack(P,je&15,c['X'],False); s.pack(P,(je&15)+1,c['Z'],False); s.wr2(P,je&15)
    def readB(s,P,nh):
        for ks in range(4):
            b=KBF+ks*4
            P.l(f"ds_read_b128 v[{b}:{b+3}], v{KRA} offset:{64*ks}",('kb',s.g,nh),cost=6)
    def mfma(s,P,nh):
        P.wl(('kb',s.g,nh))
        P.lock(); P.atom("s_setprio 1")
        for ks in range(4):
            for mt in range(2):
                a=KAF+(mt*4+ks)*4; b=KBF+ks*4; dd=KD+(mt*2+nh)*4
                P.i(f"v_mfma_f32_16x16x32_bf16 v[{dd}:{dd+3}], v[{a}:{a+3}], v[{b}:{b+3}], v[{dd}:{dd+3}]",cost=17)
        P.atom("s_setprio 0"); P.unlock()
def kgen_groups(P,pkg0='rows'):
    G=[KG(g,False) for g in range(3)]
    G[0].pk = pkg0 in('rows','all')
    G[0].setup(P); G[0].rows(P)
    G[0].pk = pkg0=='all'
    P.it.append(('MARK',0,0)) if pkg0!='all' else None
    for g in range(3):
        k=G[g]
        k.readA(P); k.cols(P,0); k.readB(P,0); k.cols(P,1)
        if g==0 and pkg0=='all': P.it.append(('MARK',0,0))
        k.mfma(P,0); k.readB(P,1)
        if g<2:
            G[g+1].setup(P); k.mfma(P,1); G[g+1].rows(P)
        else: k.mfma(P,1)
def kgen_out(P,S,lane,srd,flags="",tolds=False):
    t=KV
    P.i(f"""
    s_nop 7
    v_and_b32 v{t}, 15, v{lane}
    v_lshrrev_b32 v{t+1}, 4, v{lane}
    v_lshlrev_b32 v{t+2}, 3, v{t}              ; 8jj
    v_cmp_eq_u32 vcc, 1, v{t+1}
    v_add_u32 v{t+3}, 4, v{t+2}
    s_nop 0
    v_cndmask_b32 v{t+2}, v{t+2}, v{t+3}, vcc
    v_mov_b32 v{t+4}, 128
    v_cmp_eq_u32 vcc, 2, v{t+1}
    v_lshlrev_b32 v{t+3}, 2, v{t}
    v_add_u32 v{t+3}, 256, v{t+3}
    v_cndmask_b32 v{t+2}, v{t+2}, v{t+3}, vcc
    v_cndmask_b32 v{t+4}, v{t+4}, 64, vcc
    v_cmp_eq_u32 vcc, 3, v{t+1}
    v_lshlrev_b32 v{t+3}, 1, v{t}
    v_add_u32 v{t+3}, 384, v{t+3}
    v_cndmask_b32 v{t+2}, v{t+2}, v{t+3}, vcc
    v_cndmask_b32 v{t+4}, v{t+4}, 32, vcc
    """)
    P.i(f"""
    v_mov_b32 v{t+5}, 2
    v_mov_b32 v{t+7}, 64
    v_cndmask_b32 v{t+5}, v{t+5}, v{t+7}, vcc
    v_lshlrev_b32 v{t+2}, 2, v{t+2}
    v_add_u32 v{t+2}, s{S['kb']}, v{t+2}       ; addr i=0 (i=1: +4)
    v_lshl_add_u32 v{t+3}, v{t+5}, 2, v{t+2}   ; addr i=2 (i=3: +4)
    v_lshl_add_u32 v{t+6}, v{t+4}, 2, v{t+2}   ; nh=1
    v_lshl_add_u32 v{t+7}, v{t+4}, 2, v{t+3}
    v_lshlrev_b32 v{t+8}, 2, v{t}
    v_add_u32 v{t+8}, s{S['kb']}, v{t+8}
    """)
    for nh in range(2):
        a0,a2=(t+2,t+3) if nh==0 else (t+6,t+7)
        dd=KD+nh*4
        P.l(f"ds_write_b32 v{a0}, v{dd}"); P.l(f"ds_write_b32 v{a0}, v{dd+1} offset:4")
        P.l(f"ds_write_b32 v{a2}, v{dd+2}"); P.l(f"ds_write_b32 v{a2}, v{dd+3} offset:4")
    sv=S['sv']
    P.lock()
    P.atom(f"s_mov_b64 s[{sv}:{sv+1}], exec\ns_mov_b64 exec, 0xffff")
    for nh in range(2):
        dd=KD+8+nh*4
        for i in range(4): P.l(f"ds_write_b32 v{t+8}, v{dd+i} offset:{4*(512+32*i+16*nh)}")
    P.atom(f"s_mov_b64 exec, 0x10000")
    P.l(f"ds_write_b32 v{t+8}, v{KD+8} offset:{4*640}")
    P.atom(f"s_mov_b64 exec, s[{sv}:{sv+1}]")
    P.unlock()
    if tolds:
        P.wl(); return
    P.i(f"v_lshlrev_b32 v{t+9}, 4, v{lane}\nv_add_u32 v{t+10}, s{S['kb']}, v{t+9}")
    P.wl()
    for i in range(3): P.l(f"ds_read_b128 v[{KAF+4*i}:{KAF+4*i+3}], v{t+10} offset:{1024*i}",'ko')
    P.i(f"s_mul_i32 s{S['k0']}, s{S['ch']}, {KTS*4}\ns_add_u32 s{S['k0']}, s{S['k0']}, {KTG}")
    P.wl('ko')
    for i in range(3): P.vs(f"buffer_store_dwordx4 v[{KAF+4*i}:{KAF+4*i+3}], v{t+9}, s[{srd}:{srd+3}], s{S['k0']} offen offset:{1024*i} {flags}")
```

```python
XT   = 4<<20
KTG  = 8<<20
AT   = 16<<20
HF   = 28<<20
W2F  = 36<<20
STG  = 40<<20
PCS  = 41<<20
FST  = 42<<20
FCS  = FST+4096
FD   = FST+8192
FL   = FST+(64<<10)
FW   = FL+4096
FH   = FL+8192
STAMP= 48<<20
FX   = FL+16384
```

```python
import sys, os
from g32lib import *
from kgenlib import *
from htasks import *
import conv3lib as CV
from asmlib import KMAIN
DIAG=bool(os.environ.get('DIAG'))
E=lambda k,d: int(os.environ.get(k,d))
S=dict(x=20,j=21,rb=22,cb=23,hw=24,w=25,wf=26,wt=27,t0=28,t1=29,sx=30,sw=31,mx=32,mw=33,sl=34,rot=35,
       srdx=8,srd1=12,srd3=16,hb=60,ho=61,wg=2,
       ch=88,kb=89,k0=90,k1=91,sv=92,h0=94,h1=95,h2=96,h3=97,lb=98,u=99,m48=100,nch=101,
       sA=40,sI=44,sR=48,sC=52,sD=56,fst=72,fcs=73,db=3,spin=82)
WS=36
KB0=HSCR
LB_L=HSCR+3*KSCR
LB_W=HSCR+2*KSCR
LCNT=LB_L+LNSCR
LDS_S3=LCNT+3072
REDB=40960; REDW=15360
ATL=102400; ATRS=136
HLANE=11
END="Lmain_end"
def stamp(A,v,idx,rt=False):
    if DIAG: A(f"{'s_memrealtime' if rt else 's_memtime'} s[6:7]\ns_waitcnt lgkmcnt(0)\nv_writelane_b32 v{v}, s6, {idx}")
def dump(A,v):
    if DIAG:
        A(f"s_waitcnt vmcnt(0)\ns_lshl_b32 s27, s2, 11\ns_lshl_b32 s28, s25, 8\ns_add_u32 s27, s27, s28\ns_add_u32 s27, s27, {STAMP}")
        A(f"v_mbcnt_lo_u32_b32 v10, -1, 0\nv_mbcnt_hi_u32_b32 v10, -1, v10\nv_lshlrev_b32 v10, 2, v10\nbuffer_store_dword v{v}, v10, s[36:39], s27 offen")
def mark(P,st): P.it.append(('MARK',st,0))
def must(P,st): P.it.append(('MUST',st,0))
def h_schedule(A,P,budget,pre,sv):
    Em=Emit(A)
    items=list(P.it); pos=[0]; locked=[0]
    def run_until(cost,window):
        c=0
        while pos[0]<len(items):
            x=items[pos[0]]
            if x[0]=='MARK':
                if x[1]>window: return
                pos[0]+=1; continue
            if x[0]=='MUST': pos[0]+=1; continue
            if x[0]=='LOCK': locked[0]=x[1]; pos[0]+=1; continue
            force=any(y[0]=='MUST' and y[1]<=window for y in items[pos[0]:])
            if c>=cost and not locked[0] and not force: return
            Em.item(x); c+=x[2]; pos[0]+=1
    run_until(pre,-1)
    for st in range(NST):
        stamp(A,sv,16+st)
        A("s_barrier")
        stamp(A,sv,32+st)
        run_until(budget,st)
    return Em,items[pos[0]:]
def g2_phase(A):
    DEPTH=E('DEPTH',3)
    ACC2=0; FR=80; XR=FR+36*DEPTH
    VL=XR+24; VLN=VL+3; VT=VL+4; PF=VT+12
    assert PF%2==0 and PF+4<=250
    lane=VLANE
    A(f"""
    s_waitcnt vmcnt(0)
    v_mov_b32 v{VT0}, {LCNT}
    v_mov_b32 v{VT0+1}, 1
    s_mov_b64 s[92:93], exec
    s_mov_b64 exec, 1
    ds_add_rtn_u32 v{VT0+2}, v{VT0}, v{VT0+1}
    s_waitcnt lgkmcnt(0)
    v_readfirstlane_b32 s28, v{VT0+2}
    s_nop 3
    s_cmp_eq_u32 s28, 3
    s_cbranch_scc0 Lnopubh
    s_lshl_b32 s28, s22, 4
    s_add_u32 s28, s28, s23
    s_lshl_b32 s28, s28, 7
    s_add_u32 s28, s28, {FH}
    v_mov_b32 v{VT0}, 0
    buffer_store_dword v{VT0+1}, v{VT0}, s[36:39], s28 offen sc1
    Lnopubh:
    s_mov_b64 exec, s[92:93]
    """)
    stamp(A,250,5)
    A(f"""
    s_lshr_b32 s49, s20, 1
    s_lshl_b32 s49, s49, 3
    s_and_b32 s28, s21, 7
    s_add_u32 s49, s49, s28
    v_mov_b32 v{VLN}, v{lane}
    v_lshlrev_b32 v{VL}, 4, v{lane}
    v_add_u32 v{VL+1}, 4096, v{VL}
    v_add_u32 v{VL+2}, 8192, v{VL}
    s_mul_i32 s26, s25, 12
    """)
    for dt in range(5):
        A(f"s_mul_i32 s27, s3, 5\ns_add_u32 s27, s27, {dt}\ns_mul_i32 s27, s27, 48\ns_add_u32 s27, s27, s26\ns_lshl_b32 s27, s27, 10\ns_add_u32 s{44+dt}, s27, {W2F}")
    vm=[]
    def frag(slot,i): return FR+slot*36+4*i
    def wl(s):
        slot=s%DEPTH; va=VL+(s>>2); imm=1024*(s&3)
        for dt in range(5):
            A(f"buffer_load_dwordx4 v[{frag(slot,dt)}:{frag(slot,dt)+3}], v{va}, s[36:39], s{44+dt} offen offset:{imm} sc1"); vm.append(('f',s))
    def hl(s):
        slot=s%DEPTH; va=VL+(s>>2); imm=1024*(s&3)
        for nt in range(4):
            A(f"buffer_load_dwordx4 v[{frag(slot,5+nt)}:{frag(slot,5+nt)+3}], v{va}, s[36:39], s{30+nt} offen offset:{imm} sc1"); vm.append(('f',s))
    def wait(tag):
        idx=max(i for i,t in enumerate(vm) if t==tag); A(f"s_waitcnt vmcnt({min(63,len(vm)-1-idx)})")
    for s in range(DEPTH): wl(s)
    for nt in range(4):
        A(f"s_lshl_b32 s27, s49, 2\ns_add_u32 s27, s27, {nt}\ns_mul_i32 s27, s27, 48\ns_add_u32 s27, s27, s26\ns_lshl_b32 s27, s27, 10\ns_add_u32 s{30+nt}, s27, {HF}")
    A(f"""
    v_and_b32 v{VT}, 15, v{VLN}
    v_lshrrev_b32 v{VT+1}, 4, v{VLN}
    v_mul_u32_u24 v{VT+2}, 1280, v{VT}
    v_mul_u32_u24 v{VT+3}, 40, v{VT+1}
    v_add_u32 v{XR+10}, v{VT+2}, v{VT+3}
    s_lshl_b32 s27, s49, 6
    s_lshl_b32 s28, s25, 4
    s_add_u32 s27, s27, s28
    s_mul_i32 s27, s27, 1280
    s_mul_i32 s28, s3, 160
    s_add_u32 s40, s27, s28
    """)
    A(f"buffer_load_dwordx4 v[{XR}:{XR+3}], v{XR+10}, s[8:11], s40 offen\nbuffer_load_dwordx4 v[{XR+4}:{XR+7}], v{XR+10}, s[8:11], s40 offen offset:16\nbuffer_load_dwordx2 v[{XR+8}:{XR+9}], v{XR+10}, s[8:11], s40 offen offset:32")
    for i in range(80): A(f"v_mov_b32 v{ACC2+i}, 0")
    A(f"""
    v_and_b32 v{VT+4}, 31, v{VLN}
    v_lshlrev_b32 v{VT+4}, 7, v{VT+4}
    s_lshl_b32 s41, s3, 12
    s_add_u32 s41, s41, {FD}
    v_lshrrev_b32 v{VT+5}, 3, v{VLN}
    v_and_b32 v{VT+6}, 7, v{VLN}
    v_lshlrev_b32 v{VT+7}, 12, v{VT+5}
    v_lshl_add_u32 v{VT+7}, v{VT+6}, 4, v{VT+7}
    v_mul_u32_u24 v{VT+8}, {ATRS}, v{VT+5}
    v_lshl_add_u32 v{VT+8}, v{VT+6}, 4, v{VT+8}
    s_mul_i32 s27, s3, {80*4096}
    s_lshl_b32 s28, s49, 7
    s_add_u32 s27, s27, s28
    s_lshl_b32 s28, s25, 15
    s_add_u32 s27, s27, s28
    s_add_u32 s42, s27, {AT}
    s_mul_i32 s28, s25, {8*ATRS}
    s_add_u32 s43, s28, {ATL}
    v_add_u32 v{VT+8}, s43, v{VT+8}
    v_and_b32 v{VT+9}, 15, v{VLN}
    v_lshlrev_b32 v{VT+9}, 7, v{VT+9}
    s_lshr_b32 s27, s49, 1
    s_lshl_b32 s27, s27, 11
    s_add_u32 s50, s27, {FH}
    buffer_load_dword v{VT+10}, v{VT+9}, s[36:39], s50 offen sc1
    s_waitcnt vmcnt(0)
    """)
    A(spin('h',f"buffer_load_dword v{VT+10}, v{VT+9}, s[36:39], s50 offen sc1",f"v_cmp_eq_u32 vcc, 1, v{VT+10}",S,END))
    stamp(A,250,6)
    vm.clear()
    for s in range(DEPTH): hl(s)
    A("s_mov_b32 s51, 0")
    def atloads(u):
        for i in range(3):
            if i<2: A(f"s_add_u32 s27, s42, {i*32*4096}\nbuffer_load_dwordx4 v[{XR+12+4*i}:{XR+15+4*i}], v{VT+7}, s[36:39], s27 offen sc1")
            else: A(f"s_cmp_lt_u32 s25, 2\ns_cbranch_scc0 Lnoat{u}\ns_add_u32 s27, s42, {i*32*4096}\nbuffer_load_dwordx4 v[{XR+12+4*i}:{XR+15+4*i}], v{VT+7}, s[36:39], s27 offen sc1\nLnoat{u}:")
    POLL=12-DEPTH-1
    for s in range(12):
        slot=s%DEPTH
        if s<=POLL+2: wait(('f',s))
        if s==0: stamp(A,250,7)
        for nt in range(4):
            for dt in range(5):
                a=ACC2+(nt*5+dt)*4
                A(f"v_mfma_f32_16x16x32_bf16 v[{a}:{a+3}], v[{frag(slot,dt)}:{frag(slot,dt)+3}], v[{frag(slot,5+nt)}:{frag(slot,5+nt)+3}], v[{a}:{a+3}]")
        if s+DEPTH<12: wl(s+DEPTH); hl(s+DEPTH)
        if s==POLL:
            A(f"buffer_load_dwordx4 v[{PF}:{PF+3}], v{VT+4}, s[36:39], s41 offen sc1"); vm.append(('p',0))
        if s==POLL+2:
            wait(('p',0))
            A(f"""
            v_and_b32 v{PF}, v{PF}, v{PF+1}
            v_and_b32 v{PF}, v{PF}, v{PF+2}
            v_cmp_eq_u32 vcc, 1, v{PF}
            s_nop 1
            s_cmp_eq_u64 vcc, exec
            s_cbranch_scc0 Lnotyet
            s_mov_b32 s51, 1
            """)
            atloads('e')
            A("Lnotyet:")
    stamp(A,250,8)
    R0=FR
    def late(w):
        A(f"s_cmp_eq_u32 s51, 1\ns_cbranch_scc1 Lhave{w}\nbuffer_load_dwordx4 v[{PF}:{PF+3}], v{VT+4}, s[36:39], s41 offen sc1\ns_waitcnt vmcnt(0)")
        A(spin(f'd{w}',f"buffer_load_dwordx4 v[{PF}:{PF+3}], v{VT+4}, s[36:39], s41 offen sc1",f"v_and_b32 v{PF}, v{PF}, v{PF+1}\nv_and_b32 v{PF}, v{PF}, v{PF+2}\nv_cmp_eq_u32 vcc, 1, v{PF}",S,END))
        atloads(f'l{w}')
        A(f"Lhave{w}:\ns_waitcnt vmcnt(0)")
        for i in range(3):
            if i==2 and w>=2: continue
            for h in range(2): A(f"ds_write_b64 v{VT+8}, v[{XR+12+4*i+2*h}:{XR+13+4*i+2*h}] offset:{i*32*ATRS+8*h}")
    A(f"v_add_u32 v{VL+1}, {REDB}, v{VL}")
    for w in range(4):
        lab=A.label('w')
        if w<3: A(f"s_cmp_lg_u32 s25, {w}\ns_cbranch_scc1 {lab}")
        A("s_nop 4")
        for nt in range(4):
            if nt==w: continue
            sl=nt if nt<w else nt-1
            for dt in range(5):
                a=ACC2+(nt*5+dt)*4
                A(f"ds_write_b128 v{VL+1}, v[{a}:{a+3}] offset:{w*REDW+(sl*5+dt)*1024}")
        late(w)
        A("s_waitcnt lgkmcnt(0)\ns_barrier")
        k=0
        for src in range(4):
            if src==w: continue
            sl=w if w<src else w-1
            for dt in range(5):
                A(f"ds_read_b128 v[{R0+(k*5+dt)*4}:{R0+(k*5+dt)*4+3}], v{VL+1} offset:{src*REDW+(sl*5+dt)*1024}")
            k+=1
        if w:
            for r in range(20): A(f"v_mov_b32 v{ACC2+r}, v{ACC2+w*20+r}")
        if w<3: A(f"s_branch Lred\n{lab}:")
    A("Lred:")
    A(f"""
    v_lshrrev_b32 v{VT}, 4, v{VLN}
    v_mul_u32_u24 v{VT}, 20, v{VT}
    v_bfe_u32 v{VT+1}, v{VLN}, 2, 2
    v_add_u32 v{VT}, v{VT}, v{VT+1}
    v_mul_u32_u24 v{VT}, {ATRS}, v{VT}
    v_and_b32 v{VT+1}, 3, v{VLN}
    v_lshl_add_u32 v{VT}, v{VT+1}, 3, v{VT}
    s_lshl_b32 s27, s25, 5
    s_add_u32 s27, s27, {ATL}
    v_add_u32 v{VT}, s27, v{VT}
    """)
    AR=R0+60
    for dt in range(5): A(f"ds_read_b64_tr_b16 v[{AR+2*dt}:{AR+2*dt+1}], v{VT} offset:{4*dt*ATRS}")
    A(f"s_waitcnt lgkmcnt(5)")
    for src in range(3):
        for r in range(20): A(f"v_add_f32 v{ACC2+r}, v{ACC2+r}, v{R0+src*20+r}")
    stamp(A,250,9)
    A("s_waitcnt lgkmcnt(0)")
    W=R0
    for e2 in range(10):
        x=XR+e2; a=AR+e2; b0=ACC2+2*e2; b1=b0+1; w=W+4*(e2%4)
        A(f"""
        v_lshlrev_b32 v{w}, 16, v{x}
        v_and_b32 v{w+1}, 0xffff0000, v{x}
        v_lshlrev_b32 v{w+2}, 16, v{a}
        v_and_b32 v{w+3}, 0xffff0000, v{a}
        v_add_f32 v{w}, v{w}, v{w+2}
        v_add_f32 v{w+1}, v{w+1}, v{w+3}
        v_cvt_pk_bf16_f32 v{w+2}, v{b0}, v{b1}
        v_cvt_pk_bf16_f32 v{w}, v{w}, v{w+1}
        v_lshlrev_b32 v{b0}, 16, v{w+2}
        v_and_b32 v{b1}, 0xffff0000, v{w+2}
        v_lshlrev_b32 v{w+2}, 16, v{w}
        v_and_b32 v{w+3}, 0xffff0000, v{w}
        v_add_f32 v{b0}, v{b0}, v{w+2}
        v_add_f32 v{b1}, v{b1}, v{w+3}
        v_cvt_pk_bf16_f32 v{W+20+e2}, v{b0}, v{b1}
        """)
    A(f"buffer_store_dwordx4 v[{W+20}:{W+23}], v{XR+10}, s[52:55], s40 offen\nbuffer_store_dwordx4 v[{W+24}:{W+27}], v{XR+10}, s[52:55], s40 offen offset:16\nbuffer_store_dwordx2 v[{W+28}:{W+29}], v{XR+10}, s[52:55], s40 offen offset:32")
def build(A):
    n=KMAIN; A.begin(n)
    A("s_cmp_ge_u32 s2, 256\ns_cbranch_scc1 Lmain_end")
    A(f"""
    s_load_dwordx2 s[4:5], s[0:1], {ARG['u']}
    s_load_dwordx4 s[76:79], s[0:1], {ARG['w1']}
    s_load_dwordx4 s[84:87], s[0:1], {ARG['dbg']}
    s_load_dwordx8 s[64:71], s[0:1], {ARG['logA']}
    s_load_dwordx2 s[74:75], s[0:1], {ARG['logdt']}
    s_load_dwordx4 s[44:47], s[0:1], {ARG['w2']}      ; w2, out
    s_load_dwordx2 s[18:19], s[0:1], {ARG['Dskip']}
    s_and_b32 s20, s2, 7          ; x
    s_lshr_b32 s21, s2, 3         ; j
    s_and_b32 s22, s20, 1
    s_lshl_b32 s22, s22, 3
    s_and_b32 s23, s21, 7
    s_add_u32 s22, s22, s23       ; rb
    s_lshr_b32 s23, s20, 1
    s_lshl_b32 s23, s23, 2
    s_lshr_b32 s24, s21, 3
    s_add_u32 s23, s23, s24       ; cb
    s_and_b32 s3, s20, 1
    s_lshl_b32 s3, s3, 2
    s_add_u32 s3, s3, s24
    v_lshrrev_b32 v1, 6, v0
    s_cmp_ge_u32 s22, 10
    s_cselect_b32 s35, 10, 0
    v_readfirstlane_b32 s25, v1   ; wave
    s_sub_u32 s35, s22, s35       ; rot
    s_nop 2
    s_and_b32 s26, s25, 1         ; wf
    s_bfe_u32 s27, s25, 0x10001   ; wt
    s_and_b32 s24, s25, 3         ; hw
    s_cmp_ge_u32 s25, 4
    s_cbranch_scc1 Lhrole
    """)
    g_dma_addr(A,S)
    A("s_waitcnt lgkmcnt(0)")
    A.srd(8,4,SIZE['u']); A.srd(12,76,SIZE['w1']); A.srd(16,78,SIZE['w3']); A.srd(WS,86,SIZE['ws']); A.srd(52,46,SIZE['out'])
    if DIAG: A("v_mov_b32 v250, 0"); stamp(A,250,0); stamp(A,250,1,True)
    PRE=E('GPRE',2)
    for l in g_dma(S,0): A(l)
    g_lds_addr(A,S)
    for i in range(48): A(f"v_mov_b32 v{ACC+i}, 0")
    for l in g_dma(S,1): A(l)
    for i in range(48,96): A(f"v_mov_b32 v{ACC+i}, 0")
    A(f"s_cmp_eq_u32 s25, 0\ns_cbranch_scc0 Lnoci\nv_mov_b32 v{VT0}, {LCNT}\nv_mov_b32 v{VT0+1}, 0\nds_write_b32 v{VT0}, v{VT0+1}\nLnoci:")
    if PRE>=3:
        for l in g_dma(S,2): A(l)
    def gstamp(st):
        if isinstance(st,tuple): stamp(A,250,16+st[1])
        else: stamp(A,250,32+st)
    g_loop(A,S,gstamp if DIAG else None,PRE=PRE)
    stamp(A,250,2)
    A("s_barrier")
    stamp(A,250,3)
    g_epilogue(A,S,WS,HF,'sc1')
    stamp(A,250,4)
    g2_phase(A)
    stamp(A,250,10); stamp(A,250,11,True)
    dump(A,250)
    A("s_branch Lmain_end")
    A("Lhrole:")
    A(f"v_and_b32 v{HLANE}, 63, v0")
    A(f"""
    s_mul_i32 s28, s21, 3
    s_lshl_b32 s29, s21, 1
    s_add_u32 s29, s29, 16
    s_cmp_lt_u32 s21, 16
    s_cselect_b32 s28, s28, s29
    s_cselect_b32 s101, 3, 2          ; nch
    s_mul_i32 s29, s20, 80
    s_add_u32 s28, s28, s29
    s_add_u32 s88, s28, s24           ; channel
    s_mul_i32 s89, s24, {KSCR}
    s_add_u32 s89, s89, {KB0}
    s_waitcnt lgkmcnt(0)
    s_mov_b32 s80, s44
    s_mov_b32 s81, s45
    """)
    A.srd(8,4,SIZE['u']); A.srd(WS,86,SIZE['ws'])
    A("s_cmp_eq_u32 s24, 3\ns_cbranch_scc1 Lrole_l\ns_cmp_lt_u32 s24, s101\ns_cbranch_scc0 Lrole_w")
    A.srd(40,64,245760); A.srd(44,66,245760); A.srd(48,68,245760); A.srd(52,70,245760); A.srd(56,74,1280); A.srd(12,18,SIZE['Dskip'])
    if DIAG: A("v_mov_b32 v250, 0"); stamp(A,250,0)
    SK=dict(S); SK['kb']=89
    P=Prog(); mark(P,-1); kgen_loads(P,S,HLANE,KV)
    P.i(f"s_lshl_b32 s29, s88, 1\nv_mov_b32 v30, s29"); P.vl("buffer_load_ushort v29, v30, s[12:15], 0 offen",'kp2',cost=30)
    kgen_setup(P,S,HLANE); kgen_dt(P,S); kgen_groups(P,os.environ.get('PKG0','rows'))
    SO=dict(S); SO['kb']=73
    P.i(f"s_add_u32 s73, s89, 16\nv_mov_b32 v28, s89\nv_mov_b32 v27, 0")
    kgen_out(P,SO,HLANE,WS,"",tolds=False) if False else None
    Pout=Prog(); Pout.l("ds_write_b32 v28, v27 offset:12"); kgen_out(Pout,SO,HLANE,WS,"",tolds=True)
    P.ext(Pout)
    P=schedule(P)
    Em,rest=h_schedule(A,P,E('KB',480),E('PREK',1500),250)
    A("s_barrier")
    stamp(A,250,2)
    SC=dict(base=30,ch=88,srd=36,t0=28,t1=29,sv=92,m0=52,m1=54,m2=56,dsk=33,kt=73,lane=HLANE)
    A(f"s_mul_i32 s30, s24, {CV.CW3}")
    CV.u_loads(A,SC)
    for x in rest:
        if x[0]=='WV': A("s_waitcnt vmcnt(0)")
        else: Em.item(x)
    print("K role: total",sum(x[2] for x in P.it),"left after loop",sum(x[2] for x in rest))
    stamp(A,250,3)
    A("s_waitcnt vmcnt(0)\nv_lshlrev_b32 v29, 16, v29\ns_nop 0\nv_readfirstlane_b32 s33, v29")
    CV.u_store(A,SC)
    CV.conv_setup(A,SC)
    A("s_waitcnt lgkmcnt(0)")
    CV.conv_expand(A,SC)
    A("s_waitcnt lgkmcnt(0)")
    stamp(A,250,4)
    A(f"s_setprio {E('CPRIO',1)}")
    CV.conv_main(A)
    A("s_nop 7")
    stamp(A,250,5)
    CV.conv_epilogue(A,SC,"sc1")
    A(f"""
    s_waitcnt vmcnt(0)
    s_lshl_b32 s28, s20, 5
    s_add_u32 s28, s28, s21
    s_lshl_b32 s28, s28, 7
    s_lshl_b32 s29, s24, 2
    s_add_u32 s28, s28, s29
    s_add_u32 s28, s28, {FD}
    v_mov_b32 v{CV.CTMP}, 0
    v_mov_b32 v{CV.CTMP+1}, 1
    s_mov_b64 s[92:93], exec
    s_mov_b64 exec, 1
    buffer_store_dword v{CV.CTMP+1}, v{CV.CTMP}, s[36:39], s28 offen sc1
    s_mov_b64 exec, s[92:93]
    """)
    stamp(A,250,6)
    dump(A,250)
    A("s_branch Lmain_end")
    A("Lrole_w:")
    A.srd(40,80,SIZE['w2'])
    A(f"s_sub_u32 s99, s21, 16\ns_lshl_b32 s99, s99, 3\ns_add_u32 s99, s99, s20\ns_mov_b32 s100, {magic(48)}\ns_mov_b32 s98, {LB_W}")
    P=Prog(); mark(P,-1); w2_setup(P,S,HLANE)
    for k in range(3):
        mark(P,k); w2_unit(P,S,k,40,WS,"sc1")
    s3_set_fw(P,S,WS,WF)
    Em,rest=h_schedule(A,P,700,1500,31)
    assert not [x for x in rest if x[0] not in('MARK','MUST','LOCK')]
    A("s_barrier")
    dump(A,31)
    A("s_branch Lmain_end")
    A("Lrole_l:")
    A.srd(40,84,256)
    A(f"s_mov_b32 s98, {LB_L}")
    P=Prog(); mark(P,-1); ln_loads(P,S,HLANE); s3_clear(P,S,WS); cs_setup(P,S,HLANE)
    ln_stats(P,S,HLANE,WS,"sc1",pk=not os.environ.get('LNSC'))
    mark(P,0); cs_reads(P,S,0); cs_mfma(P,S,0); cs_reads(P,S,1); P.wl(('cs',1)); must(P,0)
    cs_mfma(P,S,1); cs_store(P,S,HLANE,WS,"sc1")
    fl_cleared(P,S,40)
    ln_norm(P,S,HLANE,WS,"sc1")
    s3_set_fl(P,S,WS)
    mark(P,6); s3_ga_clr_load(P,S,HLANE,40)
    mark(P,7); s3_ga_clr_check(P,S,HLANE,40,WS,END)
    mark(P,8); s3_ga_flag_check(P,S,HLANE,WS,END)
    mark(P,9); ga_finish(P,S,HLANE); must(P,9)
    P=schedule(P)
    Em,rest=h_schedule(A,P,E('LB',520),E('PREL',2500),31)
    print("L role: total",sum(x[2] for x in P.it))
    assert not [x for x in rest if x[0] not in('MARK','MUST','LOCK')]
    A("s_barrier")
    dump(A,31)
    A("Lmain_end:")
    A.end(n,256); A.launch(n,256,512,lds=LDS_S3)
if __name__=='__main__':
    A=Asm(); build(A)
    print("LDS",LDS_S3)
    open(sys.argv[1],'w').write(A.text("S3: fused single launch",single=True))
```

```python
from asmlib import *
from layout import *
import os
XBASE=0; XSLOT=16384; WBASE=3*XSLOT; WSLOT=24832; W3OFF=12320
LDS_G=WBASE+3*WSLOT
STAT=LDS_G
CSL=STAT+1024
HSCR=CSL+1024
NST=10
ACC=0
FA=96
FB=120
VXO=136
VWO=140
VXR=144
VWR=148
VLANE=149; VT0=150
def acc(t,nt): return ACC+(t*2+nt)*16
def g_dma_addr(A,S):
    T=VT0
    A(f"""
    v_and_b32 v{VLANE}, 63, v0
    v_lshrrev_b32 v{T}, 3, v{VLANE}            ; L>>3
    v_and_b32 v{T+1}, 7, v{VLANE}              ; L&7
    v_lshrrev_b32 v{T+2}, 4, v{VLANE}          ; L>>4
    """)
    for jj in range(4):
        A(f"""
        v_add_u32 v{T+3}, {4*jj}, v{T+2}
        v_and_b32 v{T+3}, 7, v{T+3}
        v_xor_b32 v{T+3}, v{T+3}, v{T+1}
        v_lshlrev_b32 v{T+3}, 4, v{T+3}
        v_add_u32 v{T+4}, {8*jj}, v{T}
        v_mul_u32_u24 v{T+4}, 1280, v{T+4}
        v_add_u32 v{VXO+jj}, v{T+3}, v{T+4}
        """)
        if jj: A(f"v_subrev_u32 v{VXO+jj}, {1024*jj}, v{VXO+jj}")
    A(f"s_mov_b32 s{S['t0']}, {magic(12)}")
    for i in range(3):
        A(f"""
        v_add_u32 v{T+3}, {64*i}, v{VLANE}
        v_mul_hi_u32 v{T+4}, v{T+3}, s{S['t0']}
        v_mul_u32_u24 v{T+5}, 12, v{T+4}
        v_sub_u32 v{T+5}, v{T+3}, v{T+5}
        v_mul_u32_u24 v{T+4}, 3072, v{T+4}
        v_lshl_add_u32 v{VWO+i}, v{T+5}, 4, v{T+4}
        """)
        if i: A(f"v_subrev_u32 v{VWO+i}, {1024*i}, v{VWO+i}")
    A(f"""
    s_mul_i32 s{S['sx']}, s{S['rb']}, 163840
    s_mul_i32 s{S['t0']}, s{S['w']}, 40960
    s_add_u32 s{S['sx']}, s{S['sx']}, s{S['t0']}
    s_mul_i32 s{S['sw']}, s{S['cb']}, 192
    s_mul_i32 s{S['t0']}, s{S['w']}, 49152
    s_add_u32 s{S['sw']}, s{S['sw']}, s{S['t0']}
    s_lshl_b32 s{S['t0']}, s{S['rot']}, 7
    s_add_u32 s{S['sx']}, s{S['sx']}, s{S['t0']}
    s_mul_i32 s{S['t0']}, s{S['rot']}, {64*3072}
    s_add_u32 s{S['sw']}, s{S['sw']}, s{S['t0']}
    s_mov_b32 s{S['sl']}, s{S['rot']}
    s_lshl_b32 s{S['mx']}, s{S['w']}, 12
    s_mul_i32 s{S['mw']}, s{S['w']}, 3072
    s_add_u32 s{S['mw']}, s{S['mw']}, {WBASE}
    """)
def g_lds_addr(A,S):
    T=VT0
    A(f"""
    v_and_b32 v{T}, 31, v{VLANE}               ; n
    v_lshrrev_b32 v{T+1}, 5, v{VLANE}          ; g
    v_bfe_u32 v{T+2}, v{VLANE}, 1, 3           ; (n>>1)&7
    v_xor_b32 v{T+2}, v{T+2}, v{T+1}
    v_lshlrev_b32 v{T+2}, 4, v{T+2}
    s_lshl_b32 s{S['t0']}, s{S['wt']}, 6
    v_add_u32 v{T}, s{S['t0']}, v{T}
    v_lshl_add_u32 v{VXR}, v{T}, 7, v{T+2}
    v_xor_b32 v{VXR+1}, 32, v{VXR}
    v_xor_b32 v{VXR+2}, 64, v{VXR}
    v_xor_b32 v{VXR+3}, 96, v{VXR}
    v_bfe_u32 v{T}, v{VLANE}, 2, 2             ; r
    v_lshrrev_b32 v{T+1}, 5, v{VLANE}          ; g
    v_lshl_add_u32 v{T}, v{T+1}, 3, v{T}       ; 8g+r
    v_mul_u32_u24 v{T}, 192, v{T}
    v_bfe_u32 v{T+1}, v{VLANE}, 4, 1           ; grp
    v_lshl_add_u32 v{T}, v{T+1}, 4, v{T}
    v_and_b32 v{T+1}, 1, v{VLANE}
    v_lshl_add_u32 v{T}, v{T+1}, 3, v{T}
    v_bfe_u32 v{T+1}, v{VLANE}, 1, 1           ; c>=2
    v_mul_u32_u24 v{T+1}, {W3OFF}, v{T+1}
    v_add_u32 v{T}, v{T}, v{T+1}
    s_mul_i32 s{S['t0']}, s{S['wf']}, 96
    s_add_u32 s{S['t0']}, s{S['t0']}, {WBASE}
    v_add_u32 v{VWR}, s{S['t0']}, v{T}
    """)
def g_dma(S,stage):
    slot=stage%3; out=[]
    for jj in range(4):
        t=f"buffer_load_dwordx4 v{VXO+jj}, s[{S['srdx']}:{S['srdx']+3}], s{S['sx']} offen offset:{1024*jj} lds"
        if jj==0: t=f"s_add_u32 m0, s{S['mx']}, {XBASE+slot*XSLOT}\ns_nop 0\n"+t
        out.append(t)
    for i in range(3):
        t=f"buffer_load_dwordx4 v{VWO+i}, s[{S['srd1']}:{S['srd1']+3}], s{S['sw']} offen offset:{1024*i} lds"
        if i==0: t=f"s_add_u32 m0, s{S['mw']}, {slot*WSLOT}\ns_nop 0\n"+t
        out.append(t)
    for i in range(3):
        t=f"buffer_load_dwordx4 v{VWO+i}, s[{S['srd3']}:{S['srd3']+3}], s{S['sw']} offen offset:{1024*i} lds"
        if i==0: t=f"s_add_u32 m0, s{S['mw']}, {slot*WSLOT+W3OFF}\ns_nop 0\n"+t
        if i==2: t+=(f"\ns_add_u32 s{S['sl']}, s{S['sl']}, 1\ns_cmp_eq_u32 s{S['sl']}, 10\ns_cselect_b32 s{S['t0']}, 1280, 0"
                     f"\ns_cselect_b32 s{S['t1']}, {640*3072}, 0\ns_cselect_b32 s{S['sl']}, 0, s{S['sl']}"
                     f"\ns_add_u32 s{S['sx']}, s{S['sx']}, 128\ns_add_u32 s{S['sw']}, s{S['sw']}, {64*3072}"
                     f"\ns_sub_u32 s{S['sx']}, s{S['sx']}, s{S['t0']}\ns_sub_u32 s{S['sw']}, s{S['sw']}, s{S['t1']}")
        out.append(t)
    return out
def g_reads(stage,s,p):
    slot=stage%3
    def B(nt): return f"ds_read_b128 v[{FB+p*8+nt*4}:{FB+p*8+nt*4+3}], v{VXR+s} offset:{XBASE+slot*XSLOT+nt*4096}"
    def Aa(t,h):
        r=FA+p*12+t*4+2*h
        return f"ds_read_b64_tr_b16 v[{r}:{r+1}], v{VWR} offset:{slot*WSLOT+3072*s+768*h+32*t}"
    return [B(0),Aa(0,0),Aa(0,1),B(1),Aa(1,0),Aa(1,1),Aa(2,0),Aa(2,1)]
def g_mfma(p):
    out=[]
    for t in range(3):
        for nt in range(2):
            a=acc(t,nt)
            out.append(f"v_mfma_f32_32x32x16_bf16 v[{a}:{a+15}], v[{FA+p*12+t*4}:{FA+p*12+t*4+3}], v[{FB+p*8+nt*4}:{FB+p*8+nt*4+3}], v[{a}:{a+15}]")
    return out
def g_loop(A,S,stamp=None,PRE=2):
    issued=PRE
    for st in range(NST):
        A(f"s_waitcnt vmcnt({(issued-1-st)*10}) lgkmcnt(0)")
        if stamp: stamp(('pre',st))
        A("s_barrier")
        if stamp: stamp(st)
        dma=[]
        while issued<NST and issued-3<st:
            dma+=g_dma(S,issued); issued+=1
        for s in range(4):
            p=s&1
            reads=g_reads(st,s,p)
            dm=dma[(len(dma)*s)//4:(len(dma)*(s+1))//4] if dma else []
            if st==0 and s==0:
                for l in reads: A(l)
                for l in dm: A(l)
                continue
            if s!=0: A("s_waitcnt lgkmcnt(0)")
            m=g_mfma(p^1)
            A(m[0]); [A(l) for l in reads[0:3]]
            A(m[1]); [A(l) for l in reads[3:6]]
            A(m[2]); [A(l) for l in reads[6:8]]
            nd=len(dm); a=(nd+2)//3; b=(2*nd+2)//3
            A(m[3]); [A(l) for l in dm[:a]]
            A(m[4]); [A(l) for l in dm[a:b]]
            A(m[5]); [A(l) for l in dm[b:]]
    A("s_waitcnt lgkmcnt(0)")
    for l in g_mfma(1): A(l)
FS=160
FR=234
CSR=168
VHA=216
EP=218
def g_epilogue(A,S,srd,hbase=HF,flags=""):
    T=VT0
    A(f"""
    v_and_b32 v{T}, 31, v{VLANE}
    s_lshl_b32 s{S['t0']}, s{S['wt']}, 6
    v_add_u32 v{T}, s{S['t0']}, v{T}
    v_lshlrev_b32 v{T}, 3, v{T}
    v_add_u32 v{T}, {STAT}, v{T}
    v_lshrrev_b32 v{T+1}, 5, v{VLANE}
    v_lshlrev_b32 v{T+1}, 4, v{T+1}              ; g*16
    s_mul_i32 s{S['t1']}, s{S['wf']}, 192
    s_add_u32 s{S['t1']}, s{S['t1']}, {CSL}
    v_add_u32 v{T+1}, s{S['t1']}, v{T+1}
    """)
    for nt in range(2): A(f"ds_read_b64 v[{FS+2*nt}:{FS+2*nt+1}], v{T} offset:{256*nt}")
    for t in range(3):
        for q in range(4):
            hq,mat=q>>1,q&1
            A(f"ds_read_b128 v[{CSR+(t*4+q)*4}:{CSR+(t*4+q)*4+3}], v{T+1} offset:{mat*384+t*64+hq*32}")
    A(f"""
    v_and_b32 v{T}, 15, v{VLANE}                 ; n16
    v_bfe_u32 v{T+2}, v{VLANE}, 4, 1
    v_mul_u32_u24 v{T+2}, {48*1024}, v{T+2}
    v_lshl_add_u32 v{T+2}, v{T}, 4, v{T+2}
    v_lshrrev_b32 v{T}, 5, v{VLANE}
    v_lshl_add_u32 v{VHA}, v{T}, 8, v{T+2}       ; + g*256
    s_lshl_b32 s{S['t0']}, s{S['rb']}, 3
    s_lshl_b32 s{S['t1']}, s{S['wt']}, 2
    s_add_u32 s{S['t0']}, s{S['t0']}, s{S['t1']}
    s_mul_i32 s{S['t0']}, s{S['t0']}, 48
    s_mul_i32 s{S['t1']}, s{S['cb']}, 3
    s_add_u32 s{S['t0']}, s{S['t0']}, s{S['t1']}
    s_lshl_b32 s{S['t0']}, s{S['t0']}, 10
    s_add_u32 s{S['hb']}, s{S['t0']}, {hbase}
    """)
    for t in range(3):
        v0=(t>>1)*1024+(t&1)*512; v1=((3+t)>>1)*1024+((3+t)&1)*512
        A(f"s_mul_i32 s{S['t0']}, s{S['wf']}, {v1-v0}\ns_add_u32 s{S['t0']}, s{S['t0']}, {v0}\ns_add_u32 s{S['ho']+t}, s{S['t0']}, s{S['hb']}")
    A("s_waitcnt lgkmcnt(0)")
    for nt in range(2):
        m=FS+2*nt; r=m+1
        A(f"v_mul_f32 v{FR+4*nt}, 0xbfb8aa3b, v{r}\nv_mul_f32 v{FR+4*nt+2}, v{r}, v{r}\nv_sub_f32 v{m}, 0, v{m}")
    E=EP; k=0
    for t in range(3):
        for nt in range(2):
            a=acc(t,nt); negm=FS+2*nt; rp=FR+4*nt
            P=[(hq,ip) for hq in range(2) for ip in range(2)]
            G=lambda hq,ip: a+8*hq+2*ip
            U=lambda hq,ip: a+8*hq+4+2*ip
            CG=lambda hq,ip: CSR+(t*4+2*hq)*4+2*ip
            CU=lambda hq,ip: CSR+(t*4+2*hq+1)*4+2*ip
            O=EP+8+4*(k&1); k+=1
            for hq,ip in P: g=G(hq,ip); A(f"v_pk_fma_f32 v[{g}:{g+1}], v[{negm}:{negm+1}], v[{CG(hq,ip)}:{CG(hq,ip)+1}], v[{g}:{g+1}] op_sel_hi:[0,1,1]")
            for i,(hq,ip) in enumerate(P): g=G(hq,ip); A(f"v_pk_mul_f32 v[{E+2*i}:{E+2*i+1}], v[{g}:{g+1}], v[{rp}:{rp+1}] op_sel_hi:[1,0]")
            for hq,ip in P: u=U(hq,ip); A(f"v_pk_fma_f32 v[{u}:{u+1}], v[{negm}:{negm+1}], v[{CU(hq,ip)}:{CU(hq,ip)+1}], v[{u}:{u+1}] op_sel_hi:[0,1,1]")
            for i in range(8): A(f"v_exp_f32 v{E+i}, v{E+i}")
            for hq,ip in P: g=G(hq,ip); u=U(hq,ip); A(f"v_pk_mul_f32 v[{g}:{g+1}], v[{g}:{g+1}], v[{u}:{u+1}]")
            for i in range(4): A(f"v_pk_add_f32 v[{E+2*i}:{E+2*i+1}], v[{E+2*i}:{E+2*i+1}], 1.0 op_sel_hi:[1,0]")
            for hq,ip in P: g=G(hq,ip); A(f"v_pk_mul_f32 v[{g}:{g+1}], v[{g}:{g+1}], v[{rp+2}:{rp+3}] op_sel_hi:[1,0]")
            for i in range(8): A(f"v_rcp_f32 v{E+i}, v{E+i}")
            A("s_nop 0")
            for i,(hq,ip) in enumerate(P): g=G(hq,ip); A(f"v_pk_mul_f32 v[{g}:{g+1}], v[{g}:{g+1}], v[{E+2*i}:{E+2*i+1}]")
            for i,(hq,ip) in enumerate(P): g=G(hq,ip); A(f"v_cvt_pk_bf16_f32 v{O+i}, v{g}, v{g+1}")
            A(f"s_add_u32 s{S['t0']}, s{S['ho']+t}, {2*nt*48*1024}\ns_nop 0\nbuffer_store_dwordx4 v[{O}:{O+3}], v{VHA}, s[{srd}:{srd+3}], s{S['t0']} offen {flags}")

GL=160
def g_ln_loads(A,S):
    t=GL+36
    A(f"""
    v_lshrrev_b32 v{t}, 5, v{VLANE}
    v_and_b32 v{t+1}, 31, v{VLANE}
    v_mul_u32_u24 v{t+2}, 1280, v{t}
    v_lshl_add_u32 v{t+2}, v{t+1}, 4, v{t+2}
    s_lshl_b32 s{S['t0']}, s{S['wg']}, 3
    s_lshl_b32 s{S['t1']}, s{S['w']}, 1
    s_add_u32 s{S['t0']}, s{S['t0']}, s{S['t1']}
    s_mul_i32 s{S['lnb']}, s{S['t0']}, 1280
    v_mov_b32 v{GL+8}, 0
    v_mov_b32 v{GL+9}, 0
    v_mov_b32 v{GL+10}, 0
    v_mov_b32 v{GL+11}, 0
    """)
def g_ln_issue(A,S):
    t=GL+36
    A(f"""
    buffer_load_dwordx4 v[{GL}:{GL+3}], v{t+2}, s[{S['srdx']}:{S['srdx']+3}], s{S['lnb']} offen
    buffer_load_dwordx4 v[{GL+4}:{GL+7}], v{t+2}, s[{S['srdx']}:{S['srdx']+3}], s{S['lnb']} offen offset:512
    s_mov_b32 exec_lo, 0xffff
    s_mov_b32 exec_hi, 0xffff
    buffer_load_dwordx4 v[{GL+8}:{GL+11}], v{t+2}, s[{S['srdx']}:{S['srdx']+3}], s{S['lnb']} offen offset:1024
    s_mov_b64 exec, -1
    """)
def g_ln_compute(A,S,lb,rs,lst):
    F=GL+12; t=GL+36; M=t+4; R=t+6; T=t+8; NR=t+12
    for k in range(12):
        A(f"v_lshlrev_b32 v{F+2*k}, 16, v{GL+k}\nv_and_b32 v{F+2*k+1}, 0xffff0000, v{GL+k}")
    A(f"v_pk_add_f32 v[{M}:{M+1}], v[{F}:{F+1}], v[{F+2}:{F+3}]\nv_pk_mul_f32 v[{R}:{R+1}], v[{F}:{F+1}], v[{F}:{F+1}]")
    A(f"v_pk_fma_f32 v[{R}:{R+1}], v[{F+2}:{F+3}], v[{F+2}:{F+3}], v[{R}:{R+1}]")
    for k in range(2,12):
        f=F+2*k
        A(f"v_pk_add_f32 v[{M}:{M+1}], v[{M}:{M+1}], v[{f}:{f+1}]\nv_pk_fma_f32 v[{R}:{R+1}], v[{f}:{f+1}], v[{f}:{f+1}], v[{R}:{R+1}]")
    A(f"s_nop 0\nv_add_f32 v{M}, v{M}, v{M+1}\nv_add_f32 v{R}, v{R}, v{R+1}")
    for mod in ("quad_perm:[1,0,3,2]","quad_perm:[2,3,0,1]","row_half_mirror","row_mirror"):
        A(f"s_nop 1\nv_add_f32_dpp v{M}, v{M}, v{M} {mod} row_mask:0xf bank_mask:0xf\nv_add_f32_dpp v{R}, v{R}, v{R} {mod} row_mask:0xf bank_mask:0xf")
    A(f"""
    v_mov_b32 v{T}, v{M}
    v_mov_b32 v{T+1}, v{R}
    s_nop 1
    v_permlane16_swap_b32 v{T}, v{M}
    v_permlane16_swap_b32 v{T+1}, v{R}
    s_nop 1
    v_add_f32 v{M}, v{M}, v{T}
    v_add_f32 v{R}, v{R}, v{T+1}
    v_mul_f32 v{M}, 0x3acccccd, v{M}
    v_mul_f32 v{R}, 0x3acccccd, v{R}
    v_fma_f32 v{R}, -v{M}, v{M}, v{R}
    v_max_f32 v{R}, 0, v{R}
    v_cvt_pk_bf16_f32 v{R}, v{R}, v{R}
    v_cvt_pk_bf16_f32 v{M}, v{M}, v{M}
    v_lshlrev_b32 v{R}, 16, v{R}
    v_lshlrev_b32 v{M}, 16, v{M}
    v_add_f32 v{R}, 0x3727c5ac, v{R}
    v_cvt_pk_bf16_f32 v{R}, v{R}, v{R}
    v_lshlrev_b32 v{R}, 16, v{R}
    v_sqrt_f32 v{R}, v{R}
    s_nop 0
    v_cvt_pk_bf16_f32 v{R}, v{R}, v{R}
    v_lshlrev_b32 v{R}, 16, v{R}
    v_rcp_f32 v{R}, v{R}
    s_nop 0
    v_mov_b32 v{M+1}, v{R}
    v_mul_f32 v{NR}, v{M}, v{R}
    v_mov_b32 v{NR+2}, v{R}
    v_sub_f32 v{NR}, 0, v{NR}
    v_lshrrev_b32 v{T}, 5, v{VLANE}
    s_lshl_b32 s{S['t1']}, s{S['w']}, 1
    v_add_u32 v{T}, s{S['t1']}, v{T}
    v_lshlrev_b32 v{T+1}, 3, v{T}
    v_add_u32 v{T+1}, {lst}, v{T+1}
    v_mul_u32_u24 v{T}, {rs}, v{T}
    v_and_b32 v{T+2}, 31, v{VLANE}
    v_lshl_add_u32 v{T}, v{T+2}, 4, v{T}
    v_add_u32 v{T}, {lb}, v{T}
    """)
    for k in range(12):
        f=F+2*k
        A(f"v_pk_fma_f32 v[{f}:{f+1}], v[{f}:{f+1}], v[{NR+2}:{NR+3}], v[{NR}:{NR+1}] op_sel_hi:[1,0,0]")
    for k in range(12):
        f=F+2*k
        A(f"v_cvt_pk_bf16_f32 v{GL+k}, v{f}, v{f+1}")
    A(f"""
    ds_write_b128 v{T}, v[{GL}:{GL+3}]
    ds_write_b128 v{T}, v[{GL+4}:{GL+7}] offset:512
    s_mov_b32 exec_lo, 0xffff
    s_mov_b32 exec_hi, 0xffff
    ds_write_b128 v{T}, v[{GL+8}:{GL+11}] offset:1024
    s_mov_b32 exec_lo, 1
    s_mov_b32 exec_hi, 1
    ds_write_b64 v{T+1}, v[{M}:{M+1}]
    s_mov_b64 exec, -1
    """)
```

```python
import os
from asmlib import *
from sched import *
from layout import *
from g32lib import WBASE,WSLOT,W3OFF,STAT,CSL,HSCR
LNRS=1344
LNSCR=8*LNRS
LR=32
LF=72
LS=232
def ln_loads(P,S,lane):
    t=LS
    P.i(f"""
    v_lshrrev_b32 v{t}, 3, v{lane}
    v_and_b32 v{t+1}, 7, v{lane}
    v_mul_u32_u24 v{t+2}, 1280, v{t}
    v_lshl_add_u32 v{t+2}, v{t+1}, 4, v{t+2}
    s_mul_i32 s{S['h0']}, s{S['wg']}, {8*1280}
    """)
    for i in range(10):
        P.vl(f"buffer_load_dwordx4 v[{LR+4*i}:{LR+4*i+3}], v{t+2}, s[{S['srdx']}:{S['srdx']+3}], s{S['h0']} offen offset:{128*i}",'ln',cost=30)
def ln_stats(P,S,lane,srd,flags,pk=True):
    t=LS; SM=LS+4; SQ=LS+6
    P.wv('ln')
    P.i(f"v_mov_b32 v{SM}, 0\nv_mov_b32 v{SM+1}, 0\nv_mov_b32 v{SQ}, 0\nv_mov_b32 v{SQ+1}, 0\nv_mov_b32 v{SM+4}, 0\nv_mov_b32 v{SM+5}, 0\nv_mov_b32 v{SQ+4}, 0\nv_mov_b32 v{SQ+5}, 0")
    for k in range(40):
        f=LF+2*k; a=SM+4*(k&1); b=SQ+4*(k&1)
        P.i(f"v_lshlrev_b32 v{f}, 16, v{LR+k}\nv_and_b32 v{f+1}, 0xffff0000, v{LR+k}")
        if pk:
            P.i(f"v_pk_add_f32 v[{a}:{a+1}], v[{a}:{a+1}], v[{f}:{f+1}]",cost=5)
            P.i(f"v_pk_fma_f32 v[{b}:{b+1}], v[{f}:{f+1}], v[{f}:{f+1}], v[{b}:{b+1}]",cost=5)
        else:
            P.i(f"v_add_f32 v{a}, v{a}, v{f}\nv_add_f32 v{a+1}, v{a+1}, v{f+1}\nv_fmac_f32 v{b}, v{f}, v{f}\nv_fmac_f32 v{b+1}, v{f+1}, v{f+1}",cost=6)
    P.i(f"""
    v_add_f32 v{SM}, v{SM}, v{SM+4}
    v_add_f32 v{SM+1}, v{SM+1}, v{SM+5}
    v_add_f32 v{SQ}, v{SQ}, v{SQ+4}
    v_add_f32 v{SQ+1}, v{SQ+1}, v{SQ+5}
    v_add_f32 v{SM}, v{SM}, v{SM+1}
    v_add_f32 v{SQ}, v{SQ}, v{SQ+1}
    """)
    for mod in ("quad_perm:[1,0,3,2]","quad_perm:[2,3,0,1]","row_half_mirror"):
        P.atom(f"s_nop 1\nv_add_f32_dpp v{SM}, v{SM}, v{SM} {mod} row_mask:0xf bank_mask:0xf\nv_add_f32_dpp v{SQ}, v{SQ}, v{SQ} {mod} row_mask:0xf bank_mask:0xf",cost=16)
    M=SM; R=SQ; NR=LS+12
    P.i(f"""
    v_mul_f32 v{M}, 0x3acccccd, v{M}
    v_mul_f32 v{R}, 0x3acccccd, v{R}
    v_fma_f32 v{R}, -v{M}, v{M}, v{R}
    v_max_f32 v{R}, 0, v{R}
    v_cvt_pk_bf16_f32 v{R}, v{R}, v{R}
    v_cvt_pk_bf16_f32 v{M}, v{M}, v{M}
    v_lshlrev_b32 v{R}, 16, v{R}
    v_lshlrev_b32 v{M}, 16, v{M}
    v_add_f32 v{R}, 0x3727c5ac, v{R}
    v_cvt_pk_bf16_f32 v{R}, v{R}, v{R}
    v_lshlrev_b32 v{R}, 16, v{R}
    v_sqrt_f32 v{R}, v{R}
    s_nop 0
    v_cvt_pk_bf16_f32 v{R}, v{R}, v{R}
    v_lshlrev_b32 v{R}, 16, v{R}
    v_rcp_f32 v{R}, v{R}
    s_nop 0
    v_mov_b32 v{M+1}, v{R}
    v_mul_f32 v{NR}, v{M}, v{R}
    v_sub_f32 v{NR}, 0, v{NR}
    v_mov_b32 v{NR+1}, v{R}
    """)
    sv=S['sv']
    P.i(f"v_lshrrev_b32 v{t}, 3, v{lane}\nv_lshlrev_b32 v{t+1}, 3, v{t}\ns_lshl_b32 s{S['h0']}, s{S['wg']}, 6\ns_add_u32 s{S['h0']}, s{S['h0']}, {STG}")
    P.lock()
    P.atom(f"s_mov_b64 s[{sv}:{sv+1}], exec\ns_mov_b32 exec_lo, 0x01010101\ns_mov_b32 exec_hi, 0x01010101")
    P.vs(f"buffer_store_dwordx2 v[{M}:{M+1}], v{t+1}, s[{srd}:{srd+3}], s{S['h0']} offen {flags}",'pub1')
    P.atom(f"s_mov_b64 exec, s[{sv}:{sv+1}]")
    P.unlock()
def ln_norm(P,S,lane,srd,flags):
    t=LS; NR=LS+12
    P.i(f"""
    v_lshrrev_b32 v{t}, 3, v{lane}
    v_and_b32 v{t+1}, 7, v{lane}
    v_mul_u32_u24 v{t+2}, {LNRS}, v{t}
    v_lshl_add_u32 v{t+2}, v{t+1}, 4, v{t+2}
    v_add_u32 v{t+2}, s{S['lb']}, v{t+2}
    """)
    for i in range(10):
        for k in range(4):
            f=LF+2*(4*i+k)
            if True:
                P.i(f"v_fma_f32 v{f}, v{f}, v{NR+1}, v{NR}\nv_fma_f32 v{f+1}, v{f+1}, v{NR+1}, v{NR}")
            else:
                P.i(f"v_pk_fma_f32 v[{f}:{f+1}], v[{f}:{f+1}], v[{NR}:{NR+1}], v[{NR}:{NR+1}] op_sel:[0,1,0] op_sel_hi:[1,1,0]",cost=5)
            P.i(f"v_cvt_pk_bf16_f32 v{LR+4*i+k}, v{f}, v{f+1}",cost=5)
        P.l(f"ds_write_b128 v{t+2}, v[{LR+4*i}:{LR+4*i+3}] offset:{128*i}",cost=30)
    P.i(f"""
    v_bfe_u32 v{t}, v{lane}, 2, 2
    v_mul_u32_u24 v{t}, {LNRS}, v{t}
    v_lshrrev_b32 v{t+1}, 4, v{lane}
    v_lshl_add_u32 v{t}, v{t+1}, 5, v{t}
    v_and_b32 v{t+1}, 3, v{lane}
    v_lshl_add_u32 v{t}, v{t+1}, 3, v{t}
    v_add_u32 v{t}, s{S['lb']}, v{t}
    v_lshlrev_b32 v{t+3}, 4, v{lane}
    s_mul_i32 s{S['h0']}, s{S['wg']}, 10240
    s_add_u32 s{S['h0']}, s{S['h0']}, {XT}
    """)
    if os.environ.get('LNWAIT'): P.wl()
    for i2 in range(10):
        for h in range(2):
            P.l(f"ds_read_b64_tr_b16 v[{LF+4*i2+2*h}:{LF+4*i2+2*h+1}], v{t} offset:{128*i2+4*LNRS*h}",('lt',i2))
        if os.environ.get('LNWAIT') and i2%4==3: P.wl()
    for i2 in range(10):
        P.wl(('lt',i2))
        if i2%4==0 and i2: P.i(f"s_add_u32 s{S['h0']}, s{S['h0']}, 4096")
        P.vs(f"buffer_store_dwordx4 v[{LF+4*i2}:{LF+4*i2+3}], v{t+3}, s[{srd}:{srd+3}], s{S['h0']} offen offset:{1024*(i2%4)} {flags}",'pub2',cost=80)
CFR=152
CD=32
CONE=216
CA=220
CF=226
def CDR(i): return 104+4*i
def cs_setup(P,S,lane):
    t=CF
    P.i(f"""
    v_lshrrev_b32 v{t+1}, 4, v{lane}          ; g
    v_bfe_u32 v{t}, v{lane}, 2, 2             ; r
    v_lshl_add_u32 v{t}, v{t+1}, 3, v{t}
    v_mul_u32_u24 v{t}, 192, v{t}
    v_and_b32 v{t+2}, 3, v{lane}
    v_lshl_add_u32 v{t}, v{t+2}, 3, v{t}
    v_add_u32 v{CA}, {WBASE}, v{t}
    """)
    for i in range(4): P.i(f"v_mov_b32 v{CONE+i}, 0x3f803f80")

CSEQ=[(mat,c) for mat in range(2) for c in range(6)]
CFR2=208
def cs_reads(P,S,s):
    for i,(mat,c) in enumerate(CSEQ):
        b=CFR+4*i
        for h in range(2): P.l(f"ds_read_b64_tr_b16 v[{b+2*h}:{b+2*h+1}], v{CA} offset:{mat*W3OFF+6144*s+768*h+32*c}",('cs',s),cost=8)
def cs_mfma(P,S,s):
    P.wl(('cs',s))
    P.lock(); P.atom("s_setprio 1")
    for i,(mat,c) in enumerate(CSEQ):
        b=CFR+4*i; d=CDR(i)
        src=f"v[{d}:{d+3}]" if s else "0"
        P.i(f"v_mfma_f32_16x16x32_bf16 v[{d}:{d+3}], v[{b}:{b+3}], v[{CONE}:{CONE+3}], {src}",cost=17)
    P.atom("s_setprio 0"); P.unlock()
def cs_store(P,S,lane,srd,flags):
    sv=S['sv']; t=CF
    P.i(f"""
    s_nop 7
    v_lshrrev_b32 v{t}, 4, v{lane}
    v_lshlrev_b32 v{t}, 4, v{t}
    v_add_u32 v{t}, s{S['lb']}, v{t}
    v_lshlrev_b32 v{t+1}, 4, v{lane}
    v_add_u32 v{t+2}, s{S['lb']}, v{t+1}
    s_mul_i32 s{S['h0']}, s{S['cb']}, {16*768}
    s_mul_i32 s{S['h1']}, s{S['rb']}, 768
    s_add_u32 s{S['h0']}, s{S['h0']}, s{S['h1']}
    s_add_u32 s{S['h0']}, s{S['h0']}, {PCS}
    """)
    P.lock()
    P.atom(f"s_mov_b64 s[{sv}:{sv+1}], exec\ns_mov_b32 exec_lo, 0x00010001\ns_mov_b32 exec_hi, 0x00010001")
    for i,(mat,c) in enumerate(CSEQ):
        d=CDR(i)
        P.l(f"ds_write_b128 v{t}, v[{d}:{d+3}] offset:{mat*384+c*64}",cost=12)
    P.atom(f"s_mov_b32 exec_lo, -1\ns_mov_b32 exec_hi, 0xffff")
    P.l(f"ds_read_b128 v[{CFR}:{CFR+3}], v{t+2}",'cso')
    P.wl('cso')
    P.vs(f"buffer_store_dwordx4 v[{CFR}:{CFR+3}], v{t+1}, s[{srd}:{srd+3}], s{S['h0']} offen {flags}",'pub1',cost=50)
    P.atom(f"s_mov_b64 exec, s[{sv}:{sv+1}]")
    P.unlock()
WA=32
WR=38
WF=40
def w2_setup(P,S,lane):
    t=WF
    P.i(f"s_mov_b32 s{S['h0']}, {magic(10)}")
    for i in range(5):
        P.i(f"""
        v_add_u32 v{t}, {64*i}, v{lane}
        v_mul_hi_u32 v{t+1}, v{t}, s{S['h0']}
        v_mul_u32_u24 v{t+2}, 10, v{t+1}
        v_sub_u32 v{t+2}, v{t}, v{t+2}
        v_mul_u32_u24 v{t+1}, 1280, v{t+1}
        v_lshl_add_u32 v{WA+i}, v{t+2}, 4, v{t+1}
        """)
    P.i(f"""
    v_bfe_u32 v{t}, v{lane}, 5, 1
    v_lshlrev_b32 v{t}, 4, v{t}               ; 16*(g>>1)
    v_bfe_u32 v{t+1}, v{lane}, 4, 1
    v_lshl_add_u32 v{t}, v{t+1}, 2, v{t}      ; +4*(g&1)
    v_bfe_u32 v{t+1}, v{lane}, 2, 2
    v_add_u32 v{t}, v{t}, v{t+1}              ; +r
    v_mul_u32_u24 v{t}, 160, v{t}
    v_and_b32 v{t+1}, 3, v{lane}
    v_mul_u32_u24 v{t+1}, 40, v{t+1}
    v_add_u32 v{t}, v{t}, v{t+1}
    v_add_u32 v{WR}, s{S['lb']}, v{t}
    v_lshlrev_b32 v{WR+1}, 4, v{lane}
    """)
def w2_unit(P,S,k,srdw2,srd,flags):
    h0,h1,h2=S['h0'],S['h1'],S['h2']
    P.i(f"""
    s_mul_i32 s{h0}, s{S['u']}, 3
    s_add_u32 s{h0}, s{h0}, {k}
    s_mul_hi_u32 s{h1}, s{h0}, s{S['m48']}     ; db
    s_mul_i32 s{h2}, s{h1}, 48
    s_sub_u32 s{h0}, s{h0}, s{h2}              ; sigma
    s_mul_i32 s{h2}, s{h0}, {32*1280}
    s_mul_i32 s{S['h3']}, s{h1}, 160
    s_add_u32 s{h2}, s{h2}, s{S['h3']}
    """)
    for i in range(5):
        P.vl(f"s_add_u32 m0, s{S['lb']}, {1024*i}\ns_nop 0\nbuffer_load_dwordx4 v{WA+i}, s[{srdw2}:{srdw2+3}], s{h2} offen lds",('w2',k),cost=53)
    P.i(f"""
    s_mul_i32 s{h1}, s{h1}, {5*48}
    s_add_u32 s{h1}, s{h1}, s{h0}
    s_lshl_b32 s{h1}, s{h1}, 10
    s_add_u32 s{h1}, s{h1}, {W2F}
    """)
    P.wv(('w2',k))
    for dt in range(5):
        for h in range(2):
            P.l(f"ds_read_b64_tr_b16 v[{WF+4*dt+2*h}:{WF+4*dt+2*h+1}], v{WR} offset:{8*dt+1280*h}",('wt',k,dt))
    for dt in range(5):
        P.wl(('wt',k,dt))
        P.vs(f"buffer_store_dwordx4 v[{WF+4*dt}:{WF+4*dt+3}], v{WR+1}, s[{srd}:{srd+3}], s{h1} offen {flags}")
        if dt<4: P.i(f"s_add_u32 s{h1}, s{h1}, {48*1024}")

FV=248
def fl_clear(P,S,srd):
    t=FV
    P.i(f"""
    v_mov_b32 v{t}, 0
    v_mov_b32 v{t+1}, 0
    s_lshr_b32 s{S['h0']}, s{S['wg']}, 4
    s_lshl_b32 s{S['h0']}, s{S['h0']}, 7
    s_and_b32 s{S['h1']}, s{S['wg']}, 15
    s_lshl_b32 s{S['h1']}, s{S['h1']}, 2
    s_add_u32 s{S['h0']}, s{S['h0']}, s{S['h1']}
    s_add_u32 s{S['fst']}, s{S['h0']}, {FST}
    s_lshl_b32 s{S['h0']}, s{S['cb']}, 7
    s_lshl_b32 s{S['h1']}, s{S['rb']}, 2
    s_add_u32 s{S['h0']}, s{S['h0']}, s{S['h1']}
    s_add_u32 s{S['fcs']}, s{S['h0']}, {FCS}
    s_lshl_b32 s{S['h0']}, s{S['x']}, 5
    s_add_u32 s{S['h0']}, s{S['h0']}, s{S['j']}
    s_lshl_b32 s{S['h0']}, s{S['h0']}, 7
    s_add_u32 s{S['h0']}, s{S['h0']}, {FD}
    s_sub_u32 s{S['h1']}, 3, s{S['nch']}
    v_mov_b32 v{t+4}, 0
    v_mov_b32 v{t+5}, 0
    v_mov_b32 v{t+6}, s{S['h1']}
    v_mov_b32 v{t+7}, 0
    """)
    sv=S['sv']
    P.lock()
    P.atom(f"s_mov_b64 s[{sv}:{sv+1}], exec\ns_mov_b64 exec, 1")
    P.vs(f"buffer_store_dword v{t}, v{t+1}, s[{srd}:{srd+3}], s{S['fst']} offen sc1",'clr')
    P.vs(f"buffer_store_dword v{t}, v{t+1}, s[{srd}:{srd+3}], s{S['fcs']} offen sc1",'clr')
    P.vs(f"buffer_store_dwordx4 v[{t+4}:{t+7}], v{t+1}, s[{srd}:{srd+3}], s{S['h0']} offen sc1",'clr')
    P.atom(f"s_mov_b64 exec, s[{sv}:{sv+1}]")
    P.unlock()
def fl_cleared(P,S,srddbg):
    t=FV; sv=S['sv']
    P.wv('clr')
    P.i(f"s_and_b32 s{S['h0']}, s{S['wg']}, 1\ns_lshl_b32 s{S['h0']}, s{S['h0']}, 7\nv_mov_b32 v{t+2}, 1\nv_mov_b32 v{t+1}, 0")
    P.lock()
    P.atom(f"s_mov_b64 s[{sv}:{sv+1}], exec\ns_mov_b64 exec, 1")
    P.vs(f"buffer_atomic_add v{t+2}, v{t+1}, s[{srddbg}:{srddbg+3}], s{S['h0']} offen sc1")
    P.atom(f"s_mov_b64 exec, s[{sv}:{sv+1}]")
    P.unlock()
def fl_set(P,S,srd):
    t=FV; sv=S['sv']
    P.wv('pub')
    P.i(f"v_mov_b32 v{t+2}, 1\nv_mov_b32 v{t+1}, 0")
    P.lock()
    P.atom(f"s_mov_b64 s[{sv}:{sv+1}], exec\ns_mov_b64 exec, 1")
    P.vs(f"buffer_store_dword v{t+2}, v{t+1}, s[{srd}:{srd+3}], s{S['fst']} offen sc1")
    P.vs(f"buffer_store_dword v{t+2}, v{t+1}, s[{srd}:{srd+3}], s{S['fcs']} offen sc1")
    P.atom(f"s_mov_b64 exec, s[{sv}:{sv+1}]")
    P.unlock()
GA=32
def ga_clr_load(P,S,lane,srddbg):
    P.i(f"v_and_b32 v{GA}, 1, v{lane}\nv_lshlrev_b32 v{GA}, 7, v{GA}")
    P.vl(f"buffer_load_dword v{GA+1}, v{GA}, s[{srddbg}:{srddbg+3}], 0 offen sc1",'g1')
def ga_clr_check(P,S,lane,srddbg,srd,uid):
    P.wv('g1')
    P.atom(f"""
    Lgc{uid}:
    v_cmp_eq_u32 vcc, 128, v{GA+1}
    s_nop 1
    s_cmp_eq_u64 vcc, exec
    s_cbranch_scc1 Lgcok{uid}
    s_sleep 2
    buffer_load_dword v{GA+1}, v{GA}, s[{srddbg}:{srddbg+3}], 0 offen sc1
    s_waitcnt vmcnt(0)
    s_branch Lgc{uid}
    Lgcok{uid}:
    """,cost=20)
    P.i(f"""
    v_and_b32 v{GA+2}, 15, v{lane}
    v_lshlrev_b32 v{GA+2}, 2, v{GA+2}
    s_lshl_b32 s{S['h0']}, s{S['rb']}, 7
    s_add_u32 s{S['h0']}, s{S['h0']}, {FST}
    s_lshl_b32 s{S['h1']}, s{S['cb']}, 7
    s_add_u32 s{S['h1']}, s{S['h1']}, {FCS}
    v_add_u32 v{GA+3}, s{S['h0']}, v{GA+2}
    v_add_u32 v{GA+4}, s{S['h1']}, v{GA+2}
    v_mov_b32 v{GA+5}, s{S['h0']}
    v_cmp_gt_u32 vcc, 16, v{lane}
    s_nop 1
    v_cndmask_b32 v{GA+4}, v{GA+4}, v{GA+3}, vcc
    v_cmp_lt_u32 vcc, 25, v{lane}
    s_nop 1
    v_cndmask_b32 v{GA+4}, v{GA+4}, v{GA+5}, vcc
    """)
    P.vl(f"buffer_load_dword v{GA+6}, v{GA+4}, s[{srd}:{srd+3}], 0 offen sc1",'g2')
def ga_flag_check(P,S,lane,srd,uid):
    P.wv('g2')
    P.atom(f"""
    Lgf{uid}:
    v_cmp_eq_u32 vcc, 1, v{GA+6}
    s_nop 1
    s_cmp_eq_u64 vcc, exec
    s_cbranch_scc1 Lgfok{uid}
    s_sleep 2
    buffer_load_dword v{GA+6}, v{GA+4}, s[{srd}:{srd+3}], 0 offen sc1
    s_waitcnt vmcnt(0)
    s_branch Lgf{uid}
    Lgfok{uid}:
    """,cost=20)
    P.i(f"""
    v_lshlrev_b32 v{GA+7}, 4, v{lane}
    s_lshl_b32 s{S['h0']}, s{S['rb']}, 10
    s_add_u32 s{S['h0']}, s{S['h0']}, {STG}
    s_mul_i32 s{S['h1']}, s{S['cb']}, {16*768}
    s_add_u32 s{S['h1']}, s{S['h1']}, {PCS}
    """)
    P.vl(f"buffer_load_dwordx4 v[{GA+8}:{GA+11}], v{GA+7}, s[{srd}:{srd+3}], s{S['h0']} offen sc1",'g3')
    for r in range(10):
        P.vl(f"s_add_u32 s{S['h2']}, s{S['h1']}, {768*r}\nbuffer_load_dwordx4 v[{GA+12+4*r}:{GA+15+4*r}], v{GA+7}, s[{srd}:{srd+3}], s{S['h2']} offen sc1",'g3')
def ga_finish(P,S,lane):
    P.wv('g3')
    b=GA+12
    for r in range(1,10):
        for k in range(4): P.i(f"v_add_f32 v{b+k}, v{b+k}, v{b+4*r+k}",cost=5)
    sv=S['sv']
    P.i(f"v_add_u32 v{GA+6}, {STAT}, v{GA+7}\nv_add_u32 v{GA+5}, {CSL}, v{GA+7}")
    P.l(f"ds_write_b128 v{GA+6}, v[{GA+8}:{GA+11}]")
    P.lock()
    P.atom(f"s_mov_b64 s[{sv}:{sv+1}], exec\ns_mov_b32 exec_lo, -1\ns_mov_b32 exec_hi, 0xffff")
    P.l(f"ds_write_b128 v{GA+5}, v[{b}:{b+3}]")
    P.atom(f"s_mov_b64 exec, s[{sv}:{sv+1}]")
    P.unlock()
    P.wl()

SPIN=1<<17
def s3_clear(P,S,srd):
    t=FV
    P.i(f"""
    v_mov_b32 v{t}, 0
    v_mov_b32 v{t+1}, 0
    s_lshl_b32 s{S['h0']}, s{S['wg']}, 2
    s_add_u32 s{S['fst']}, s{S['h0']}, {FL}
    s_sub_u32 s{S['h0']}, s{S['j']}, 16
    s_lshl_b32 s{S['h0']}, s{S['h0']}, 3
    s_add_u32 s{S['h0']}, s{S['h0']}, s{S['x']}
    s_and_b32 s{S['h1']}, s{S['wg']}, 127
    s_add_u32 s{S['h1']}, s{S['h1']}, 128
    """)
    P.atom(f"s_cmp_ge_u32 s{S['j']}, 16\ns_cselect_b32 s{S['h0']}, s{S['h0']}, s{S['h1']}")
    P.i(f"""
    s_lshl_b32 s{S['h0']}, s{S['h0']}, 2
    s_add_u32 s{S['h2']}, s{S['h0']}, {FW}
    s_lshl_b32 s{S['h0']}, s{S['rb']}, 4
    s_add_u32 s{S['h0']}, s{S['h0']}, s{S['cb']}
    s_lshl_b32 s{S['h0']}, s{S['h0']}, 7
    s_add_u32 s{S['h3']}, s{S['h0']}, {FH}
    s_lshl_b32 s{S['h0']}, s{S['x']}, 5
    s_add_u32 s{S['h0']}, s{S['h0']}, s{S['j']}
    s_lshl_b32 s{S['h0']}, s{S['h0']}, 7
    s_add_u32 s{S['h0']}, s{S['h0']}, {FD}
    s_sub_u32 s{S['h1']}, 3, s{S['nch']}
    v_mov_b32 v{t+4}, 0
    v_mov_b32 v{t+5}, 0
    v_mov_b32 v{t+6}, s{S['h1']}
    v_mov_b32 v{t+7}, 0
    """)
    sv=S['sv']
    P.lock()
    P.atom(f"s_mov_b64 s[{sv}:{sv+1}], exec\ns_mov_b64 exec, 1")
    for r in ('fst','h2','h3'):
        P.vs(f"buffer_store_dword v{t}, v{t+1}, s[{srd}:{srd+3}], s{S[r]} offen sc1",'clr',cost=30)
    P.atom(f"s_add_u32 s{S['h1']}, s{S['fst']}, {FX-FL}")
    P.vs(f"buffer_store_dword v{t}, v{t+1}, s[{srd}:{srd+3}], s{S['h1']} offen sc1",'clr',cost=30)
    P.vs(f"buffer_store_dwordx4 v[{t+4}:{t+7}], v{t+1}, s[{srd}:{srd+3}], s{S['h0']} offen sc1",'clr',cost=30)
    P.atom(f"s_mov_b64 exec, s[{sv}:{sv+1}]")
    P.unlock()
def s3_set_fl(P,S,srd,tag='pub1',extra=0):
    t=FV; sv=S['sv']
    P.wv(tag)
    P.i(f"v_mov_b32 v{t+2}, 1\nv_mov_b32 v{t+1}, 0\ns_add_u32 s{S['h0']}, s{S['fst']}, {extra}")
    P.lock()
    P.atom(f"s_mov_b64 s[{sv}:{sv+1}], exec\ns_mov_b64 exec, 1")
    P.vs(f"buffer_store_dword v{t+2}, v{t+1}, s[{srd}:{srd+3}], s{S['h0']} offen sc1",cost=30)
    P.atom(f"s_mov_b64 exec, s[{sv}:{sv+1}]")
    P.unlock()
def s3_set_fw(P,S,srd,t):
    sv=S['sv']
    P.wv('w2pub')
    P.i(f"v_mov_b32 v{t}, 1\nv_mov_b32 v{t+1}, 0\ns_lshl_b32 s{S['h0']}, s{S['u']}, 2\ns_add_u32 s{S['h0']}, s{S['h0']}, {FW}")
    P.lock()
    P.atom(f"s_mov_b64 s[{sv}:{sv+1}], exec\ns_mov_b64 exec, 1")
    P.vs(f"buffer_store_dword v{t}, v{t+1}, s[{srd}:{srd+3}], s{S['h0']} offen sc1",cost=30)
    P.atom(f"s_mov_b64 exec, s[{sv}:{sv+1}]")
    P.unlock()
def spin(uid,load,check,S,endlab):
    return f"""
    s_mov_b32 s{S['spin']}, 0
    Lsp{uid}:
    {check}
    s_nop 1
    s_cmp_eq_u64 vcc, exec
    s_cbranch_scc1 Lspok{uid}
    s_add_u32 s{S['spin']}, s{S['spin']}, 1
    s_cmp_gt_u32 s{S['spin']}, {SPIN}
    s_cbranch_scc1 {endlab}
    s_sleep 16
    {load}
    s_waitcnt vmcnt(0)
    s_branch Lsp{uid}
    Lspok{uid}:
    """
def s3_ga_clr_load(P,S,lane,srddbg):
    P.i(f"v_and_b32 v{GA}, 1, v{lane}\nv_lshlrev_b32 v{GA}, 7, v{GA}")
    P.vl(f"buffer_load_dword v{GA+1}, v{GA}, s[{srddbg}:{srddbg+3}], 0 offen sc1",'g1',cost=30)
def s3_ga_clr_check(P,S,lane,srddbg,srd,endlab):
    P.wv('g1')
    P.atom(spin('clr',f"buffer_load_dword v{GA+1}, v{GA}, s[{srddbg}:{srddbg+3}], 0 offen sc1",f"v_cmp_eq_u32 vcc, 128, v{GA+1}",S,endlab),cost=30)
    P.i(f"""
    v_lshlrev_b32 v{GA+2}, 4, v{lane}
    v_and_b32 v{GA+3}, 15, v{lane}
    v_lshlrev_b32 v{GA+3}, 2, v{GA+3}
    s_lshl_b32 s{S['h0']}, s{S['db']}, 6
    s_add_u32 s{S['h3']}, s{S['h0']}, {FW}
    s_mov_b32 s{S['h2']}, {FL}
    """)
    P.vl(f"buffer_load_dwordx4 v[{GA+4}:{GA+7}], v{GA+2}, s[{srd}:{srd+3}], s{S['h2']} offen sc1",'g2',cost=30)
    P.vl(f"buffer_load_dword v{GA+8}, v{GA+3}, s[{srd}:{srd+3}], s{S['h3']} offen sc1",'g2',cost=30)
def s3_ga_flag_check(P,S,lane,srd,endlab):
    P.wv('g2')
    ld=f"buffer_load_dwordx4 v[{GA+4}:{GA+7}], v{GA+2}, s[{srd}:{srd+3}], s{S['h2']} offen sc1\nbuffer_load_dword v{GA+8}, v{GA+3}, s[{srd}:{srd+3}], s{S['h3']} offen sc1"
    ck=f"v_and_b32 v{GA+9}, v{GA+4}, v{GA+5}\nv_and_b32 v{GA+10}, v{GA+6}, v{GA+7}\nv_and_b32 v{GA+9}, v{GA+9}, v{GA+10}\nv_and_b32 v{GA+9}, v{GA+9}, v{GA+8}\nv_cmp_eq_u32 vcc, 1, v{GA+9}"
    P.atom(spin('fl',ld,ck,S,endlab),cost=40)
    G2=GA+12
    P.i(f"""
    v_lshlrev_b32 v{GA+7}, 4, v{lane}
    s_lshl_b32 s{S['h0']}, s{S['rb']}, 10
    s_add_u32 s{S['h0']}, s{S['h0']}, {STG}
    s_mul_i32 s{S['h1']}, s{S['cb']}, {16*768}
    s_add_u32 s{S['h1']}, s{S['h1']}, {PCS}
    """)
    P.vl(f"buffer_load_dwordx4 v[{GA+8}:{GA+11}], v{GA+7}, s[{srd}:{srd+3}], s{S['h0']} offen sc1",'g3',cost=30)
    for r in range(10):
        P.vl(f"s_add_u32 s{S['h2']}, s{S['h1']}, {768*r}\nbuffer_load_dwordx4 v[{GA+12+4*r}:{GA+15+4*r}], v{GA+7}, s[{srd}:{srd+3}], s{S['h2']} offen sc1",'g3',cost=30)

L2ONE=216
L2S=200
def ln2_loads(P,S,lane):
    t=LS
    P.i(f"""
    v_and_b32 v{t}, 7, v{lane}                 ; row
    v_bfe_u32 v{t+1}, v{lane}, 3, 1            ; half
    v_lshrrev_b32 v{t+3}, 4, v{lane}           ; g
    v_lshl_add_u32 v{t+1}, v{t+1}, 2, v{t+3}
    v_mul_u32_u24 v{t+2}, 1280, v{t}
    v_lshl_add_u32 v{t+2}, v{t+1}, 4, v{t+2}
    s_mul_i32 s{S['h0']}, s{S['wg']}, {8*1280}
    """)
    for i in range(10):
        P.vl(f"buffer_load_dwordx4 v[{LR+4*i}:{LR+4*i+3}], v{t+2}, s[{S['srdx']}:{S['srdx']+3}], s{S['h0']} offen offset:{128*i}",'ln',cost=30)
def ln2_stats(P,S,lane,srd,flags):
    t=LS; M=LS+4; R=LS+6; NR=LS+12; Dm=L2S; Dg=L2S+4; sv=S['sv']
    P.wv('ln')
    P.lock(); P.atom("s_setprio 1")
    for i in range(10):
        x=LR+4*i
        P.i(f"v_mfma_f32_16x16x32_bf16 v[{Dm}:{Dm+3}], v[{CONE}:{CONE+3}], v[{x}:{x+3}], {'0' if i==0 else f'v[{Dm}:{Dm+3}]'}",cost=17)
        P.i(f"v_mfma_f32_16x16x32_bf16 v[{Dg}:{Dg+3}], v[{x}:{x+3}], v[{x}:{x+3}], {'0' if i==0 else f'v[{Dg}:{Dg+3}]'}",cost=17)
    P.atom("s_setprio 0"); P.unlock()
    P.i(f"""
    v_and_b32 v{t}, 3, v{lane}
    v_and_b32 v{t+1}, 15, v{lane}
    v_lshrrev_b32 v{t+3}, 2, v{t+1}
    v_lshl_add_u32 v{t+3}, v{t+3}, 4, v{t+1}
    v_lshlrev_b32 v{t+3}, 2, v{t+3}
    """)
    P.atom(f"""
    s_nop 4
    v_cmp_eq_u32 vcc, 1, v{t}
    s_nop 1
    v_cndmask_b32 v{R}, v{Dg}, v{Dg+1}, vcc
    v_cmp_eq_u32 vcc, 2, v{t}
    s_nop 1
    v_cndmask_b32 v{R}, v{R}, v{Dg+2}, vcc
    v_cmp_eq_u32 vcc, 3, v{t}
    s_nop 1
    v_cndmask_b32 v{R}, v{R}, v{Dg+3}, vcc
    v_mov_b32 v{M}, v{Dm}
    """,cost=70)
    P.l(f"ds_bpermute_b32 v{R}, v{t+3}, v{R}",'bp',cost=10)
    P.wl('bp')
    P.atom(f"s_nop 1\nv_add_f32_dpp v{M}, v{M}, v{M} row_ror:8 row_mask:0xf bank_mask:0xf\nv_add_f32_dpp v{R}, v{R}, v{R} row_ror:8 row_mask:0xf bank_mask:0xf",cost=20)
    P.i(f"""
    v_mul_f32 v{M}, 0x3acccccd, v{M}
    v_mul_f32 v{R}, 0x3acccccd, v{R}
    v_fma_f32 v{R}, -v{M}, v{M}, v{R}
    v_max_f32 v{R}, 0, v{R}
    v_cvt_pk_bf16_f32 v{R}, v{R}, v{R}
    v_cvt_pk_bf16_f32 v{M}, v{M}, v{M}
    v_lshlrev_b32 v{R}, 16, v{R}
    v_lshlrev_b32 v{M}, 16, v{M}
    v_add_f32 v{R}, 0x3727c5ac, v{R}
    v_cvt_pk_bf16_f32 v{R}, v{R}, v{R}
    v_lshlrev_b32 v{R}, 16, v{R}
    v_sqrt_f32 v{R}, v{R}
    s_nop 0
    v_cvt_pk_bf16_f32 v{R}, v{R}, v{R}
    v_lshlrev_b32 v{R}, 16, v{R}
    v_rcp_f32 v{R}, v{R}
    s_nop 0
    v_mov_b32 v{M+1}, v{R}
    v_mul_f32 v{NR}, v{M}, v{R}
    v_sub_f32 v{NR}, 0, v{NR}
    v_mov_b32 v{NR+1}, v{R}
    v_and_b32 v{t}, 7, v{lane}
    v_lshlrev_b32 v{t+1}, 3, v{t}
    s_lshl_b32 s{S['h0']}, s{S['wg']}, 6
    s_add_u32 s{S['h0']}, s{S['h0']}, {STG}
    """,cost=6)
    P.lock()
    P.atom(f"s_mov_b64 s[{sv}:{sv+1}], exec\ns_mov_b64 exec, 0xff")
    P.vs(f"buffer_store_dwordx2 v[{M}:{M+1}], v{t+1}, s[{srd}:{srd+3}], s{S['h0']} offen {flags}",'pub1',cost=40)
    P.atom(f"s_mov_b64 exec, s[{sv}:{sv+1}]")
    P.unlock()
def ln2_norm(P,S,lane,srd,flags):
    t=LS; NR=LS+12; F=LF
    P.i(f"""
    v_and_b32 v{t}, 7, v{lane}
    v_bfe_u32 v{t+1}, v{lane}, 3, 1
    v_lshrrev_b32 v{t+3}, 4, v{lane}
    v_lshl_add_u32 v{t+1}, v{t+1}, 2, v{t+3}
    v_mul_u32_u24 v{t+2}, {LNRS}, v{t}
    v_lshl_add_u32 v{t+2}, v{t+1}, 4, v{t+2}
    v_add_u32 v{t+2}, s{S['lb']}, v{t+2}
    """,cost=6)
    for i in range(10):
        for k in range(4):
            r=LR+4*i+k; f=F+2*((4*i+k)%8)
            P.i(f"v_lshlrev_b32 v{f}, 16, v{r}\nv_and_b32 v{f+1}, 0xffff0000, v{r}\nv_fma_f32 v{f}, v{f}, v{NR+1}, v{NR}\nv_fma_f32 v{f+1}, v{f+1}, v{NR+1}, v{NR}\nv_cvt_pk_bf16_f32 v{r}, v{f}, v{f+1}",cost=7)
        P.l(f"ds_write_b128 v{t+2}, v[{LR+4*i}:{LR+4*i+3}] offset:{128*i}",cost=35)
    P.i(f"""
    v_bfe_u32 v{t}, v{lane}, 2, 2
    v_mul_u32_u24 v{t}, {LNRS}, v{t}
    v_lshrrev_b32 v{t+1}, 4, v{lane}
    v_lshl_add_u32 v{t}, v{t+1}, 5, v{t}
    v_and_b32 v{t+1}, 3, v{lane}
    v_lshl_add_u32 v{t}, v{t+1}, 3, v{t}
    v_add_u32 v{t}, s{S['lb']}, v{t}
    v_lshlrev_b32 v{t+3}, 4, v{lane}
    s_mul_i32 s{S['h0']}, s{S['wg']}, 10240
    s_add_u32 s{S['h0']}, s{S['h0']}, {XT}
    """,cost=6)
    TR=LF+16
    for i2 in range(10):
        for h in range(2):
            P.l(f"ds_read_b64_tr_b16 v[{TR+4*i2+2*h}:{TR+4*i2+2*h+1}], v{t} offset:{128*i2+4*LNRS*h}",('lt',i2),cost=8)
        if i2>=2:
            j=i2-2; P.wl(('lt',j))
            if j%4==0 and j: P.i(f"s_add_u32 s{S['h0']}, s{S['h0']}, 4096")
            P.vs(f"buffer_store_dwordx4 v[{TR+4*j}:{TR+4*j+3}], v{t+3}, s[{srd}:{srd+3}], s{S['h0']} offen offset:{1024*(j%4)} {flags}",'pub2',cost=80)
    for j in (8,9):
        P.wl(('lt',j))
        if j%4==0 and j: P.i(f"s_add_u32 s{S['h0']}, s{S['h0']}, 4096")
        P.vs(f"buffer_store_dwordx4 v[{TR+4*j}:{TR+4*j+3}], v{t+3}, s[{srd}:{srd+3}], s{S['h0']} offen offset:{1024*(j%4)} {flags}",'pub2',cost=80)

W2R=64
def w2b_loads(P,S,srdw2):
    h0,h1,h2=S['h0'],S['h1'],S['h2']
    for k in range(3):
        P.i(f"""
        s_mul_i32 s{h0}, s{S['u']}, 3
        s_add_u32 s{h0}, s{h0}, {k}
        s_mul_hi_u32 s{h1}, s{h0}, s{S['m48']}
        s_mul_i32 s{h2}, s{h1}, 48
        s_sub_u32 s{h0}, s{h0}, s{h2}
        s_mul_i32 s{h2}, s{h0}, {32*1280}
        s_mul_i32 s{S['h3']}, s{h1}, 160
        s_add_u32 s{h2}, s{h2}, s{S['h3']}
        s_mul_i32 s{h1}, s{h1}, {5*48}
        s_add_u32 s{h1}, s{h1}, s{h0}
        s_lshl_b32 s{h1}, s{h1}, 10
        s_add_u32 s{S['wo']+k}, s{h1}, {W2F}
        """)
        for i in range(5):
            r=W2R+20*k+4*i
            P.vl(f"buffer_load_dwordx4 v[{r}:{r+3}], v{WA+i}, s[{srdw2}:{srdw2+3}], s{h2} offen",('w2',k),cost=30)
def w2b_unit(P,S,k,lane,srd,flags):
    P.wv(('w2',k))
    P.i(f"v_lshlrev_b32 v37, 4, v{lane}\nv_add_u32 v37, s{S['lb']}, v37")
    for i in range(5):
        r=W2R+20*k+4*i
        P.l(f"ds_write_b128 v37, v[{r}:{r+3}] offset:{1024*i}",cost=35)
    for dt in range(5):
        for h in range(2):
            P.l(f"ds_read_b64_tr_b16 v[{WF+4*dt+2*h}:{WF+4*dt+2*h+1}], v{WR} offset:{8*dt+1280*h}",('wt',k,dt),cost=8)
    for dt in range(5):
        P.wl(('wt',k,dt))
        P.vs(f"s_add_u32 s{S['h1']}, s{S['wo']+k}, {48*1024*dt}\nbuffer_store_dwordx4 v[{WF+4*dt}:{WF+4*dt+3}], v{WR+1}, s[{srd}:{srd+3}], s{S['h1']} offen {flags}",'w2pub',cost=80)

def s3_fx_load(P,S,lane,srd):
    P.i(f"v_lshlrev_b32 v{FV}, 4, v{lane}\ns_mov_b32 s{S['h3']}, {FX}")
    P.vl(f"buffer_load_dwordx4 v[{FV+4}:{FV+7}], v{FV}, s[{srd}:{srd+3}], s{S['h3']} offen sc1",'fx')
def s3_fx_check(P,S,lane,srd,endlab):
    P.wv('fx')
    ld=f"buffer_load_dwordx4 v[{FV+4}:{FV+7}], v{FV}, s[{srd}:{srd+3}], s{S['h3']} offen sc1"
    ck=f"v_and_b32 v{FV+1}, v{FV+4}, v{FV+5}\nv_and_b32 v{FV+2}, v{FV+6}, v{FV+7}\nv_and_b32 v{FV+1}, v{FV+1}, v{FV+2}\nv_cmp_eq_u32 vcc, 1, v{FV+1}"
    P.atom(spin('fx',ld,ck,S,endlab),cost=40)

def ln3_out(P,S,lane,srd,flags,lst):
    t=LS; TR=LR
    P.i(f"""
    v_bfe_u32 v{t}, v{lane}, 2, 2
    v_mul_u32_u24 v{t}, {LNRS}, v{t}
    v_lshrrev_b32 v{t+1}, 4, v{lane}
    v_lshl_add_u32 v{t}, v{t+1}, 5, v{t}
    v_and_b32 v{t+1}, 3, v{lane}
    v_lshl_add_u32 v{t}, v{t+1}, 3, v{t}
    v_add_u32 v{t}, s{S['lb']}, v{t}
    v_lshlrev_b32 v{t+3}, 4, v{lane}
    v_and_b32 v{t+4}, 7, v{lane}
    v_lshlrev_b32 v{t+4}, 3, v{t+4}
    v_add_u32 v{t+5}, {lst}, v{t+4}
    s_lshl_b32 s{S['h1']}, s{S['wg']}, 6
    s_add_u32 s{S['h1']}, s{S['h1']}, {STG}
    s_mul_i32 s{S['h0']}, s{S['wg']}, 10240
    s_add_u32 s{S['h0']}, s{S['h0']}, {XT}
    """)
    P.l(f"ds_read_b64 v[{t+6}:{t+7}], v{t+5}",'st')
    for i2 in range(10):
        for h in range(2):
            P.l(f"ds_read_b64_tr_b16 v[{TR+4*i2+2*h}:{TR+4*i2+2*h+1}], v{t} offset:{128*i2+4*LNRS*h}",('lt',i2))
    sv=S['sv']
    P.wl('st')
    P.lock()
    P.atom(f"s_mov_b64 s[{sv}:{sv+1}], exec\ns_mov_b64 exec, 0xff")
    P.vs(f"buffer_store_dwordx2 v[{t+6}:{t+7}], v{t+4}, s[{srd}:{srd+3}], s{S['h1']} offen {flags}",'pub1')
    P.atom(f"s_mov_b64 exec, s[{sv}:{sv+1}]")
    P.unlock()
    for j in range(10):
        P.wl(('lt',j))
        if j%4==0 and j: P.i(f"s_add_u32 s{S['h0']}, s{S['h0']}, 4096")
        P.vs(f"buffer_store_dwordx4 v[{TR+4*j}:{TR+4*j+3}], v{t+3}, s[{srd}:{srd+3}], s{S['h0']} offen offset:{1024*(j%4)} {flags}",'pub2')
```

```python
import re as _re
_V3=('v_fma_f32','v_lshl_add_u32','v_add3','v_cvt_pk','v_bfe','v_mul_lo','v_mul_hi','v_and_or','v_perm','v_mad','v_add_lshl','v_cndmask')
def real_cost(l):
    op=l.split()[0]
    if op in ('v_exp_f32','v_rcp_f32','v_sin_f32','v_cos_f32','v_sqrt_f32','v_log_f32','v_rsq_f32'): return 12
    if 'mfma' in op: return 20
    if op.startswith('v_pk_'): return 6
    if op.startswith('s_'): return 4
    if op.startswith(_V3): return 8
    if _re.search(r'0x[0-9a-f]{3,}|[ ,]\d{3,}',l): return 7
    return 6.3
class Prog:
    def __init__(s): s.it=[]
    def i(s,t,cost=None):
        for l in t.strip().split('\n'):
            l=l.strip()
            if not l: continue
            s.it.append(('I',l,real_cost(l)))
    def atom(s,t,cost=None):
        n=len([l for l in t.strip().split('\n') if l.strip()])
        s.it.append(('I',t.strip(),cost if cost is not None else 4*n))
    def vl(s,t,tag,cost=20): s.it.append(('VL',t.strip(),60,tag))
    def vs(s,t,tag=None,cost=20): s.it.append(('VS',t.strip(),90 if 'dwordx4' in t else 60,tag))
    def wv(s,tag): s.it.append(('WV',tag,4))
    def l(s,t,tag=None,cost=4):
        c=40 if 'ds_write_b128' in t else 35 if 'ds_write2' in t else 20 if 'ds_write' in t else 10
        s.it.append(('L',t.strip(),c,tag))
    def wl(s,tag=None): s.it.append(('WL',tag,60))
    def lock(s): s.it.append(('LOCK',1,0))
    def unlock(s): s.it.append(('LOCK',0,0))
    def ext(s,o): s.it+=o.it
    def cost(s): return sum(x[2] for x in s.it)
class Emit:
    def __init__(s,A): s.A=A; s.vm=[]; s.lg=[]
    def dma(s,t,tag): s.A(t); s.vm.append(('L',tag))
    def wait_vm(s,tag):
        idx=[i for i,(k,t) in enumerate(s.vm) if t==tag]
        assert idx,tag
        idx=max(idx)
        n=len(s.vm)-1-idx if (s.vm[idx][0]=='L' or __import__('os').environ.get('OLDWAIT')) else 0
        s.A(f"s_waitcnt vmcnt({min(n,63)})")
    def wait_vm_all(s): s.A("s_waitcnt vmcnt(0)")
    def wait_lg(s,tag):
        if tag is None: s.A("s_waitcnt lgkmcnt(0)"); return
        idx=max(i for i,t in enumerate(s.lg) if t==tag)
        n=len(s.lg)-1-idx
        s.A(f"s_waitcnt lgkmcnt({min(n,15)})")
    def item(s,x):
        k=x[0]
        if k=='I': s.A(x[1])
        elif k=='VL': s.A(x[1]); s.vm.append(('L',x[3]))
        elif k=='VS': s.A(x[1]); s.vm.append(('S',x[3]))
        elif k=='WV':
            if x[1]=='ALL': s.wait_vm_all()
            else: s.wait_vm(x[1])
        elif k=='L': s.A(x[1]); s.lg.append(x[3])
        elif k=='WL': s.wait_lg(x[1])
        elif k in('LOCK','MARK','MUST'): pass
    def run(s,p):
        for x in p.it: s.item(x)

import re
_TRANS=('v_exp_f32','v_rcp_f32','v_sin_f32','v_cos_f32','v_sqrt_f32','v_log_f32','v_rsq_f32')
def _regs(tok):
    tok=tok.strip().lstrip('-').replace('|','')
    m=re.match(r'^abs\((.*)\)$',tok)
    if m: tok=m.group(1)
    m=re.match(r'^([va])\[(\d+):(\d+)\]$',tok)
    if m: return [(m.group(1),i) for i in range(int(m.group(2)),int(m.group(3))+1)]
    m=re.match(r'^([va])(\d+)$',tok)
    if m: return [(m.group(1),int(m.group(2)))]
    m=re.match(r'^s\[(\d+):(\d+)\]$',tok)
    if m: return [('s',i) for i in range(int(m.group(1)),int(m.group(2))+1)]
    m=re.match(r'^s(\d+)$',tok)
    if m: return [('s',int(m.group(1)))]
    if tok=='vcc': return [('vcc',0)]
    if tok=='exec': return [('exec',0)]
    if tok=='m0': return [('m0',0)]
    return []
def parse(text):
    t=text.split(';')[0].strip()
    if '\n' in text.strip(): return (None,set(),set(),False)
    op=t.split()[0]; rest=t[len(op):].strip()
    ops=[x.strip() for x in re.split(r',(?![^\[]*\])',rest)] if rest else []
    if ops: ops[-1]=re.split(r'\s+(?=offset|op_sel|neg_|offen|sc0|sc1|nt|lds|row_|quad_|bank_|bound|clamp|mul:|div:)',ops[-1])[0]
    W=set();R=set()
    if op.startswith('ds_write') or op.startswith('ds_add'):
        for o in ops: R|=set(_regs(o))
        return (op,W,R,True)
    if op.startswith('ds_read'):
        W|=set(_regs(ops[0]))
        for o in ops[1:]: R|=set(_regs(o))
        return (op,W,R,True)
    if op.startswith('v_cmp'):
        W|=set(_regs(ops[0]))
        for o in ops[1:]: R|=set(_regs(o))
        return (op,W,R,True)
    if op.startswith('v_mfma') or op.startswith('v_permlane') or op.startswith('v_readlane') or op.startswith('v_readfirstlane') or op.startswith('v_writelane'):
        return (op,set(),set(),False)
    if op.startswith('v_'):
        W|=set(_regs(ops[0]))
        for o in ops[1:]: R|=set(_regs(o))
        if op.startswith('v_fmac') or op.startswith('v_dot2c'): R|=W
        if op.startswith('v_cndmask') and len(ops)==3: R.add(('vcc',0))
        if '_dpp' in op or 'row_' in t or 'quad_perm' in t: return (op,W,R,False)
        return (op,W,R,True)
    if op=='s_nop': return (op,set(),set(),True)
    return (op,set(),set(),False)
def schedule(P,window=48,lat_valu=2,lat_trans=3):
    out=[]; run=[]
    def flush():
        if not run: return
        n=len(run); info=[parse(x[1]) for x in run]
        keep=[i for i in range(n) if info[i][0]!='s_nop']
        preds={i:set() for i in keep}
        lastw={}; lastr={}; lastlds=None
        for i in keep:
            op,W,R,_=info[i]
            for r in R:
                if r in lastw: preds[i].add((lastw[r],'raw'))
            for r in W:
                if r in lastw: preds[i].add((lastw[r],'waw'))
                for j in lastr.get(r,[]):
                    if j!=i: preds[i].add((j,'war'))
            if op.startswith('ds_'):
                if lastlds is not None: preds[i].add((lastlds,'ord'))
                lastlds=i
            for r in R: lastr.setdefault(r,[]).append(i)
            for r in W: lastw[r]=i; lastr[r]=[]
        done={}; order=[]; rem=list(keep); slot=0
        while rem:
            cand=[i for i in rem[:window] if all(p in done for p,_ in preds[i])]
            def ready_at(i):
                t=0
                for p,k in preds[i]:
                    if k=='raw':
                        op=info[p][0]
                        l=lat_trans if op in _TRANS else lat_valu
                        if op.startswith('v_cmp'): l=3
                        t=max(t,done[p]+l)
                    else: t=max(t,done[p]+1)
                return t
            ok=[i for i in cand if ready_at(i)<=slot]
            if ok: c=ok[0]
            else: c=min(cand,key=lambda i:(ready_at(i),i))
            need=0
            for p,k in preds[c]:
                if k=='raw':
                    op=info[p][0]
                    if op in _TRANS and info[c][0] not in _TRANS: need=max(need,done[p]+2-slot)
                    if op.startswith('v_cmp'): need=max(need,done[p]+3-slot)
            if need>0:
                order.append(('I',f"s_nop {need-1}",4*need)); slot+=need
            order.append(run[c]); done[c]=slot; slot+=1; rem.remove(c)
        out.extend(order); run.clear()
    for x in P.it:
        if x[0] in ('I','L') and parse(x[1])[3]: run.append(x)
        else: flush(); out.append(x)
    flush()
    Q=Prog(); Q.it=out; return Q
```

```python
import sys, os
from g32lib import *
from kgenlib import *
from htasks import *
import conv3lib as CV
from asmlib import KMAIN
DIAG=bool(os.environ.get('DIAG'))
E=lambda k,d: int(os.environ.get(k,d))
S=dict(x=20,j=21,rb=22,cb=23,hw=24,w=25,wf=26,wt=27,t0=28,t1=29,sx=30,sw=31,mx=32,mw=33,sl=34,rot=35,
       srdx=8,srd1=12,srd3=16,hb=60,ho=61,wg=2,
       ch=88,kb=89,k0=90,k1=91,sv=92,h0=94,h1=95,h2=96,h3=97,lb=98,u=99,m48=100,nch=101,
       sA=40,sI=44,sR=48,sC=52,sD=56,fst=72,fcs=73,db=3,spin=82,lnb=83)
WS=36
KB0=HSCR
LB_L=HSCR+3*KSCR
LB_W=HSCR+2*KSCR
LCNT=LB_L+11008
LST=LCNT+64
LDS_S3=LCNT+2816
WPF=40960; WPFW=20480
ATL=LB_L; ATRS=136
HLANE=11
END="Lmain_end"
class St:
    def __init__(s,regs): s.regs=list(regs); s.used={}
    def __call__(s,A,idx,rt=False):
        if not DIAG: return
        if idx in s.used or not s.regs: return
        r=s.regs.pop(0); s.used[idx]=r
        A(f"{'s_memrealtime' if rt else 's_memtime'} s[{r}:{r+1}]")
    def dump(s,A):
        if not DIAG: return
        A(f"s_waitcnt vmcnt(0) lgkmcnt(0)\ns_lshl_b32 s27, s2, 11\ns_lshl_b32 s28, s25, 8\ns_add_u32 s27, s27, s28\ns_add_u32 s27, s27, {STAMP}\nv_mov_b32 v9, 0\ns_mov_b64 exec, 1")
        for idx,r in s.used.items():
            A(f"v_mov_b32 v10, s{r}\nbuffer_store_dword v10, v9, s[36:39], s27 offen offset:{4*idx}")
def mark(P,st): P.it.append(('MARK',st,0))
def must(P,st): P.it.append(('MUST',st,0))
def h_schedule(A,P,budget,pre,sv,which=range(10),hook=None,emref=None):
    Em=Emit(A)
    if emref is not None: emref[0]=Em
    items=list(P.it); pos=[0]; locked=[0]
    def run_until(cost,window):
        c=0
        while pos[0]<len(items):
            x=items[pos[0]]
            if x[0]=='MARK':
                if x[1]>window: return
                pos[0]+=1; continue
            if x[0]=='MUST': pos[0]+=1; continue
            if x[0]=='LOCK': locked[0]=x[1]; pos[0]+=1; continue
            force=any(y[0]=='MUST' and y[1]<=window for y in items[pos[0]:])
            if c>=cost and not locked[0] and not force: return
            Em.item(x); c+=x[2]; pos[0]+=1
    run_until(pre,-1)
    for st in range(NST):
        if st in which: sv(A,16+st)
        A("s_barrier")
        if hook and st in hook: hook[st]()
        run_until(budget,st)
    return Em,items[pos[0]:]
def g2_phase(A,stamp):
    ACC2=0; WR_=80; HR=160; TT=208; MS=228
    VL=MS; VLN=MS+3; VT=MS+4
    lane=VLANE
    A(f"""
    s_waitcnt vmcnt(0)
    v_mov_b32 v{VT0}, {LCNT}
    v_mov_b32 v{VT0+1}, 1
    s_mov_b64 s[58:59], exec
    s_mov_b64 exec, 1
    ds_add_rtn_u32 v{VT0+2}, v{VT0}, v{VT0+1}
    s_waitcnt lgkmcnt(0)
    v_readfirstlane_b32 s28, v{VT0+2}
    s_nop 3
    s_cmp_eq_u32 s28, 3
    s_cbranch_scc0 Lnopubh
    s_lshl_b32 s28, s22, 4
    s_add_u32 s28, s28, s23
    s_lshl_b32 s28, s28, 7
    s_add_u32 s28, s28, {FH}
    v_mov_b32 v{VT0}, 0
    buffer_store_dword v{VT0+1}, v{VT0}, s[36:39], s28 offen sc1
    Lnopubh:
    s_mov_b64 exec, s[58:59]
    """)
    stamp(A,5)
    A(f"""
    s_lshr_b32 s49, s20, 1
    s_lshl_b32 s49, s49, 3
    s_and_b32 s28, s21, 7
    s_add_u32 s49, s49, s28
    v_mov_b32 v{VLN}, v{lane}
    v_lshlrev_b32 v{VL}, 4, v{lane}
    v_add_u32 v{VL+1}, 4096, v{VL}
    v_add_u32 v{VL+2}, 8192, v{VL}
    s_mul_i32 s26, s25, 12
    """)
    for dt in range(5):
        A(f"s_mul_i32 s27, s3, 5\ns_add_u32 s27, s27, {dt}\ns_mul_i32 s27, s27, 48\ns_add_u32 s27, s27, s26\ns_lshl_b32 s27, s27, 10\ns_add_u32 s{44+dt}, s27, {W2F}")
    vm=[]
    def wreg(k,dt): return WR_+20*k+4*dt
    def hreg(s,nt): return HR+16*(s%3)+4*nt
    def wl(s,k,tag=None):
        va=VL+(s>>2); imm=1024*(s&3)
        for dt in range(5):
            A(f"buffer_load_dwordx4 v[{wreg(k,dt)}:{wreg(k,dt)+3}], v{va}, s[36:39], s{44+dt} offen offset:{imm} sc1"); vm.append(tag or ('w',s))
    def hl(s):
        va=VL+(s>>2); imm=1024*(s&3)
        for nt in range(4):
            A(f"buffer_load_dwordx4 v[{hreg(s,nt)}:{hreg(s,nt)+3}], v{va}, s[36:39], s{30+nt} offen offset:{imm} sc1"); vm.append(('h',s))
    def wait(*tags):
        idx=max(max(i for i,t in enumerate(vm) if t==tag) for tag in tags); A(f"s_waitcnt vmcnt({min(63,len(vm)-1-idx)})")
    for k in range(4): wl(4+k,k)
    A(f"s_mul_i32 s27, s25, {WPFW}\ns_add_u32 s27, s27, {WPF}\nv_add_u32 v{VT}, s27, v{VL}")
    for nt in range(4):
        A(f"s_lshl_b32 s27, s49, 2\ns_add_u32 s27, s27, {nt}\ns_mul_i32 s27, s27, 48\ns_add_u32 s27, s27, s26\ns_lshl_b32 s27, s27, 10\ns_add_u32 s{30+nt}, s27, {HF}")
    for k in range(4):
        wait(('w',4+k))
        for dt in range(5): A(f"ds_write_b128 v{VT}, v[{wreg(k,dt)}:{wreg(k,dt)+3}] offset:{(k*5+dt)*1024}")
    A("s_waitcnt lgkmcnt(0)")
    for k in range(4): wl(k,k)
    for i in range(80): A(f"v_mov_b32 v{ACC2+i}, 0")
    A(f"""
    v_and_b32 v{VT+1}, 15, v{VLN}
    v_lshlrev_b32 v{VT+1}, 7, v{VT+1}
    s_lshr_b32 s27, s49, 1
    s_lshl_b32 s27, s27, 11
    s_add_u32 s50, s27, {FH}
    buffer_load_dword v{VT+2}, v{VT+1}, s[36:39], s50 offen sc1
    s_waitcnt vmcnt(0)
    """)
    A(spin('h',f"buffer_load_dword v{VT+2}, v{VT+1}, s[36:39], s50 offen sc1",f"v_cmp_eq_u32 vcc, 1, v{VT+2}",S,END))
    stamp(A,6)
    vm.clear()
    for s in range(3): hl(s)
    lg=[]
    def tread(s,dt):
        A(f"ds_read_b128 v[{TT+4*dt}:{TT+4*dt+3}], v{VT} offset:{((s-4)*5+dt)*1024}"); lg.append((s,dt))
    def lwait(tag):
        idx=lg.index(tag); A(f"s_waitcnt lgkmcnt({len(lg)-1-idx})")
    PF=VT+4; assert PF%2==0
    A(f"v_and_b32 v{VT+3}, 31, v{VLN}\nv_lshlrev_b32 v{VT+3}, 7, v{VT+3}\ns_lshl_b32 s41, s3, 12\ns_add_u32 s41, s41, {FD}")
    for s in range(12):
        tags=[('h',s)]+([('w',s)] if s>=8 else [])
        wait(*tags)
        if s==0: stamp(A,7)
        for dt in range(5):
            if 4<=s<8: lwait((s,dt)); a_=TT+4*dt
            else: a_=wreg(s%4,dt)
            for nt in range(4):
                a=ACC2+(nt*5+dt)*4
                A(f"v_mfma_f32_16x16x32_bf16 v[{a}:{a+3}], v[{a_}:{a_+3}], v[{hreg(s,nt)}:{hreg(s,nt)+3}], v[{a}:{a+3}]")
            if 3<=s<7: tread(s+1,dt)
        if s+3<12: hl(s+3)
        if 1<=s<=4: wl(8+s-1,s-1)
        if s==9:
            A(f"buffer_load_dwordx4 v[{PF}:{PF+3}], v{VT+3}, s[36:39], s41 offen sc1"); vm.append(('p',0))
    stamp(A,8)
    FR=80; XR=HR
    A(f"""
    v_and_b32 v{VT+8}, 15, v{VLN}
    v_lshrrev_b32 v{VT+9}, 4, v{VLN}
    v_mul_u32_u24 v{VT+10}, 1280, v{VT+8}
    v_mul_u32_u24 v{VT+11}, 40, v{VT+9}
    v_add_u32 v{XR+10}, v{VT+10}, v{VT+11}
    s_lshl_b32 s27, s49, 6
    s_lshl_b32 s28, s25, 4
    s_add_u32 s27, s27, s28
    s_mul_i32 s27, s27, 1280
    s_mul_i32 s28, s3, 160
    s_add_u32 s40, s27, s28
    """)
    A(f"s_nop 4\nbuffer_load_dwordx4 v[{XR}:{XR+3}], v{XR+10}, s[8:11], s40 offen\nbuffer_load_dwordx4 v[{XR+4}:{XR+7}], v{XR+10}, s[8:11], s40 offen offset:16\nbuffer_load_dwordx2 v[{XR+8}:{XR+9}], v{XR+10}, s[8:11], s40 offen offset:32")
    A(f"""
    v_lshrrev_b32 v{VT+8}, 3, v{VLN}
    v_and_b32 v{VT+9}, 7, v{VLN}
    v_lshlrev_b32 v{VT+10}, 12, v{VT+8}
    v_lshl_add_u32 v{VT+10}, v{VT+9}, 4, v{VT+10}
    v_mul_u32_u24 v{VT+11}, {ATRS}, v{VT+8}
    v_lshl_add_u32 v{VT+11}, v{VT+9}, 4, v{VT+11}
    s_mul_i32 s27, s3, {80*4096}
    s_lshl_b32 s28, s49, 7
    s_add_u32 s27, s27, s28
    s_lshl_b32 s28, s25, 15
    s_add_u32 s27, s27, s28
    s_add_u32 s42, s27, {AT}
    s_mul_i32 s28, s25, {8*ATRS}
    s_add_u32 s43, s28, {ATL}
    v_add_u32 v{VT+11}, s43, v{VT+11}
    """)
    def atloads(u):
        for i in range(3):
            if i<2: A(f"s_add_u32 s27, s42, {i*32*4096}\nbuffer_load_dwordx4 v[{XR+12+4*i}:{XR+15+4*i}], v{VT+10}, s[36:39], s27 offen sc1")
            else: A(f"s_cmp_lt_u32 s25, 2\ns_cbranch_scc0 Lnoat{u}\ns_add_u32 s27, s42, {i*32*4096}\nbuffer_load_dwordx4 v[{XR+12+4*i}:{XR+15+4*i}], v{VT+10}, s[36:39], s27 offen sc1\nLnoat{u}:")
    A(f"s_waitcnt vmcnt(3)")
    A(spin('d',f"buffer_load_dwordx4 v[{PF}:{PF+3}], v{VT+3}, s[36:39], s41 offen sc1",f"v_and_b32 v{PF}, v{PF}, v{PF+1}\nv_and_b32 v{PF}, v{PF}, v{PF+2}\nv_cmp_eq_u32 vcc, 1, v{PF}",S,END))
    atloads('e')
    VA=VT+11
    R0=FR
    A(f"v_add_u32 v{VL+1}, {WPF}, v{VL}\nv_add_u32 v{VL+2}, {WPF+49152}, v{VL}")
    for w in range(4):
        lab=A.label('w')
        if w<3: A(f"s_cmp_lg_u32 s25, {w}\ns_cbranch_scc1 {lab}")
        for nt in range(4):
            if nt==w: continue
            sl=nt if nt<w else nt-1
            for dt in range(5):
                a=ACC2+(nt*5+dt)*4
                off=w*WPFW+(sl*5+dt)*1024
                va,o=(VL+1,off) if off<65536-1024 else (VL+2,off-49152)
                if w==0 and nt==1 and dt==0: pass
                A(f"ds_write_b128 v{va}, v[{a}:{a+3}] offset:{o}")
        A("s_waitcnt vmcnt(0)")
        for i in range(3):
            if i==2 and w>=2: continue
            for h in range(2): A(f"ds_write_b64 v{VA}, v[{XR+12+4*i+2*h}:{XR+13+4*i+2*h}] offset:{i*32*ATRS+8*h}")
        A("s_waitcnt lgkmcnt(0)\ns_barrier")
        kk=0
        for src in range(4):
            if src==w: continue
            sl=w if w<src else w-1
            for dt in range(5):
                off=src*WPFW+(sl*5+dt)*1024
                va,o=(VL+1,off) if off<65536-1024 else (VL+2,off-49152)
                A(f"ds_read_b128 v[{R0+(kk*5+dt)*4}:{R0+(kk*5+dt)*4+3}], v{va} offset:{o}")
            kk+=1
        if w:
            for r in range(20): A(f"v_mov_b32 v{ACC2+r}, v{ACC2+w*20+r}")
        if w<3: A(f"s_branch Lred\n{lab}:")
    A("Lred:")
    A(f"""
    v_lshrrev_b32 v{VT}, 4, v{VLN}
    v_mul_u32_u24 v{VT}, 20, v{VT}
    v_bfe_u32 v{VT+1}, v{VLN}, 2, 2
    v_add_u32 v{VT}, v{VT}, v{VT+1}
    v_mul_u32_u24 v{VT}, {ATRS}, v{VT}
    v_and_b32 v{VT+1}, 3, v{VLN}
    v_lshl_add_u32 v{VT}, v{VT+1}, 3, v{VT}
    s_lshl_b32 s27, s25, 5
    s_add_u32 s27, s27, {ATL}
    v_add_u32 v{VT}, s27, v{VT}
    """)
    AR=R0+60
    for dt in range(5): A(f"ds_read_b64_tr_b16 v[{AR+2*dt}:{AR+2*dt+1}], v{VT} offset:{4*dt*ATRS}")
    A(f"s_waitcnt lgkmcnt(5)")
    for src in range(3):
        for r in range(20): A(f"v_add_f32 v{ACC2+r}, v{ACC2+r}, v{R0+src*20+r}")
    stamp(A,9)
    A("s_waitcnt lgkmcnt(0)")
    W=R0
    for e2 in range(10):
        x=XR+e2; a=AR+e2; b0=ACC2+2*e2; b1=b0+1; w=W+4*(e2%4)
        A(f"""
        v_lshlrev_b32 v{w}, 16, v{x}
        v_and_b32 v{w+1}, 0xffff0000, v{x}
        v_lshlrev_b32 v{w+2}, 16, v{a}
        v_and_b32 v{w+3}, 0xffff0000, v{a}
        v_add_f32 v{w}, v{w}, v{w+2}
        v_add_f32 v{w+1}, v{w+1}, v{w+3}
        v_cvt_pk_bf16_f32 v{w+2}, v{b0}, v{b1}
        v_cvt_pk_bf16_f32 v{w}, v{w}, v{w+1}
        v_lshlrev_b32 v{b0}, 16, v{w+2}
        v_and_b32 v{b1}, 0xffff0000, v{w+2}
        v_lshlrev_b32 v{w+2}, 16, v{w}
        v_and_b32 v{w+3}, 0xffff0000, v{w}
        v_add_f32 v{b0}, v{b0}, v{w+2}
        v_add_f32 v{b1}, v{b1}, v{w+3}
        v_cvt_pk_bf16_f32 v{W+20+e2}, v{b0}, v{b1}
        """)
    A(f"buffer_store_dwordx4 v[{W+20}:{W+23}], v{XR+10}, s[52:55], s40 offen\nbuffer_store_dwordx4 v[{W+24}:{W+27}], v{XR+10}, s[52:55], s40 offen offset:16\nbuffer_store_dwordx2 v[{W+28}:{W+29}], v{XR+10}, s[52:55], s40 offen offset:32")
def build(A):
    n=KMAIN; A.begin(n)
    A("s_cmp_ge_u32 s2, 256\ns_cbranch_scc1 Lmain_end")
    A(f"""
    s_load_dwordx2 s[4:5], s[0:1], {ARG['u']}
    s_load_dwordx4 s[76:79], s[0:1], {ARG['w1']}
    s_load_dwordx4 s[84:87], s[0:1], {ARG['dbg']}
    s_load_dwordx8 s[64:71], s[0:1], {ARG['logA']}
    s_load_dwordx2 s[74:75], s[0:1], {ARG['logdt']}
    s_load_dwordx4 s[44:47], s[0:1], {ARG['w2']}      ; w2, out
    s_load_dwordx2 s[18:19], s[0:1], {ARG['Dskip']}
    s_and_b32 s20, s2, 7          ; x
    s_lshr_b32 s21, s2, 3         ; j
    s_and_b32 s22, s20, 1
    s_lshl_b32 s22, s22, 3
    s_and_b32 s23, s21, 7
    s_add_u32 s22, s22, s23       ; rb
    s_lshr_b32 s23, s20, 1
    s_lshl_b32 s23, s23, 2
    s_lshr_b32 s24, s21, 3
    s_add_u32 s23, s23, s24       ; cb
    s_and_b32 s3, s20, 1
    s_lshl_b32 s3, s3, 2
    s_add_u32 s3, s3, s24
    v_lshrrev_b32 v1, 6, v0
    s_cmp_ge_u32 s22, 10
    s_cselect_b32 s35, 10, 0
    v_readfirstlane_b32 s25, v1   ; wave
    s_sub_u32 s35, s22, s35       ; rot
    s_nop 2
    s_and_b32 s26, s25, 1         ; wf
    s_bfe_u32 s27, s25, 0x10001   ; wt
    s_and_b32 s24, s25, 3         ; hw
    s_cmp_ge_u32 s25, 4
    s_cbranch_scc1 Lhrole
    """)
    GLN=E('GLN',0)
    g_dma_addr(A,S)
    if GLN: g_ln_loads(A,S)
    A("s_waitcnt lgkmcnt(0)")
    A.srd(8,4,SIZE['u']); A.srd(12,76,SIZE['w1']); A.srd(16,78,SIZE['w3']); A.srd(WS,86,SIZE['ws']); A.srd(52,46,SIZE['out'])
    stamp=St(list(range(64,76,2))+[80]+list(range(84,102,2))+[56,42+0])
    stamp.regs=[r for r in stamp.regs if r not in (42,82)]
    stamp(A,0); stamp(A,1,True)
    PRE=E('GPRE',2)
    if GLN: g_ln_issue(A,S)
    for l in g_dma(S,0): A(l)
    g_lds_addr(A,S)
    for l in g_dma(S,1): A(l)
    A(f"s_cmp_eq_u32 s25, 0\ns_cbranch_scc0 Lnoci\nv_mov_b32 v{VT0}, {LCNT}\nv_mov_b32 v{VT0+1}, 0\nds_write_b32 v{VT0}, v{VT0+1}\nLnoci:")
    for i in range(96): A(f"v_mov_b32 v{ACC+i}, 0")
    if GLN:
        A("s_waitcnt vmcnt(20)")
        g_ln_compute(A,S,LB_L,LNRS,LST)
    def gstamp(st):
        if os.environ.get('GDIAG')=='win':
            if not isinstance(st,tuple): stamp(A,32+st)
            elif st[1] in (1,2,3,4,5): stamp(A,48+st[1])
        elif not isinstance(st,tuple) and st in (0,3,6,9): stamp(A,32+st)
    g_loop(A,S,gstamp if DIAG else None,PRE=PRE)
    stamp(A,2)
    A("s_barrier")
    stamp(A,3)
    g_epilogue(A,S,WS,HF,'sc1')
    stamp(A,4)
    g2_phase(A,stamp)
    stamp(A,10); stamp(A,11,True)
    stamp.dump(A)
    A("s_branch Lmain_end")
    A("Lhrole:")
    A(f"v_and_b32 v{HLANE}, 63, v0")
    A(f"""
    s_mul_i32 s28, s21, 3
    s_lshl_b32 s29, s21, 1
    s_add_u32 s29, s29, 16
    s_cmp_lt_u32 s21, 16
    s_cselect_b32 s28, s28, s29
    s_cselect_b32 s101, 3, 2          ; nch
    s_mul_i32 s29, s20, 80
    s_add_u32 s28, s28, s29
    s_add_u32 s88, s28, s24           ; channel
    s_mul_i32 s89, s24, {KSCR}
    s_add_u32 s89, s89, {KB0}
    s_waitcnt lgkmcnt(0)
    s_mov_b32 s80, s44
    s_mov_b32 s81, s45
    """)
    A.srd(8,4,SIZE['u']); A.srd(WS,86,SIZE['ws'])
    A("s_cmp_eq_u32 s24, 3\ns_cbranch_scc1 Lrole_l\ns_cmp_lt_u32 s24, s101\ns_cbranch_scc0 Lrole_w")
    A.srd(40,64,245760); A.srd(44,66,245760); A.srd(48,68,245760); A.srd(52,70,245760); A.srd(56,74,1280); A.srd(12,18,SIZE['Dskip'])
    stamp=St([64,66,68,70,74,76,78,80,60,62,4,6]); stamp(A,0)
    SK=dict(S); SK['kb']=89
    P=Prog(); mark(P,-1); P.atom('s_setprio 3'); kgen_loads(P,S,HLANE,KV)
    P.i(f"s_lshl_b32 s29, s88, 1\nv_mov_b32 v30, s29"); P.vl("buffer_load_ushort v29, v30, s[12:15], 0 offen",'kp2',cost=30); P.atom('s_setprio 0')
    kgen_setup(P,S,HLANE); kgen_dt(P,S); P.wv('kp2'); kgen_groups(P,os.environ.get('PKG0','rows'))
    SO=dict(S); SO['kb']=73
    P.i(f"s_add_u32 s73, s89, 16\nv_mov_b32 v28, s89\nv_mov_b32 v27, 0")
    kgen_out(P,SO,HLANE,WS,"",tolds=False) if False else None
    Pout=Prog(); Pout.l("ds_write_b32 v28, v27 offset:12"); kgen_out(Pout,SO,HLANE,WS,"",tolds=True)
    P.ext(Pout)
    P=schedule(P)
    SC=dict(base=30,ch=88,srd=36,t0=28,t1=29,sv=92,m0=52,m1=54,m2=56,dsk=33,kt=73,lane=HLANE)
    def w9hook():
        A(f"s_mul_i32 s30, s24, {CV.CW3}")
        CV.u_loads(A,SC)
        for q in range(4): Em_[0].vm.append(('L','u'))
    Em_=[None]
    UW9=E('GLN',0)
    Em,rest=h_schedule(A,P,E('KB',850),E('PREK',900),stamp,(0,3,6,9),hook={9:w9hook} if UW9 else None,emref=Em_)
    A("s_barrier")
    stamp(A,2)
    if not UW9:
        A(f"v_lshlrev_b32 v26, 4, v{HLANE}\ns_mov_b32 s31, {FX}\nbuffer_load_dwordx4 v[20:23], v26, s[36:39], s31 offen sc1\ns_waitcnt vmcnt(0)")
        A(spin('x',"buffer_load_dwordx4 v[20:23], v26, s[36:39], s31 offen sc1","v_and_b32 v24, v20, v21\nv_and_b32 v25, v22, v23\nv_and_b32 v24, v24, v25\nv_cmp_eq_u32 vcc, 1, v24",S,END))
        w9hook()
    for x in rest: Em.item(x)
    print("K role: total",sum(x[2] for x in P.it),"left after loop",sum(x[2] for x in rest))
    stamp(A,3)
    A("s_waitcnt vmcnt(0)\nv_lshlrev_b32 v29, 16, v29\ns_nop 0\nv_readfirstlane_b32 s33, v29")
    CV.u_store(A,SC)
    CV.conv_setup(A,SC)
    A("s_waitcnt lgkmcnt(0)")
    CV.conv_expand(A,SC)
    A("s_waitcnt lgkmcnt(0)")
    stamp(A,4)
    A(f"s_setprio {E('CPRIO',1)}")
    CV.conv_main(A)
    A("s_nop 7")
    stamp(A,5)
    CV.conv_epilogue(A,SC,"sc1")
    A(f"""
    s_waitcnt vmcnt(0)
    s_lshl_b32 s28, s20, 5
    s_add_u32 s28, s28, s21
    s_lshl_b32 s28, s28, 7
    s_lshl_b32 s29, s24, 2
    s_add_u32 s28, s28, s29
    s_add_u32 s28, s28, {FD}
    v_mov_b32 v{CV.CTMP}, 0
    v_mov_b32 v{CV.CTMP+1}, 1
    s_mov_b64 s[92:93], exec
    s_mov_b64 exec, 1
    buffer_store_dword v{CV.CTMP+1}, v{CV.CTMP}, s[36:39], s28 offen sc1
    s_mov_b64 exec, s[92:93]
    """)
    stamp(A,6)
    stamp.dump(A)
    A("s_branch Lmain_end")
    A("Lrole_w:")
    A.srd(40,80,SIZE['w2'])
    A(f"s_sub_u32 s99, s21, 16\ns_lshl_b32 s99, s99, 3\ns_add_u32 s99, s99, s20\ns_mov_b32 s100, {magic(48)}\ns_mov_b32 s98, {LB_W}")
    SW=dict(S); SW['wo']=88
    P=Prog(); mark(P,-1); w2_setup(P,SW,HLANE); mark(P,0); w2b_loads(P,SW,40)
    for k in range(3):
        mark(P,k+1); w2b_unit(P,SW,k,HLANE,WS,"sc1")
    mark(P,5); s3_set_fw(P,SW,WS,WF); must(P,5)
    stamp=St([64,66,68,70,74,76,78,84,86,60,62]); Em,rest=h_schedule(A,P,800,600,stamp)
    assert not [x for x in rest if x[0] not in('MARK','MUST','LOCK')]
    A("s_barrier")
    stamp.dump(A)
    A("s_branch Lmain_end")
    A("Lrole_l:")
    A.srd(40,84,256)
    A(f"s_mov_b32 s98, {LB_L}")
    LP=None
    if E('GLN',0):
        P=Prog(); mark(P,-1); s3_clear(P,S,WS); cs_setup(P,S,HLANE)
        mark(P,0); fl_cleared(P,S,40); cs_reads(P,S,0); cs_mfma(P,S,0); cs_reads(P,S,1); P.wl(('cs',1)); must(P,0)
        cs_mfma(P,S,1)
        ln3_out(P,S,HLANE,WS,"sc1",LST)
        cs_store(P,S,HLANE,WS,"sc1")
        mark(P,4); s3_set_fl(P,S,WS,'pub1',0); s3_set_fl(P,S,WS,'pub2',FX-FL)
        mark(P,5); s3_ga_clr_load(P,S,HLANE,40)
        mark(P,6); s3_ga_clr_check(P,S,HLANE,40,WS,END)
        mark(P,7); s3_ga_flag_check(P,S,HLANE,WS,END); s3_fx_load(P,S,HLANE,WS)
        mark(P,8); ga_finish(P,S,HLANE); s3_fx_check(P,S,HLANE,WS,END); must(P,8)
    else:
        P=Prog(); mark(P,-1); P.atom("s_setprio 3"); ln2_loads(P,S,HLANE); P.atom("s_setprio 0"); s3_clear(P,S,WS); cs_setup(P,S,HLANE)
        mark(P,0); fl_cleared(P,S,40); cs_reads(P,S,0); cs_mfma(P,S,0); cs_reads(P,S,1); P.wl(('cs',1)); must(P,0)
        cs_mfma(P,S,1); cs_store(P,S,HLANE,WS,"sc1")
        ln2_stats(P,S,HLANE,WS,"sc1")
        Pn=Prog(); ln2_norm(Pn,S,HLANE,WS,"sc1")
        n1=len(Pn.it)//4
        P.it+=Pn.it[:n1]
        mark(P,3); s3_set_fl(P,S,WS,'pub1',0)
        P.it+=Pn.it[n1:]
        mark(P,5); s3_ga_clr_load(P,S,HLANE,40)
        mark(P,6); s3_ga_clr_check(P,S,HLANE,40,WS,END)
        mark(P,7); s3_set_fl(P,S,WS,'pub2',FX-FL); s3_ga_flag_check(P,S,HLANE,WS,END)
        mark(P,9); ga_finish(P,S,HLANE); must(P,9)
    P=schedule(P)
    stamp=St([44,46,48,50,52,54,56,58,60,62,4]); stamp(A,0)
    if LP: stamp.used.update({2:64,3:66,4:68,5:70,6:74,7:76})
    Em,rest=h_schedule(A,P,E('LB',800),E('PREL',2500),stamp)
    print("L role: total",sum(x[2] for x in P.it))
    assert not [x for x in rest if x[0] not in('MARK','MUST','LOCK')]
    A("s_barrier")
    stamp.dump(A)
    A("Lmain_end:")
    A.end(n,256); A.launch(n,256,512,lds=LDS_S3)
if __name__=='__main__':
    A=Asm(); build(A)
    print("LDS",LDS_S3)
    open(sys.argv[1],'w').write(A.text("S3: fused single launch",single=True))
```

```python
import os
from asmlib import *
from sched import *
from layout import *
from g32lib import WBASE,WSLOT,W3OFF,STAT,CSL,HSCR
LNRS=1344
LNSCR=8*LNRS
LR=32
LF=72
LS=232
def ln_loads(P,S,lane):
    t=LS
    P.i(f"""
    v_lshrrev_b32 v{t}, 3, v{lane}
    v_and_b32 v{t+1}, 7, v{lane}
    v_mul_u32_u24 v{t+2}, 1280, v{t}
    v_lshl_add_u32 v{t+2}, v{t+1}, 4, v{t+2}
    s_mul_i32 s{S['h0']}, s{S['wg']}, {8*1280}
    """)
    for i in range(10):
        P.vl(f"buffer_load_dwordx4 v[{LR+4*i}:{LR+4*i+3}], v{t+2}, s[{S['srdx']}:{S['srdx']+3}], s{S['h0']} offen offset:{128*i}",'ln',cost=30)
def ln_stats(P,S,lane,srd,flags,pk=True):
    t=LS; SM=LS+4; SQ=LS+6
    P.wv('ln')
    P.i(f"v_mov_b32 v{SM}, 0\nv_mov_b32 v{SM+1}, 0\nv_mov_b32 v{SQ}, 0\nv_mov_b32 v{SQ+1}, 0\nv_mov_b32 v{SM+4}, 0\nv_mov_b32 v{SM+5}, 0\nv_mov_b32 v{SQ+4}, 0\nv_mov_b32 v{SQ+5}, 0")
    for k in range(40):
        f=LF+2*k; a=SM+4*(k&1); b=SQ+4*(k&1)
        P.i(f"v_lshlrev_b32 v{f}, 16, v{LR+k}\nv_and_b32 v{f+1}, 0xffff0000, v{LR+k}")
        if pk:
            P.i(f"v_pk_add_f32 v[{a}:{a+1}], v[{a}:{a+1}], v[{f}:{f+1}]",cost=5)
            P.i(f"v_pk_fma_f32 v[{b}:{b+1}], v[{f}:{f+1}], v[{f}:{f+1}], v[{b}:{b+1}]",cost=5)
        else:
            P.i(f"v_add_f32 v{a}, v{a}, v{f}\nv_add_f32 v{a+1}, v{a+1}, v{f+1}\nv_fmac_f32 v{b}, v{f}, v{f}\nv_fmac_f32 v{b+1}, v{f+1}, v{f+1}",cost=6)
    P.i(f"""
    v_add_f32 v{SM}, v{SM}, v{SM+4}
    v_add_f32 v{SM+1}, v{SM+1}, v{SM+5}
    v_add_f32 v{SQ}, v{SQ}, v{SQ+4}
    v_add_f32 v{SQ+1}, v{SQ+1}, v{SQ+5}
    v_add_f32 v{SM}, v{SM}, v{SM+1}
    v_add_f32 v{SQ}, v{SQ}, v{SQ+1}
    """)
    for mod in ("quad_perm:[1,0,3,2]","quad_perm:[2,3,0,1]","row_half_mirror"):
        P.atom(f"s_nop 1\nv_add_f32_dpp v{SM}, v{SM}, v{SM} {mod} row_mask:0xf bank_mask:0xf\nv_add_f32_dpp v{SQ}, v{SQ}, v{SQ} {mod} row_mask:0xf bank_mask:0xf",cost=16)
    M=SM; R=SQ; NR=LS+12
    P.i(f"""
    v_mul_f32 v{M}, 0x3acccccd, v{M}
    v_mul_f32 v{R}, 0x3acccccd, v{R}
    v_fma_f32 v{R}, -v{M}, v{M}, v{R}
    v_max_f32 v{R}, 0, v{R}
    v_cvt_pk_bf16_f32 v{R}, v{R}, v{R}
    v_cvt_pk_bf16_f32 v{M}, v{M}, v{M}
    v_lshlrev_b32 v{R}, 16, v{R}
    v_lshlrev_b32 v{M}, 16, v{M}
    v_add_f32 v{R}, 0x3727c5ac, v{R}
    v_cvt_pk_bf16_f32 v{R}, v{R}, v{R}
    v_lshlrev_b32 v{R}, 16, v{R}
    v_sqrt_f32 v{R}, v{R}
    s_nop 0
    v_cvt_pk_bf16_f32 v{R}, v{R}, v{R}
    v_lshlrev_b32 v{R}, 16, v{R}
    v_rcp_f32 v{R}, v{R}
    s_nop 0
    v_mov_b32 v{M+1}, v{R}
    v_mul_f32 v{NR}, v{M}, v{R}
    v_sub_f32 v{NR}, 0, v{NR}
    v_mov_b32 v{NR+1}, v{R}
    """)
    sv=S['sv']
    P.i(f"v_lshrrev_b32 v{t}, 3, v{lane}\nv_lshlrev_b32 v{t+1}, 3, v{t}\ns_lshl_b32 s{S['h0']}, s{S['wg']}, 6\ns_add_u32 s{S['h0']}, s{S['h0']}, {STG}")
    P.lock()
    P.atom(f"s_mov_b64 s[{sv}:{sv+1}], exec\ns_mov_b32 exec_lo, 0x01010101\ns_mov_b32 exec_hi, 0x01010101")
    P.vs(f"buffer_store_dwordx2 v[{M}:{M+1}], v{t+1}, s[{srd}:{srd+3}], s{S['h0']} offen {flags}",'pub1')
    P.atom(f"s_mov_b64 exec, s[{sv}:{sv+1}]")
    P.unlock()
def ln_norm(P,S,lane,srd,flags):
    t=LS; NR=LS+12
    P.i(f"""
    v_lshrrev_b32 v{t}, 3, v{lane}
    v_and_b32 v{t+1}, 7, v{lane}
    v_mul_u32_u24 v{t+2}, {LNRS}, v{t}
    v_lshl_add_u32 v{t+2}, v{t+1}, 4, v{t+2}
    v_add_u32 v{t+2}, s{S['lb']}, v{t+2}
    """)
    for i in range(10):
        for k in range(4):
            f=LF+2*(4*i+k)
            if True:
                P.i(f"v_fma_f32 v{f}, v{f}, v{NR+1}, v{NR}\nv_fma_f32 v{f+1}, v{f+1}, v{NR+1}, v{NR}")
            else:
                P.i(f"v_pk_fma_f32 v[{f}:{f+1}], v[{f}:{f+1}], v[{NR}:{NR+1}], v[{NR}:{NR+1}] op_sel:[0,1,0] op_sel_hi:[1,1,0]",cost=5)
            P.i(f"v_cvt_pk_bf16_f32 v{LR+4*i+k}, v{f}, v{f+1}",cost=5)
        P.l(f"ds_write_b128 v{t+2}, v[{LR+4*i}:{LR+4*i+3}] offset:{128*i}",cost=30)
    P.i(f"""
    v_bfe_u32 v{t}, v{lane}, 2, 2
    v_mul_u32_u24 v{t}, {LNRS}, v{t}
    v_lshrrev_b32 v{t+1}, 4, v{lane}
    v_lshl_add_u32 v{t}, v{t+1}, 5, v{t}
    v_and_b32 v{t+1}, 3, v{lane}
    v_lshl_add_u32 v{t}, v{t+1}, 3, v{t}
    v_add_u32 v{t}, s{S['lb']}, v{t}
    v_lshlrev_b32 v{t+3}, 4, v{lane}
    s_mul_i32 s{S['h0']}, s{S['wg']}, 10240
    s_add_u32 s{S['h0']}, s{S['h0']}, {XT}
    """)
    if os.environ.get('LNWAIT'): P.wl()
    for i2 in range(10):
        for h in range(2):
            P.l(f"ds_read_b64_tr_b16 v[{LF+4*i2+2*h}:{LF+4*i2+2*h+1}], v{t} offset:{128*i2+4*LNRS*h}",('lt',i2))
        if os.environ.get('LNWAIT') and i2%4==3: P.wl()
    for i2 in range(10):
        P.wl(('lt',i2))
        if i2%4==0 and i2: P.i(f"s_add_u32 s{S['h0']}, s{S['h0']}, 4096")
        P.vs(f"buffer_store_dwordx4 v[{LF+4*i2}:{LF+4*i2+3}], v{t+3}, s[{srd}:{srd+3}], s{S['h0']} offen offset:{1024*(i2%4)} {flags}",'pub2',cost=80)
CFR=152
CD=32
CONE=216
CA=220
CF=226
def CDR(i): return 104+4*i
def cs_setup(P,S,lane):
    t=CF
    P.i(f"""
    v_lshrrev_b32 v{t+1}, 4, v{lane}          ; g
    v_bfe_u32 v{t}, v{lane}, 2, 2             ; r
    v_lshl_add_u32 v{t}, v{t+1}, 3, v{t}
    v_mul_u32_u24 v{t}, 192, v{t}
    v_and_b32 v{t+2}, 3, v{lane}
    v_lshl_add_u32 v{t}, v{t+2}, 3, v{t}
    v_add_u32 v{CA}, {WBASE}, v{t}
    """)
    for i in range(4): P.i(f"v_mov_b32 v{CONE+i}, 0x3f803f80")

CSEQ=[(mat,c) for mat in range(2) for c in range(6)]
CFR2=208
def cs_reads(P,S,s):
    for i,(mat,c) in enumerate(CSEQ):
        b=CFR+4*i
        for h in range(2): P.l(f"ds_read_b64_tr_b16 v[{b+2*h}:{b+2*h+1}], v{CA} offset:{mat*W3OFF+6144*s+768*h+32*c}",('cs',s),cost=8)
def cs_mfma(P,S,s):
    P.wl(('cs',s))
    P.lock(); P.atom("s_setprio 1")
    for i,(mat,c) in enumerate(CSEQ):
        b=CFR+4*i; d=CDR(i)
        src=f"v[{d}:{d+3}]" if s else "0"
        P.i(f"v_mfma_f32_16x16x32_bf16 v[{d}:{d+3}], v[{b}:{b+3}], v[{CONE}:{CONE+3}], {src}",cost=17)
    P.atom("s_setprio 0"); P.unlock()
def cs_store(P,S,lane,srd,flags):
    sv=S['sv']; t=CF
    P.i(f"""
    s_nop 7
    v_lshrrev_b32 v{t}, 4, v{lane}
    v_lshlrev_b32 v{t}, 4, v{t}
    v_add_u32 v{t}, s{S['lb']}, v{t}
    v_lshlrev_b32 v{t+1}, 4, v{lane}
    v_add_u32 v{t+2}, s{S['lb']}, v{t+1}
    s_mul_i32 s{S['h0']}, s{S['cb']}, {16*768}
    s_mul_i32 s{S['h1']}, s{S['rb']}, 768
    s_add_u32 s{S['h0']}, s{S['h0']}, s{S['h1']}
    s_add_u32 s{S['h0']}, s{S['h0']}, {PCS}
    """)
    P.lock()
    P.atom(f"s_mov_b64 s[{sv}:{sv+1}], exec\ns_mov_b32 exec_lo, 0x00010001\ns_mov_b32 exec_hi, 0x00010001")
    for i,(mat,c) in enumerate(CSEQ):
        d=CDR(i)
        P.l(f"ds_write_b128 v{t}, v[{d}:{d+3}] offset:{mat*384+c*64}",cost=12)
    P.atom(f"s_mov_b32 exec_lo, -1\ns_mov_b32 exec_hi, 0xffff")
    P.l(f"ds_read_b128 v[{CFR}:{CFR+3}], v{t+2}",'cso')
    P.wl('cso')
    P.vs(f"buffer_store_dwordx4 v[{CFR}:{CFR+3}], v{t+1}, s[{srd}:{srd+3}], s{S['h0']} offen {flags}",'pub1',cost=50)
    P.atom(f"s_mov_b64 exec, s[{sv}:{sv+1}]")
    P.unlock()
WA=32
WR=38
WF=40
def w2_setup(P,S,lane):
    t=WF
    P.i(f"s_mov_b32 s{S['h0']}, {magic(10)}")
    for i in range(5):
        P.i(f"""
        v_add_u32 v{t}, {64*i}, v{lane}
        v_mul_hi_u32 v{t+1}, v{t}, s{S['h0']}
        v_mul_u32_u24 v{t+2}, 10, v{t+1}
        v_sub_u32 v{t+2}, v{t}, v{t+2}
        v_mul_u32_u24 v{t+1}, 1280, v{t+1}
        v_lshl_add_u32 v{WA+i}, v{t+2}, 4, v{t+1}
        """)
    P.i(f"""
    v_bfe_u32 v{t}, v{lane}, 5, 1
    v_lshlrev_b32 v{t}, 4, v{t}               ; 16*(g>>1)
    v_bfe_u32 v{t+1}, v{lane}, 4, 1
    v_lshl_add_u32 v{t}, v{t+1}, 2, v{t}      ; +4*(g&1)
    v_bfe_u32 v{t+1}, v{lane}, 2, 2
    v_add_u32 v{t}, v{t}, v{t+1}              ; +r
    v_mul_u32_u24 v{t}, 160, v{t}
    v_and_b32 v{t+1}, 3, v{lane}
    v_mul_u32_u24 v{t+1}, 40, v{t+1}
    v_add_u32 v{t}, v{t}, v{t+1}
    v_add_u32 v{WR}, s{S['lb']}, v{t}
    v_lshlrev_b32 v{WR+1}, 4, v{lane}
    """)
def w2_unit(P,S,k,srdw2,srd,flags):
    h0,h1,h2=S['h0'],S['h1'],S['h2']
    P.i(f"""
    s_mul_i32 s{h0}, s{S['u']}, 3
    s_add_u32 s{h0}, s{h0}, {k}
    s_mul_hi_u32 s{h1}, s{h0}, s{S['m48']}     ; db
    s_mul_i32 s{h2}, s{h1}, 48
    s_sub_u32 s{h0}, s{h0}, s{h2}              ; sigma
    s_mul_i32 s{h2}, s{h0}, {32*1280}
    s_mul_i32 s{S['h3']}, s{h1}, 160
    s_add_u32 s{h2}, s{h2}, s{S['h3']}
    """)
    for i in range(5):
        P.vl(f"s_add_u32 m0, s{S['lb']}, {1024*i}\ns_nop 0\nbuffer_load_dwordx4 v{WA+i}, s[{srdw2}:{srdw2+3}], s{h2} offen lds",('w2',k),cost=53)
    P.i(f"""
    s_mul_i32 s{h1}, s{h1}, {5*48}
    s_add_u32 s{h1}, s{h1}, s{h0}
    s_lshl_b32 s{h1}, s{h1}, 10
    s_add_u32 s{h1}, s{h1}, {W2F}
    """)
    P.wv(('w2',k))
    for dt in range(5):
        for h in range(2):
            P.l(f"ds_read_b64_tr_b16 v[{WF+4*dt+2*h}:{WF+4*dt+2*h+1}], v{WR} offset:{8*dt+1280*h}",('wt',k,dt))
    for dt in range(5):
        P.wl(('wt',k,dt))
        P.vs(f"buffer_store_dwordx4 v[{WF+4*dt}:{WF+4*dt+3}], v{WR+1}, s[{srd}:{srd+3}], s{h1} offen {flags}")
        if dt<4: P.i(f"s_add_u32 s{h1}, s{h1}, {48*1024}")

FV=248
def fl_clear(P,S,srd):
    t=FV
    P.i(f"""
    v_mov_b32 v{t}, 0
    v_mov_b32 v{t+1}, 0
    s_lshr_b32 s{S['h0']}, s{S['wg']}, 4
    s_lshl_b32 s{S['h0']}, s{S['h0']}, 7
    s_and_b32 s{S['h1']}, s{S['wg']}, 15
    s_lshl_b32 s{S['h1']}, s{S['h1']}, 2
    s_add_u32 s{S['h0']}, s{S['h0']}, s{S['h1']}
    s_add_u32 s{S['fst']}, s{S['h0']}, {FST}
    s_lshl_b32 s{S['h0']}, s{S['cb']}, 7
    s_lshl_b32 s{S['h1']}, s{S['rb']}, 2
    s_add_u32 s{S['h0']}, s{S['h0']}, s{S['h1']}
    s_add_u32 s{S['fcs']}, s{S['h0']}, {FCS}
    s_lshl_b32 s{S['h0']}, s{S['x']}, 5
    s_add_u32 s{S['h0']}, s{S['h0']}, s{S['j']}
    s_lshl_b32 s{S['h0']}, s{S['h0']}, 7
    s_add_u32 s{S['h0']}, s{S['h0']}, {FD}
    s_sub_u32 s{S['h1']}, 3, s{S['nch']}
    v_mov_b32 v{t+4}, 0
    v_mov_b32 v{t+5}, 0
    v_mov_b32 v{t+6}, s{S['h1']}
    v_mov_b32 v{t+7}, 0
    """)
    sv=S['sv']
    P.lock()
    P.atom(f"s_mov_b64 s[{sv}:{sv+1}], exec\ns_mov_b64 exec, 1")
    P.vs(f"buffer_store_dword v{t}, v{t+1}, s[{srd}:{srd+3}], s{S['fst']} offen sc1",'clr')
    P.vs(f"buffer_store_dword v{t}, v{t+1}, s[{srd}:{srd+3}], s{S['fcs']} offen sc1",'clr')
    P.vs(f"buffer_store_dwordx4 v[{t+4}:{t+7}], v{t+1}, s[{srd}:{srd+3}], s{S['h0']} offen sc1",'clr')
    P.atom(f"s_mov_b64 exec, s[{sv}:{sv+1}]")
    P.unlock()
def fl_cleared(P,S,srddbg):
    t=FV; sv=S['sv']
    P.wv('clr')
    P.i(f"s_and_b32 s{S['h0']}, s{S['wg']}, 1\ns_lshl_b32 s{S['h0']}, s{S['h0']}, 7\nv_mov_b32 v{t+2}, 1\nv_mov_b32 v{t+1}, 0")
    P.lock()
    P.atom(f"s_mov_b64 s[{sv}:{sv+1}], exec\ns_mov_b64 exec, 1")
    P.vs(f"buffer_atomic_add v{t+2}, v{t+1}, s[{srddbg}:{srddbg+3}], s{S['h0']} offen sc1")
    P.atom(f"s_mov_b64 exec, s[{sv}:{sv+1}]")
    P.unlock()
def fl_set(P,S,srd):
    t=FV; sv=S['sv']
    P.wv('pub')
    P.i(f"v_mov_b32 v{t+2}, 1\nv_mov_b32 v{t+1}, 0")
    P.lock()
    P.atom(f"s_mov_b64 s[{sv}:{sv+1}], exec\ns_mov_b64 exec, 1")
    P.vs(f"buffer_store_dword v{t+2}, v{t+1}, s[{srd}:{srd+3}], s{S['fst']} offen sc1")
    P.vs(f"buffer_store_dword v{t+2}, v{t+1}, s[{srd}:{srd+3}], s{S['fcs']} offen sc1")
    P.atom(f"s_mov_b64 exec, s[{sv}:{sv+1}]")
    P.unlock()
GA=32
def ga_clr_load(P,S,lane,srddbg):
    P.i(f"v_and_b32 v{GA}, 1, v{lane}\nv_lshlrev_b32 v{GA}, 7, v{GA}")
    P.vl(f"buffer_load_dword v{GA+1}, v{GA}, s[{srddbg}:{srddbg+3}], 0 offen sc1",'g1')
def ga_clr_check(P,S,lane,srddbg,srd,uid):
    P.wv('g1')
    P.atom(f"""
    Lgc{uid}:
    v_cmp_eq_u32 vcc, 128, v{GA+1}
    s_nop 1
    s_cmp_eq_u64 vcc, exec
    s_cbranch_scc1 Lgcok{uid}
    s_sleep 2
    buffer_load_dword v{GA+1}, v{GA}, s[{srddbg}:{srddbg+3}], 0 offen sc1
    s_waitcnt vmcnt(0)
    s_branch Lgc{uid}
    Lgcok{uid}:
    """,cost=20)
    P.i(f"""
    v_and_b32 v{GA+2}, 15, v{lane}
    v_lshlrev_b32 v{GA+2}, 2, v{GA+2}
    s_lshl_b32 s{S['h0']}, s{S['rb']}, 7
    s_add_u32 s{S['h0']}, s{S['h0']}, {FST}
    s_lshl_b32 s{S['h1']}, s{S['cb']}, 7
    s_add_u32 s{S['h1']}, s{S['h1']}, {FCS}
    v_add_u32 v{GA+3}, s{S['h0']}, v{GA+2}
    v_add_u32 v{GA+4}, s{S['h1']}, v{GA+2}
    v_mov_b32 v{GA+5}, s{S['h0']}
    v_cmp_gt_u32 vcc, 16, v{lane}
    s_nop 1
    v_cndmask_b32 v{GA+4}, v{GA+4}, v{GA+3}, vcc
    v_cmp_lt_u32 vcc, 25, v{lane}
    s_nop 1
    v_cndmask_b32 v{GA+4}, v{GA+4}, v{GA+5}, vcc
    """)
    P.vl(f"buffer_load_dword v{GA+6}, v{GA+4}, s[{srd}:{srd+3}], 0 offen sc1",'g2')
def ga_flag_check(P,S,lane,srd,uid):
    P.wv('g2')
    P.atom(f"""
    Lgf{uid}:
    v_cmp_eq_u32 vcc, 1, v{GA+6}
    s_nop 1
    s_cmp_eq_u64 vcc, exec
    s_cbranch_scc1 Lgfok{uid}
    s_sleep 2
    buffer_load_dword v{GA+6}, v{GA+4}, s[{srd}:{srd+3}], 0 offen sc1
    s_waitcnt vmcnt(0)
    s_branch Lgf{uid}
    Lgfok{uid}:
    """,cost=20)
    P.i(f"""
    v_lshlrev_b32 v{GA+7}, 4, v{lane}
    s_lshl_b32 s{S['h0']}, s{S['rb']}, 10
    s_add_u32 s{S['h0']}, s{S['h0']}, {STG}
    s_mul_i32 s{S['h1']}, s{S['cb']}, {16*768}
    s_add_u32 s{S['h1']}, s{S['h1']}, {PCS}
    """)
    P.vl(f"buffer_load_dwordx4 v[{GA+8}:{GA+11}], v{GA+7}, s[{srd}:{srd+3}], s{S['h0']} offen sc1",'g3')
    for r in range(10):
        P.vl(f"s_add_u32 s{S['h2']}, s{S['h1']}, {768*r}\nbuffer_load_dwordx4 v[{GA+12+4*r}:{GA+15+4*r}], v{GA+7}, s[{srd}:{srd+3}], s{S['h2']} offen sc1",'g3')
def ga_finish(P,S,lane):
    P.wv('g3')
    b=GA+12
    for r in range(1,10):
        for k in range(4): P.i(f"v_add_f32 v{b+k}, v{b+k}, v{b+4*r+k}",cost=5)
    sv=S['sv']
    P.i(f"v_add_u32 v{GA+6}, {STAT}, v{GA+7}\nv_add_u32 v{GA+5}, {CSL}, v{GA+7}")
    P.l(f"ds_write_b128 v{GA+6}, v[{GA+8}:{GA+11}]")
    P.lock()
    P.atom(f"s_mov_b64 s[{sv}:{sv+1}], exec\ns_mov_b32 exec_lo, -1\ns_mov_b32 exec_hi, 0xffff")
    P.l(f"ds_write_b128 v{GA+5}, v[{b}:{b+3}]")
    P.atom(f"s_mov_b64 exec, s[{sv}:{sv+1}]")
    P.unlock()
    P.wl()

SPIN=1<<21
def s3_clear(P,S,srd):
    t=FV
    P.i(f"""
    v_mov_b32 v{t}, 0
    v_mov_b32 v{t+1}, 0
    s_lshl_b32 s{S['h0']}, s{S['wg']}, 2
    s_add_u32 s{S['fst']}, s{S['h0']}, {FL}
    s_sub_u32 s{S['h0']}, s{S['j']}, 16
    s_lshl_b32 s{S['h0']}, s{S['h0']}, 3
    s_add_u32 s{S['h0']}, s{S['h0']}, s{S['x']}
    s_and_b32 s{S['h1']}, s{S['wg']}, 127
    s_add_u32 s{S['h1']}, s{S['h1']}, 128
    """)
    P.atom(f"s_cmp_ge_u32 s{S['j']}, 16\ns_cselect_b32 s{S['h0']}, s{S['h0']}, s{S['h1']}")
    P.i(f"""
    s_lshl_b32 s{S['h0']}, s{S['h0']}, 2
    s_add_u32 s{S['h2']}, s{S['h0']}, {FW}
    s_lshl_b32 s{S['h0']}, s{S['rb']}, 4
    s_add_u32 s{S['h0']}, s{S['h0']}, s{S['cb']}
    s_lshl_b32 s{S['h0']}, s{S['h0']}, 7
    s_add_u32 s{S['h3']}, s{S['h0']}, {FH}
    s_lshl_b32 s{S['h0']}, s{S['x']}, 5
    s_add_u32 s{S['h0']}, s{S['h0']}, s{S['j']}
    s_lshl_b32 s{S['h0']}, s{S['h0']}, 7
    s_add_u32 s{S['h0']}, s{S['h0']}, {FD}
    s_sub_u32 s{S['h1']}, 3, s{S['nch']}
    v_mov_b32 v{t+4}, 0
    v_mov_b32 v{t+5}, 0
    v_mov_b32 v{t+6}, s{S['h1']}
    v_mov_b32 v{t+7}, 0
    """)
    sv=S['sv']
    P.lock()
    P.atom(f"s_mov_b64 s[{sv}:{sv+1}], exec\ns_mov_b64 exec, 1")
    for r in ('fst','h2','h3'):
        P.vs(f"buffer_store_dword v{t}, v{t+1}, s[{srd}:{srd+3}], s{S[r]} offen sc1",'clr',cost=30)
    P.atom(f"s_add_u32 s{S['h1']}, s{S['fst']}, {FX-FL}")
    P.vs(f"buffer_store_dword v{t}, v{t+1}, s[{srd}:{srd+3}], s{S['h1']} offen sc1",'clr',cost=30)
    P.vs(f"buffer_store_dwordx4 v[{t+4}:{t+7}], v{t+1}, s[{srd}:{srd+3}], s{S['h0']} offen sc1",'clr',cost=30)
    P.atom(f"s_mov_b64 exec, s[{sv}:{sv+1}]")
    P.unlock()
def s3_set_fl(P,S,srd,tag='pub1',extra=0):
    t=FV; sv=S['sv']
    P.wv(tag)
    P.i(f"v_mov_b32 v{t+2}, 1\nv_mov_b32 v{t+1}, 0\ns_add_u32 s{S['h0']}, s{S['fst']}, {extra}")
    P.lock()
    P.atom(f"s_mov_b64 s[{sv}:{sv+1}], exec\ns_mov_b64 exec, 1")
    P.vs(f"buffer_store_dword v{t+2}, v{t+1}, s[{srd}:{srd+3}], s{S['h0']} offen sc1",cost=30)
    P.atom(f"s_mov_b64 exec, s[{sv}:{sv+1}]")
    P.unlock()
def s3_set_fw(P,S,srd,t):
    sv=S['sv']
    P.wv('w2pub')
    P.i(f"v_mov_b32 v{t}, 1\nv_mov_b32 v{t+1}, 0\ns_lshl_b32 s{S['h0']}, s{S['u']}, 2\ns_add_u32 s{S['h0']}, s{S['h0']}, {FW}")
    P.lock()
    P.atom(f"s_mov_b64 s[{sv}:{sv+1}], exec\ns_mov_b64 exec, 1")
    P.vs(f"buffer_store_dword v{t}, v{t+1}, s[{srd}:{srd+3}], s{S['h0']} offen sc1",cost=30)
    P.atom(f"s_mov_b64 exec, s[{sv}:{sv+1}]")
    P.unlock()
def spin(uid,load,check,S,endlab,sleep=3):
    return f"""
    s_mov_b32 s{S['spin']}, 0
    Lsp{uid}:
    {check}
    s_nop 1
    s_cmp_eq_u64 vcc, exec
    s_cbranch_scc1 Lspok{uid}
    s_add_u32 s{S['spin']}, s{S['spin']}, 1
    s_cmp_gt_u32 s{S['spin']}, {SPIN}
    s_cbranch_scc1 {endlab}
    s_sleep {sleep}
    {load}
    s_waitcnt vmcnt(0)
    s_branch Lsp{uid}
    Lspok{uid}:
    """
def s3_ga_clr_load(P,S,lane,srddbg):
    P.i(f"v_and_b32 v{GA}, 1, v{lane}\nv_lshlrev_b32 v{GA}, 7, v{GA}")
    P.vl(f"buffer_load_dword v{GA+1}, v{GA}, s[{srddbg}:{srddbg+3}], 0 offen sc1",'g1',cost=30)
def s3_ga_clr_check(P,S,lane,srddbg,srd,endlab):
    P.wv('g1')
    P.atom(spin('clr',f"buffer_load_dword v{GA+1}, v{GA}, s[{srddbg}:{srddbg+3}], 0 offen sc1",f"v_cmp_eq_u32 vcc, 128, v{GA+1}",S,endlab),cost=30)
    P.i(f"""
    v_lshlrev_b32 v{GA+2}, 4, v{lane}
    v_and_b32 v{GA+3}, 15, v{lane}
    v_lshlrev_b32 v{GA+3}, 2, v{GA+3}
    s_lshl_b32 s{S['h0']}, s{S['db']}, 6
    s_add_u32 s{S['h3']}, s{S['h0']}, {FW}
    s_mov_b32 s{S['h2']}, {FL}
    """)
    P.vl(f"buffer_load_dwordx4 v[{GA+4}:{GA+7}], v{GA+2}, s[{srd}:{srd+3}], s{S['h2']} offen sc1",'g2',cost=30)
    P.vl(f"buffer_load_dword v{GA+8}, v{GA+3}, s[{srd}:{srd+3}], s{S['h3']} offen sc1",'g2',cost=30)
def s3_ga_flag_check(P,S,lane,srd,endlab):
    P.wv('g2')
    ld=f"buffer_load_dwordx4 v[{GA+4}:{GA+7}], v{GA+2}, s[{srd}:{srd+3}], s{S['h2']} offen sc1\nbuffer_load_dword v{GA+8}, v{GA+3}, s[{srd}:{srd+3}], s{S['h3']} offen sc1"
    ck=f"v_and_b32 v{GA+9}, v{GA+4}, v{GA+5}\nv_and_b32 v{GA+10}, v{GA+6}, v{GA+7}\nv_and_b32 v{GA+9}, v{GA+9}, v{GA+10}\nv_and_b32 v{GA+9}, v{GA+9}, v{GA+8}\nv_cmp_eq_u32 vcc, 1, v{GA+9}"
    P.atom(spin('fl',ld,ck,S,endlab),cost=40)
    G2=GA+12
    P.i(f"""
    v_lshlrev_b32 v{GA+7}, 4, v{lane}
    s_lshl_b32 s{S['h0']}, s{S['rb']}, 10
    s_add_u32 s{S['h0']}, s{S['h0']}, {STG}
    s_mul_i32 s{S['h1']}, s{S['cb']}, {16*768}
    s_add_u32 s{S['h1']}, s{S['h1']}, {PCS}
    """)
    P.vl(f"buffer_load_dwordx4 v[{GA+8}:{GA+11}], v{GA+7}, s[{srd}:{srd+3}], s{S['h0']} offen sc1",'g3',cost=30)
    for r in range(10):
        P.vl(f"s_add_u32 s{S['h2']}, s{S['h1']}, {768*r}\nbuffer_load_dwordx4 v[{GA+12+4*r}:{GA+15+4*r}], v{GA+7}, s[{srd}:{srd+3}], s{S['h2']} offen sc1",'g3',cost=30)

L2ONE=216
L2S=200
def ln2_loads(P,S,lane):
    t=LS
    P.i(f"""
    v_and_b32 v{t}, 7, v{lane}                 ; row
    v_bfe_u32 v{t+1}, v{lane}, 3, 1            ; half
    v_lshrrev_b32 v{t+3}, 4, v{lane}           ; g
    v_lshl_add_u32 v{t+1}, v{t+1}, 2, v{t+3}
    v_mul_u32_u24 v{t+2}, 1280, v{t}
    v_lshl_add_u32 v{t+2}, v{t+1}, 4, v{t+2}
    s_mul_i32 s{S['h0']}, s{S['wg']}, {8*1280}
    """)
    for i in range(10):
        P.vl(f"buffer_load_dwordx4 v[{LR+4*i}:{LR+4*i+3}], v{t+2}, s[{S['srdx']}:{S['srdx']+3}], s{S['h0']} offen offset:{128*i}",'ln',cost=30)
def ln2_stats(P,S,lane,srd,flags):
    t=LS; M=LS+4; R=LS+6; NR=LS+12; Dm=L2S; Dg=L2S+4; sv=S['sv']
    P.wv('ln')
    P.lock(); P.atom("s_setprio 1")
    for i in range(10):
        x=LR+4*i
        P.i(f"v_mfma_f32_16x16x32_bf16 v[{Dm}:{Dm+3}], v[{CONE}:{CONE+3}], v[{x}:{x+3}], {'0' if i==0 else f'v[{Dm}:{Dm+3}]'}",cost=17)
        P.i(f"v_mfma_f32_16x16x32_bf16 v[{Dg}:{Dg+3}], v[{x}:{x+3}], v[{x}:{x+3}], {'0' if i==0 else f'v[{Dg}:{Dg+3}]'}",cost=17)
    P.atom("s_setprio 0"); P.unlock()
    P.i(f"""
    v_and_b32 v{t}, 3, v{lane}
    v_and_b32 v{t+1}, 15, v{lane}
    v_lshrrev_b32 v{t+3}, 2, v{t+1}
    v_lshl_add_u32 v{t+3}, v{t+3}, 4, v{t+1}
    v_lshlrev_b32 v{t+3}, 2, v{t+3}
    """)
    P.atom(f"""
    s_nop 4
    v_cmp_eq_u32 vcc, 1, v{t}
    s_nop 1
    v_cndmask_b32 v{R}, v{Dg}, v{Dg+1}, vcc
    v_cmp_eq_u32 vcc, 2, v{t}
    s_nop 1
    v_cndmask_b32 v{R}, v{R}, v{Dg+2}, vcc
    v_cmp_eq_u32 vcc, 3, v{t}
    s_nop 1
    v_cndmask_b32 v{R}, v{R}, v{Dg+3}, vcc
    v_mov_b32 v{M}, v{Dm}
    """,cost=70)
    P.l(f"ds_bpermute_b32 v{R}, v{t+3}, v{R}",'bp',cost=10)
    P.wl('bp')
    P.atom(f"s_nop 1\nv_add_f32_dpp v{M}, v{M}, v{M} row_ror:8 row_mask:0xf bank_mask:0xf\nv_add_f32_dpp v{R}, v{R}, v{R} row_ror:8 row_mask:0xf bank_mask:0xf",cost=20)
    P.i(f"""
    v_mul_f32 v{M}, 0x3acccccd, v{M}
    v_mul_f32 v{R}, 0x3acccccd, v{R}
    v_fma_f32 v{R}, -v{M}, v{M}, v{R}
    v_max_f32 v{R}, 0, v{R}
    v_cvt_pk_bf16_f32 v{R}, v{R}, v{R}
    v_cvt_pk_bf16_f32 v{M}, v{M}, v{M}
    v_lshlrev_b32 v{R}, 16, v{R}
    v_lshlrev_b32 v{M}, 16, v{M}
    v_add_f32 v{R}, 0x3727c5ac, v{R}
    v_cvt_pk_bf16_f32 v{R}, v{R}, v{R}
    v_lshlrev_b32 v{R}, 16, v{R}
    v_sqrt_f32 v{R}, v{R}
    s_nop 0
    v_cvt_pk_bf16_f32 v{R}, v{R}, v{R}
    v_lshlrev_b32 v{R}, 16, v{R}
    v_rcp_f32 v{R}, v{R}
    s_nop 0
    v_mov_b32 v{M+1}, v{R}
    v_mul_f32 v{NR}, v{M}, v{R}
    v_sub_f32 v{NR}, 0, v{NR}
    v_mov_b32 v{NR+1}, v{R}
    v_and_b32 v{t}, 7, v{lane}
    v_lshlrev_b32 v{t+1}, 3, v{t}
    s_lshl_b32 s{S['h0']}, s{S['wg']}, 6
    s_add_u32 s{S['h0']}, s{S['h0']}, {STG}
    """,cost=6)
    P.lock()
    P.atom(f"s_mov_b64 s[{sv}:{sv+1}], exec\ns_mov_b64 exec, 0xff")
    P.vs(f"buffer_store_dwordx2 v[{M}:{M+1}], v{t+1}, s[{srd}:{srd+3}], s{S['h0']} offen {flags}",'pub1',cost=40)
    P.atom(f"s_mov_b64 exec, s[{sv}:{sv+1}]")
    P.unlock()
def ln2_norm(P,S,lane,srd,flags):
    t=LS; NR=LS+12; F=LF
    P.i(f"""
    v_and_b32 v{t}, 7, v{lane}
    v_bfe_u32 v{t+1}, v{lane}, 3, 1
    v_lshrrev_b32 v{t+3}, 4, v{lane}
    v_lshl_add_u32 v{t+1}, v{t+1}, 2, v{t+3}
    v_mul_u32_u24 v{t+2}, {LNRS}, v{t}
    v_lshl_add_u32 v{t+2}, v{t+1}, 4, v{t+2}
    v_add_u32 v{t+2}, s{S['lb']}, v{t+2}
    """,cost=6)
    for i in range(10):
        for k in range(4):
            r=LR+4*i+k; f=F+2*((4*i+k)%8)
            P.i(f"v_lshlrev_b32 v{f}, 16, v{r}\nv_and_b32 v{f+1}, 0xffff0000, v{r}\nv_fma_f32 v{f}, v{f}, v{NR+1}, v{NR}\nv_fma_f32 v{f+1}, v{f+1}, v{NR+1}, v{NR}\nv_cvt_pk_bf16_f32 v{r}, v{f}, v{f+1}",cost=7)
        P.l(f"ds_write_b128 v{t+2}, v[{LR+4*i}:{LR+4*i+3}] offset:{128*i}",cost=35)
    P.i(f"""
    v_bfe_u32 v{t}, v{lane}, 2, 2
    v_mul_u32_u24 v{t}, {LNRS}, v{t}
    v_lshrrev_b32 v{t+1}, 4, v{lane}
    v_lshl_add_u32 v{t}, v{t+1}, 5, v{t}
    v_and_b32 v{t+1}, 3, v{lane}
    v_lshl_add_u32 v{t}, v{t+1}, 3, v{t}
    v_add_u32 v{t}, s{S['lb']}, v{t}
    v_lshlrev_b32 v{t+3}, 4, v{lane}
    s_mul_i32 s{S['h0']}, s{S['wg']}, 10240
    s_add_u32 s{S['h0']}, s{S['h0']}, {XT}
    """,cost=6)
    TR=LF+16
    for i2 in range(10):
        for h in range(2):
            P.l(f"ds_read_b64_tr_b16 v[{TR+4*i2+2*h}:{TR+4*i2+2*h+1}], v{t} offset:{128*i2+4*LNRS*h}",('lt',i2),cost=8)
        if i2>=2:
            j=i2-2; P.wl(('lt',j))
            if j%4==0 and j: P.i(f"s_add_u32 s{S['h0']}, s{S['h0']}, 4096")
            P.vs(f"buffer_store_dwordx4 v[{TR+4*j}:{TR+4*j+3}], v{t+3}, s[{srd}:{srd+3}], s{S['h0']} offen offset:{1024*(j%4)} {flags}",'pub2',cost=80)
    for j in (8,9):
        P.wl(('lt',j))
        if j%4==0 and j: P.i(f"s_add_u32 s{S['h0']}, s{S['h0']}, 4096")
        P.vs(f"buffer_store_dwordx4 v[{TR+4*j}:{TR+4*j+3}], v{t+3}, s[{srd}:{srd+3}], s{S['h0']} offen offset:{1024*(j%4)} {flags}",'pub2',cost=80)

W2R=64
def w2b_loads(P,S,srdw2):
    h0,h1,h2=S['h0'],S['h1'],S['h2']
    for k in range(3):
        P.i(f"""
        s_mul_i32 s{h0}, s{S['u']}, 3
        s_add_u32 s{h0}, s{h0}, {k}
        s_mul_hi_u32 s{h1}, s{h0}, s{S['m48']}
        s_mul_i32 s{h2}, s{h1}, 48
        s_sub_u32 s{h0}, s{h0}, s{h2}
        s_mul_i32 s{h2}, s{h0}, {32*1280}
        s_mul_i32 s{S['h3']}, s{h1}, 160
        s_add_u32 s{h2}, s{h2}, s{S['h3']}
        s_mul_i32 s{h1}, s{h1}, {5*48}
        s_add_u32 s{h1}, s{h1}, s{h0}
        s_lshl_b32 s{h1}, s{h1}, 10
        s_add_u32 s{S['wo']+k}, s{h1}, {W2F}
        """)
        for i in range(5):
            r=W2R+20*k+4*i
            P.vl(f"buffer_load_dwordx4 v[{r}:{r+3}], v{WA+i}, s[{srdw2}:{srdw2+3}], s{h2} offen",('w2',k),cost=30)
def w2b_unit(P,S,k,lane,srd,flags):
    P.wv(('w2',k))
    P.i(f"v_lshlrev_b32 v37, 4, v{lane}\nv_add_u32 v37, s{S['lb']}, v37")
    for i in range(5):
        r=W2R+20*k+4*i
        P.l(f"ds_write_b128 v37, v[{r}:{r+3}] offset:{1024*i}",cost=35)
    for dt in range(5):
        for h in range(2):
            P.l(f"ds_read_b64_tr_b16 v[{WF+4*dt+2*h}:{WF+4*dt+2*h+1}], v{WR} offset:{8*dt+1280*h}",('wt',k,dt),cost=8)
    for dt in range(5):
        P.wl(('wt',k,dt))
        P.vs(f"s_add_u32 s{S['h1']}, s{S['wo']+k}, {48*1024*dt}\nbuffer_store_dwordx4 v[{WF+4*dt}:{WF+4*dt+3}], v{WR+1}, s[{srd}:{srd+3}], s{S['h1']} offen {flags}",'w2pub',cost=80)

def s3_fx_load(P,S,lane,srd):
    P.i(f"v_lshlrev_b32 v{FV}, 4, v{lane}\ns_mov_b32 s{S['h3']}, {FX}")
    P.vl(f"buffer_load_dwordx4 v[{FV+4}:{FV+7}], v{FV}, s[{srd}:{srd+3}], s{S['h3']} offen sc1",'fx')
def s3_fx_check(P,S,lane,srd,endlab):
    P.wv('fx')
    ld=f"buffer_load_dwordx4 v[{FV+4}:{FV+7}], v{FV}, s[{srd}:{srd+3}], s{S['h3']} offen sc1"
    ck=f"v_and_b32 v{FV+1}, v{FV+4}, v{FV+5}\nv_and_b32 v{FV+2}, v{FV+6}, v{FV+7}\nv_and_b32 v{FV+1}, v{FV+1}, v{FV+2}\nv_cmp_eq_u32 vcc, 1, v{FV+1}"
    P.atom(spin('fx',ld,ck,S,endlab),cost=40)

def ln3_st(P,S,lane,srd,flags,lst):
    t=LS
    P.i(f"""
    v_and_b32 v{t+4}, 7, v{lane}
    v_lshlrev_b32 v{t+4}, 3, v{t+4}
    v_add_u32 v{t+5}, {lst}, v{t+4}
    s_lshl_b32 s{S['h1']}, s{S['wg']}, 6
    s_add_u32 s{S['h1']}, s{S['h1']}, {STG}
    """)
    P.l(f"ds_read_b64 v[{t+6}:{t+7}], v{t+5}",'st')
    sv=S['sv']
    P.wl('st')
    P.lock()
    P.atom(f"s_mov_b64 s[{sv}:{sv+1}], exec\ns_mov_b64 exec, 0xff")
    P.vs(f"buffer_store_dwordx2 v[{t+6}:{t+7}], v{t+4}, s[{srd}:{srd+3}], s{S['h1']} offen {flags}",'pub1')
    P.atom(f"s_mov_b64 exec, s[{sv}:{sv+1}]")
    P.unlock()
def ln3_xt_reads(P,S,lane):
    t=LS; TR=LR
    P.i(f"""
    v_bfe_u32 v{t}, v{lane}, 2, 2
    v_mul_u32_u24 v{t}, {LNRS}, v{t}
    v_lshrrev_b32 v{t+1}, 4, v{lane}
    v_lshl_add_u32 v{t}, v{t+1}, 5, v{t}
    v_and_b32 v{t+1}, 3, v{lane}
    v_lshl_add_u32 v{t}, v{t+1}, 3, v{t}
    v_add_u32 v{t}, s{S['lb']}, v{t}
    """)
    for i2 in range(10):
        for h in range(2):
            P.l(f"ds_read_b64_tr_b16 v[{TR+4*i2+2*h}:{TR+4*i2+2*h+1}], v{t} offset:{128*i2+4*LNRS*h}",'lt')
    P.wl('lt')
def ln3_xt_stores(P,S,lane,srd,flags):
    t=LS; TR=LR
    P.i(f"v_lshlrev_b32 v{t+3}, 4, v{lane}\ns_mul_i32 s{S['h0']}, s{S['wg']}, 10240\ns_add_u32 s{S['h0']}, s{S['h0']}, {XT}")
    for j in range(10):
        if j%4==0 and j: P.i(f"s_add_u32 s{S['h0']}, s{S['h0']}, 4096")
        P.vs(f"buffer_store_dwordx4 v[{TR+4*j}:{TR+4*j+3}], v{t+3}, s[{srd}:{srd+3}], s{S['h0']} offen offset:{1024*(j%4)} {flags}",'pub2')
```

```python
import os
from asmlib import *
from sched import *
from layout import *
KTS=768
KROW=272
KSCR=5888
KP=32
KDT=44
KWA=48
KRA=56
KD=68
KAF=84
KBF=116
KV=132
def cmul(P,d,a,b,t):
    P.i(f"""
    v_pk_mul_f32 v[{t}:{t+1}], v[{a}:{a+1}], v[{b}:{b+1}] op_sel:[1,1] op_sel_hi:[1,0] neg_lo:[1,0]
    v_pk_fma_f32 v[{d}:{d+1}], v[{a}:{a+1}], v[{b}:{b+1}], v[{t}:{t+1}] op_sel:[0,0,0] op_sel_hi:[0,1,1]
    """,cost=5)
def edirect(P,dr,di,al,be,p,t):
    P.i(f"""
    v_mul_f32 v{t}, {p}, v{al}
    v_mul_f32 v{t+1}, {p}, v{be}
    v_exp_f32 v{t}, v{t}
    v_fract_f32 v{t+1}, v{t+1}
    v_cos_f32 v{dr}, v{t+1}
    v_sin_f32 v{di}, v{t+1}
    s_nop 0
    v_mul_f32 v{dr}, v{dr}, v{t}
    v_mul_f32 v{di}, v{di}, v{t}
    """)
def kgen_loads(P,S,lane,tmp):
    P.i(f"s_mul_i32 s{S['k0']}, s{S['ch']}, 384\nv_lshlrev_b32 v{tmp}, 2, v{lane}\nv_lshlrev_b32 v{tmp+2}, 1, v{lane}\ns_lshl_b32 s{S['k1']}, s{S['ch']}, 1\nv_mov_b32 v{tmp+1}, s{S['k1']}")
    P.vl(f"buffer_load_ushort v{KDT}, v{tmp+1}, s[{S['sD']}:{S['sD']+3}], 0 offen",'kp',cost=30)
    for k,nm in enumerate(('sA','sI','sR','sC')):
        P.vl(f"buffer_load_dword v{KP+k}, v{tmp}, s[{S[nm]}:{S[nm]+3}], s{S['k0']} offen",'kp',cost=30)
    for k,nm in enumerate(('sA','sI','sR','sC')):
        P.vl(f"buffer_load_ushort v{KP+4+k}, v{tmp+2}, s[{S[nm]}:{S[nm]+3}], s{S['k0']} offen offset:256",'kp2',cost=30)
def kgen_setup(P,S,lane):
    t=KV
    P.i(f"v_lshlrev_b32 v{t}, 2, v{lane}\nv_add_u32 v{KWA}, s{S['kb']}, v{t}")
    for c in range(1,6): P.i(f"v_add_u32 v{KWA+c}, {4*KROW*c}, v{KWA}")
    P.i(f"""
    v_and_b32 v{t}, 15, v{lane}
    v_lshrrev_b32 v{t+1}, 4, v{lane}
    v_mul_u32_u24 v{t}, {KROW}, v{t}
    v_lshl_add_u32 v{t+1}, v{t+1}, 4, v{t}
    v_add_u32 v{KRA}, s{S['kb']}, v{t+1}
    """)
    for i in range(16): P.i(f"v_mov_b32 v{KD+i}, 0")
def kgen_dt(P,S):
    d=KDT
    P.wv('kp')
    P.i(f"""
    v_lshlrev_b32 v{d}, 16, v{d}
    v_mul_f32 v{d}, 0x3fb8aa3b, v{d}
    v_exp_f32 v{d}, v{d}
    s_nop 0
    v_cvt_pk_bf16_f32 v{d}, v{d}, v{d}
    v_lshlrev_b32 v{d}, 16, v{d}
    """)
class KG:
    V=KV
    def __init__(s,g,pk=False):
        V=s.V; s.g=g; s.pk=pk
        s.AL,s.BE,s.C=V,V+1,V+2
        s.E1,s.E2,s.E4,s.E8,s.E256,s.E16=V+4,V+8,V+12,V+16,V+20,V+24
        s.buf={'X':[V+28,V+30],'Y':[V+32,V+34],'Z':[V+36,V+38],'W':[V+40,V+42]}
        s.cur={}
        s.TT=[V+44+2*i for i in range(4)]; s.tk=0; s.OUT=V+52; s.k=0; s.held={}
    def T(s): s.tk=(s.tk+1)%4; return s.TT[s.tk]
    def mul(s,P,name,a,E):
        b=s.buf[name]; d=b[0] if s.cur.get(name)!=b[0] else b[1]
        if s.pk: cmul(P,d,a,E,s.T())
        else:
            P.i(f"""
            v_mul_f32 v{d}, v{a}, v{E}
            v_mul_f32 v{d+1}, v{a}, v{E+1}
            v_fmac_f32 v{d}, v{a+1}, v{E+2}
            v_fmac_f32 v{d+1}, v{a+1}, v{E}
            """,cost=5)
        s.cur[name]=d; return d
    def sq(s,P,d,a):
        t=s.T()
        P.i(f"""
        v_mul_f32 v{d}, v{a}, v{a}
        v_mul_f32 v{d+1}, v{a}, v{a+1}
        v_fmac_f32 v{d}, v{a+1}, v{a+2}
        v_add_f32 v{d+1}, v{d+1}, v{d+1}
        v_sub_f32 v{d+2}, 0, v{d+1}
        """,cost=5)
    def pack(s,P,v,r,neg):
        o=s.OUT+(s.k%8); s.k+=1
        P.i(f"v_cvt_pk_bf16_f32 v{o}, v{r}, {'-' if neg else ''}v{r+1}",cost=5); s.held[v]=o
    def wr2(s,P,v):
        a=KWA+(v>>2); o0=(v&3)*68
        if os.environ.get('WPRIO'):
            P.l(f"s_setprio 1\nds_write2_b32 v{a}, v{s.held[v]}, v{s.held[v+1]} offset0:{o0} offset1:{o0+68}\ns_setprio 0",cost=30)
        else:
            P.l(f"ds_write2_b32 v{a}, v{s.held[v]}, v{s.held[v+1]} offset0:{o0} offset1:{o0+68}",cost=30)
    def wr1(s,P,v): P.l(f"ds_write_b32 v{KWA+(v>>2)}, v{s.held[v]} offset:{(v&3)*KROW}",cost=14)
    def setup(s,P):
        AL,BE,C=s.AL,s.BE,s.C; d=KDT
        p=KP+(4 if s.g==2 else 0)
        up=(lambda dst,src: f"v_and_b32 v{dst}, 0xffff0000, v{src}") if s.g==1 else (lambda dst,src: f"v_lshlrev_b32 v{dst}, 16, v{src}")
        P.i(f"""
        {up(AL,p)}
        {up(BE,p+1)}
        v_mul_f32 v{AL}, 0x3fb8aa3b, v{AL}
        {up(C,p+2)}
        v_exp_f32 v{AL}, v{AL}
        {up(C+1,p+3)}
        v_mul_f32 v{BE}, v{BE}, v{d}
        v_cvt_pk_bf16_f32 v{AL}, v{AL}, v{AL}
        v_mul_f32 v{C}, v{C}, v{d}
        v_lshlrev_b32 v{AL}, 16, v{AL}
        v_mul_f32 v{C+1}, v{C+1}, v{d}
        v_mul_f32 v{AL}, v{AL}, v{d}
        v_mul_f32 v{BE}, 0.15915494, v{BE}
        v_mul_f32 v{AL}, 0xbfb8aa3b, v{AL}
        v_add_f32 v{C}, v{C}, v{C}
        v_add_f32 v{C+1}, v{C+1}, v{C+1}
        """,cost=5)
        for E,p_ in ((s.E1,"1.0"),(s.E256,"0x43800000"),(s.E8,"0x41000000")):
            edirect(P,E,E+1,AL,BE,p_,s.T()); P.i(f"v_sub_f32 v{E+2}, 0, v{E+1}",cost=5)
        s.sq(P,s.E2,s.E1); s.sq(P,s.E16,s.E8); s.sq(P,s.E4,s.E2)
    def rows(s,P):
        C=s.C; E1,E2,E4,E256=s.E1,s.E2,s.E4,s.E256
        pk=lambda v,r: s.pack(P,v,r,True); wr2=lambda v:s.wr2(P,v); M=lambda n,a,E:s.mul(P,n,a,E)
        c=s.cur
        pk(0,C)
        M('X',C,E1); M('Y',C,E256)
        pk(1,c['X']); pk(8,c['Y']); wr2(0)
        M('X',c['X'],E1); M('Z',c['Y'],E2); M('Y',c['Y'],E256)
        pk(2,c['X']); pk(9,c['Z']); pk(12,c['Y']); wr2(8)
        M('X',c['X'],E1); M('Z',c['Z'],E2); M('W',c['Y'],E4); M('Y',c['Y'],E256)
        pk(3,c['X']); pk(13,c['W']); wr2(2); wr2(12); pk(10,c['Z']); pk(14,c['Y'])
        M('X',c['X'],E1); M('Z',c['Z'],E2); M('W',c['Y'],E4); M('Y',c['Y'],E256)
        pk(11,c['Z']); pk(15,c['W']); wr2(10); wr2(14); pk(4,c['X']); pk(16,c['Y'])
        M('X',c['X'],E1); M('Y',c['Y'],E256)
        pk(5,c['X']); pk(17,c['Y']); wr2(4); wr2(16)
        M('X',c['X'],E1); M('Y',c['Y'],E256)
        pk(6,c['X']); pk(18,c['Y'])
        M('X',c['X'],E1); M('Y',c['Y'],E256)
        pk(7,c['X']); pk(19,c['Y']); wr2(6); wr2(18)
        M('Y',c['Y'],E256); pk(20,c['Y']); s.wr1(P,20)
    def readA(s,P):
        for mt in range(2):
            for ks in range(4):
                b=KAF+(mt*4+ks)*4
                P.l(f"ds_read_b128 v[{b}:{b+3}], v{KRA} offset:{16*KROW*mt+64*ks}",('ka',s.g),cost=6)
    def cols(s,P,nh):
        E8,E16=s.E8,s.E16; c=s.cur
        if nh==0:
            o0=s.OUT+(s.k%8); s.k+=1
            P.i(f"v_mov_b32 v{o0}, 0x3f80",cost=5); s.held[0]=o0
            c['X']=E16; c['Z']=E8
        for jp in range(8):
            je=16*nh+2*jp
            if je==0: s.pack(P,1,c['Z'],False); s.wr2(P,0)
            elif je==2: s.mul(P,'Z',c['Z'],E16); s.pack(P,2,c['X'],False); s.pack(P,3,c['Z'],False); s.wr2(P,2)
            else:
                s.mul(P,'X',c['X'],E16); s.mul(P,'Z',c['Z'],E16)
                s.pack(P,je&15,c['X'],False); s.pack(P,(je&15)+1,c['Z'],False); s.wr2(P,je&15)
    def readB(s,P,nh):
        for ks in range(4):
            b=KBF+ks*4
            P.l(f"ds_read_b128 v[{b}:{b+3}], v{KRA} offset:{64*ks}",('kb',s.g,nh),cost=6)
    def mfma(s,P,nh):
        P.wl(('kb',s.g,nh))
        P.lock(); P.atom("s_setprio 1")
        for ks in range(4):
            for mt in range(2):
                a=KAF+(mt*4+ks)*4; b=KBF+ks*4; dd=KD+(mt*2+nh)*4
                P.i(f"v_mfma_f32_16x16x32_bf16 v[{dd}:{dd+3}], v[{a}:{a+3}], v[{b}:{b+3}], v[{dd}:{dd+3}]",cost=17)
        P.atom("s_setprio 0"); P.unlock()
def kgen_groups(P,pkg0='rows'):
    G=[KG(g,False) for g in range(3)]
    G[0].pk = pkg0 in('rows','all','two')
    G[0].setup(P); G[0].rows(P)
    G[0].pk = pkg0 in('all','two')
    G[1].pk = pkg0=='two'
    if pkg0 in('rows','none'): P.it.append(('MARK',0,0))
    for g in range(3):
        k=G[g]
        k.readA(P); k.cols(P,0); k.readB(P,0); k.cols(P,1)
        k.mfma(P,0); k.readB(P,1)
        if g<2:
            if (g==0 and pkg0=='all') or (g==1 and pkg0=='two'):
                k.mfma(P,1); P.it.append(('MARK',0,0)); G[g+1].setup(P); G[g+1].rows(P)
            else:
                G[g+1].setup(P); k.mfma(P,1); G[g+1].rows(P)
        else: k.mfma(P,1)
def kgen_out(P,S,lane,srd,flags="",tolds=False):
    t=KV
    P.lock()
    P.i(f"""
    s_nop 7
    v_and_b32 v{t}, 15, v{lane}
    v_lshrrev_b32 v{t+1}, 4, v{lane}
    v_lshlrev_b32 v{t+2}, 3, v{t}              ; 8jj
    v_cmp_eq_u32 vcc, 1, v{t+1}
    v_add_u32 v{t+3}, 4, v{t+2}
    s_nop 0
    v_cndmask_b32 v{t+2}, v{t+2}, v{t+3}, vcc
    v_mov_b32 v{t+4}, 128
    v_cmp_eq_u32 vcc, 2, v{t+1}
    v_lshlrev_b32 v{t+3}, 2, v{t}
    v_add_u32 v{t+3}, 256, v{t+3}
    v_cndmask_b32 v{t+2}, v{t+2}, v{t+3}, vcc
    v_cndmask_b32 v{t+4}, v{t+4}, 64, vcc
    v_cmp_eq_u32 vcc, 3, v{t+1}
    v_lshlrev_b32 v{t+3}, 1, v{t}
    v_add_u32 v{t+3}, 384, v{t+3}
    v_cndmask_b32 v{t+2}, v{t+2}, v{t+3}, vcc
    v_cndmask_b32 v{t+4}, v{t+4}, 32, vcc
    """)
    P.i(f"""
    v_mov_b32 v{t+5}, 2
    v_mov_b32 v{t+7}, 64
    v_cndmask_b32 v{t+5}, v{t+5}, v{t+7}, vcc
    v_lshlrev_b32 v{t+2}, 2, v{t+2}
    v_add_u32 v{t+2}, s{S['kb']}, v{t+2}       ; addr i=0 (i=1: +4)
    v_lshl_add_u32 v{t+3}, v{t+5}, 2, v{t+2}   ; addr i=2 (i=3: +4)
    v_lshl_add_u32 v{t+6}, v{t+4}, 2, v{t+2}   ; nh=1
    v_lshl_add_u32 v{t+7}, v{t+4}, 2, v{t+3}
    v_lshlrev_b32 v{t+8}, 2, v{t}
    v_add_u32 v{t+8}, s{S['kb']}, v{t+8}
    """)
    P.unlock()
    for nh in range(2):
        a0,a2=(t+2,t+3) if nh==0 else (t+6,t+7)
        dd=KD+nh*4
        P.l(f"ds_write_b32 v{a0}, v{dd}"); P.l(f"ds_write_b32 v{a0}, v{dd+1} offset:4")
        P.l(f"ds_write_b32 v{a2}, v{dd+2}"); P.l(f"ds_write_b32 v{a2}, v{dd+3} offset:4")
    sv=S['sv']
    P.lock()
    P.atom(f"s_mov_b64 s[{sv}:{sv+1}], exec\ns_mov_b64 exec, 0xffff")
    for nh in range(2):
        dd=KD+8+nh*4
        for i in range(4): P.l(f"ds_write_b32 v{t+8}, v{dd+i} offset:{4*(512+32*i+16*nh)}")
    P.atom(f"s_mov_b64 exec, 0x10000")
    P.l(f"ds_write_b32 v{t+8}, v{KD+8} offset:{4*640}")
    P.atom(f"s_mov_b64 exec, s[{sv}:{sv+1}]")
    P.unlock()
    if tolds:
        P.wl(); return
    P.i(f"v_lshlrev_b32 v{t+9}, 4, v{lane}\nv_add_u32 v{t+10}, s{S['kb']}, v{t+9}")
    P.wl()
    for i in range(3): P.l(f"ds_read_b128 v[{KAF+4*i}:{KAF+4*i+3}], v{t+10} offset:{1024*i}",'ko')
    P.i(f"s_mul_i32 s{S['k0']}, s{S['ch']}, {KTS*4}\ns_add_u32 s{S['k0']}, s{S['k0']}, {KTG}")
    P.wl('ko')
    for i in range(3): P.vs(f"buffer_store_dwordx4 v[{KAF+4*i}:{KAF+4*i+3}], v{t+9}, s[{srd}:{srd+3}], s{S['k0']} offen offset:{1024*i} {flags}")
```

```python
import sys, os
from g32lib import *
from kgenlib import *
from htasks import *
import conv3lib as CV
from asmlib import KMAIN
DIAG=bool(os.environ.get('DIAG'))
E=lambda k,d: int(os.environ.get(k,d))
S=dict(x=20,j=21,rb=22,cb=23,hw=24,w=25,wf=26,wt=27,t0=28,t1=29,sx=30,sw=31,mx=32,mw=33,sl=34,rot=35,
       srdx=8,srd1=12,srd3=16,hb=60,ho=61,wg=2,
       ch=88,kb=89,k0=90,k1=91,sv=92,h0=94,h1=95,h2=96,h3=97,lb=98,u=99,m48=100,nch=101,
       sA=40,sI=44,sR=48,sC=52,sD=56,fst=72,fcs=73,db=3,spin=82,lnb=83)
WS=36
KB0=HSCR
LB_L=HSCR+3*KSCR
LB_W=HSCR+2*KSCR
LCNT=LB_L+11008
LST=LCNT+64
LDS_S3=LCNT+2816
WPF=40960; WPFW=20480
ATL=LB_L; ATRS=136
HLANE=11
END="Lmain_end"
class St:
    def __init__(s,regs): s.regs=list(regs); s.used={}
    def __call__(s,A,idx,rt=False):
        if not DIAG: return
        if idx in s.used or not s.regs: return
        r=s.regs.pop(0); s.used[idx]=r
        A(f"{'s_memrealtime' if rt else 's_memtime'} s[{r}:{r+1}]")
    def dump(s,A):
        if not DIAG: return
        A(f"s_waitcnt vmcnt(0) lgkmcnt(0)\ns_lshl_b32 s27, s2, 11\ns_lshl_b32 s28, s25, 8\ns_add_u32 s27, s27, s28\ns_add_u32 s27, s27, {STAMP}\nv_mov_b32 v9, 0\ns_mov_b64 exec, 1")
        for idx,r in s.used.items():
            A(f"v_mov_b32 v10, s{r}\nbuffer_store_dword v10, v9, s[36:39], s27 offen offset:{4*idx}")
def mark(P,st): P.it.append(('MARK',st,0))
def must(P,st): P.it.append(('MUST',st,0))
def h_schedule(A,P,budget,pre,sv,which=range(10),hook=None,emref=None):
    Em=Emit(A)
    if emref is not None: emref[0]=Em
    items=list(P.it); pos=[0]; locked=[0]
    def run_until(cost,window):
        c=0
        while pos[0]<len(items):
            x=items[pos[0]]
            if x[0]=='MARK':
                if x[1]>window: return
                pos[0]+=1; continue
            if x[0]=='MUST': pos[0]+=1; continue
            if x[0]=='LOCK': locked[0]=x[1]; pos[0]+=1; continue
            force=any(y[0]=='MUST' and y[1]<=window for y in items[pos[0]:])
            if c>=cost and not locked[0] and not force: return
            Em.item(x); c+=x[2]; pos[0]+=1
    run_until(pre,-1)
    for st in range(NST):
        if st in which: sv(A,16+st)
        A("s_barrier")
        if hook and st in hook: hook[st]()
        run_until(budget,st)
    return Em,items[pos[0]:]
def g2_phase(A,stamp):
    ACC2=0; WR_=80; HR=160; TT=208; MS=228
    VL=MS; VLN=MS+3; VT=MS+4
    lane=VLANE
    A(f"""
    s_waitcnt vmcnt(0)
    v_mov_b32 v{VT0}, {LCNT}
    v_mov_b32 v{VT0+1}, 1
    s_mov_b64 s[58:59], exec
    s_mov_b64 exec, 1
    ds_add_rtn_u32 v{VT0+2}, v{VT0}, v{VT0+1}
    s_waitcnt lgkmcnt(0)
    v_readfirstlane_b32 s28, v{VT0+2}
    s_nop 3
    s_cmp_eq_u32 s28, 3
    s_cbranch_scc0 Lnopubh
    s_lshl_b32 s28, s22, 4
    s_add_u32 s28, s28, s23
    s_lshl_b32 s28, s28, 7
    s_add_u32 s28, s28, {FH}
    v_mov_b32 v{VT0}, 0
    buffer_store_dword v{VT0+1}, v{VT0}, s[36:39], s28 offen sc1
    Lnopubh:
    s_mov_b64 exec, s[58:59]
    """)
    stamp(A,5)
    A(f"""
    s_lshr_b32 s49, s20, 1
    s_lshl_b32 s49, s49, 3
    s_and_b32 s28, s21, 7
    s_add_u32 s49, s49, s28
    v_mov_b32 v{VLN}, v{lane}
    v_lshlrev_b32 v{VL}, 4, v{lane}
    v_add_u32 v{VL+1}, 4096, v{VL}
    v_add_u32 v{VL+2}, 8192, v{VL}
    s_mul_i32 s26, s25, 12
    """)
    for dt in range(5):
        A(f"s_mul_i32 s27, s3, 5\ns_add_u32 s27, s27, {dt}\ns_mul_i32 s27, s27, 48\ns_add_u32 s27, s27, s26\ns_lshl_b32 s27, s27, 10\ns_add_u32 s{44+dt}, s27, {W2F}")
    vm=[]
    def wreg(k,dt): return WR_+20*k+4*dt
    def hreg(s,nt): return HR+16*(s%3)+4*nt
    def wl(s,k,tag=None):
        va=VL+(s>>2); imm=1024*(s&3)
        for dt in range(5):
            A(f"buffer_load_dwordx4 v[{wreg(k,dt)}:{wreg(k,dt)+3}], v{va}, s[36:39], s{44+dt} offen offset:{imm} {os.environ.get('WSC','sc1')}"); vm.append(tag or ('w',s))
    def hl(s):
        va=VL+(s>>2); imm=1024*(s&3)
        for nt in range(4):
            A(f"buffer_load_dwordx4 v[{hreg(s,nt)}:{hreg(s,nt)+3}], v{va}, s[36:39], s{30+nt} offen offset:{imm} {os.environ.get('HSC','sc1')}"); vm.append(('h',s))
    def wait(*tags):
        idx=max(max(i for i,t in enumerate(vm) if t==tag) for tag in tags); A(f"s_waitcnt vmcnt({min(63,len(vm)-1-idx)})")
    for k in range(4): wl(4+k,k)
    A(f"s_mul_i32 s27, s25, {WPFW}\ns_add_u32 s27, s27, {WPF}\nv_add_u32 v{VT}, s27, v{VL}")
    for nt in range(4):
        A(f"s_lshl_b32 s27, s49, 2\ns_add_u32 s27, s27, {nt}\ns_mul_i32 s27, s27, 48\ns_add_u32 s27, s27, s26\ns_lshl_b32 s27, s27, 10\ns_add_u32 s{30+nt}, s27, {HF}")
    for k in range(4):
        wait(('w',4+k))
        for dt in range(5): A(f"ds_write_b128 v{VT}, v[{wreg(k,dt)}:{wreg(k,dt)+3}] offset:{(k*5+dt)*1024}")
    A("s_waitcnt lgkmcnt(0)")
    for k in range(4): wl(k,k)
    for i in range(80): A(f"v_mov_b32 v{ACC2+i}, 0")
    A(f"""
    v_and_b32 v{VT+1}, 15, v{VLN}
    v_lshlrev_b32 v{VT+1}, 7, v{VT+1}
    s_lshr_b32 s27, s49, 1
    s_lshl_b32 s27, s27, 11
    s_add_u32 s50, s27, {FH}
    buffer_load_dword v{VT+2}, v{VT+1}, s[36:39], s50 offen sc1
    s_waitcnt vmcnt(0)
    """)
    A(spin('h',f"buffer_load_dword v{VT+2}, v{VT+1}, s[36:39], s50 offen sc1",f"v_cmp_eq_u32 vcc, 1, v{VT+2}",S,END,sleep=1))
    stamp(A,6)
    vm.clear()
    for s in range(3): hl(s)
    lg=[]
    def tread(s,dt):
        A(f"ds_read_b128 v[{TT+4*dt}:{TT+4*dt+3}], v{VT} offset:{((s-4)*5+dt)*1024}"); lg.append((s,dt))
    def lwait(tag):
        idx=lg.index(tag); A(f"s_waitcnt lgkmcnt({len(lg)-1-idx})")
    PF=VT+4; assert PF%2==0
    XR=TT
    XA=VT+8; ATG=VT+9; ATA=VT+10; AS=WR_
    A(f"""
    v_and_b32 v{VT+3}, 31, v{VLN}
    v_lshlrev_b32 v{VT+3}, 7, v{VT+3}
    s_lshl_b32 s41, s3, 12
    s_add_u32 s41, s41, {FD}
    v_and_b32 v{VT+11}, 15, v{VLN}
    v_lshrrev_b32 v{VT+12}, 4, v{VLN}
    v_mul_u32_u24 v{VT+11}, 1280, v{VT+11}
    v_mul_u32_u24 v{VT+12}, 40, v{VT+12}
    v_add_u32 v{XA}, v{VT+11}, v{VT+12}
    s_lshl_b32 s27, s49, 6
    s_lshl_b32 s28, s25, 4
    s_add_u32 s27, s27, s28
    s_mul_i32 s27, s27, 1280
    s_mul_i32 s28, s3, 160
    s_add_u32 s40, s27, s28
    v_lshrrev_b32 v{VT+11}, 3, v{VLN}
    v_and_b32 v{VT+12}, 7, v{VLN}
    v_lshlrev_b32 v{ATG}, 12, v{VT+11}
    v_lshl_add_u32 v{ATG}, v{VT+12}, 4, v{ATG}
    v_mul_u32_u24 v{ATA}, {ATRS}, v{VT+11}
    v_lshl_add_u32 v{ATA}, v{VT+12}, 4, v{ATA}
    s_mul_i32 s27, s3, {80*4096}
    s_lshl_b32 s28, s49, 7
    s_add_u32 s27, s27, s28
    s_lshl_b32 s28, s25, 15
    s_add_u32 s27, s27, s28
    s_add_u32 s42, s27, {AT}
    s_mul_i32 s28, s25, {8*ATRS}
    s_add_u32 s43, s28, {ATL}
    v_add_u32 v{ATA}, s43, v{ATA}
    s_mov_b32 s51, 0
    """)
    def atloads(u):
        for i in range(3):
            if i<2: A(f"s_add_u32 s27, s42, {i*32*4096}\nbuffer_load_dwordx4 v[{AS+4*i}:{AS+4*i+3}], v{ATG}, s[36:39], s27 offen sc1")
            else: A(f"s_cmp_lt_u32 s25, 2\ns_cbranch_scc0 Lnoat{u}\ns_add_u32 s27, s42, {i*32*4096}\nbuffer_load_dwordx4 v[{AS+4*i}:{AS+4*i+3}], v{ATG}, s[36:39], s27 offen sc1\nLnoat{u}:")
    fdchk=f"v_and_b32 v{PF}, v{PF}, v{PF+1}\nv_and_b32 v{PF}, v{PF}, v{PF+2}\nv_cmp_eq_u32 vcc, 1, v{PF}"
    fdld=f"buffer_load_dwordx4 v[{PF}:{PF+3}], v{VT+3}, s[36:39], s41 offen sc1"
    pend=[]
    def one_h(s,nt):
        va=VL+(s>>2); imm=1024*(s&3)
        A(f"buffer_load_dwordx4 v[{hreg(s,nt)}:{hreg(s,nt)+3}], v{va}, s[36:39], s{30+nt} offen offset:{imm} {os.environ.get('HSC','sc1')}"); vm.append(('h',s))
    def one_w(s,k,dt):
        va=VL+(s>>2); imm=1024*(s&3)
        A(f"buffer_load_dwordx4 v[{wreg(k,dt)}:{wreg(k,dt)+3}], v{va}, s[36:39], s{44+dt} offen offset:{imm} {os.environ.get('WSC','sc1')}"); vm.append(('w',s))
    hq=[]; wq=[]
    def pump(n=1):
        for _ in range(n):
            if hq: f=hq.pop(0); f()
            elif wq: f=wq.pop(0); f()
    for s in range(12):
        tags=[('h',s)]+([('w',s)] if s>=8 else [])
        assert not any(True for f in hq if f.step<=s), "h load not issued in time"
        if s<=10: wait(*tags)
        if s==0: stamp(A,7)
        if os.environ.get('GDIAG')=='g2' and s in (1,2,3,4,6,8,10): stamp(A,40+s)
        lds=4<=s<8
        if lds:
            for dt in range(5):
                lwait((s,dt)); a_=TT+4*dt
                for nt in range(4):
                    a=ACC2+(nt*5+dt)*4
                    A(f"v_mfma_f32_16x16x32_bf16 v[{a}:{a+3}], v[{a_}:{a_+3}], v[{hreg(s,nt)}:{hreg(s,nt)+3}], v[{a}:{a+3}]")
                if s<7: tread(s+1,dt)
                pump()
            if s+3<12:
                for nt in range(4):
                    f=(lambda s_=s+3,nt_=nt: one_h(s_,nt_)); f.step=s+3; hq.append(f)
        else:
            for nt in range(4):
                for dt in range(5):
                    a=ACC2+(nt*5+dt)*4; a_=wreg(s%4,dt)
                    A(f"v_mfma_f32_16x16x32_bf16 v[{a}:{a+3}], v[{a_}:{a_+3}], v[{hreg(s,nt)}:{hreg(s,nt)+3}], v[{a}:{a+3}]")
                    if s==3 and nt==3: tread(4,dt)
                    if dt==1 and nt>0: pump()
                if s+3<12:
                    f=(lambda s_=s+3,nt_=nt: one_h(s_,nt_)); f.step=s+3; hq.append(f)
                pump()
            if s<4:
                for dt in range(5):
                    f=(lambda s_=8+s,k_=s,dt_=dt: one_w(s_,k_,dt_)); f.step=8+s; wq.append(f)
        if s==7:
            pump(len(hq)+len(wq))
        if s==8:
            pump(len(hq)+len(wq))
            A(fdld); vm.append(('p',0))
            A(f"buffer_load_dwordx4 v[{XR}:{XR+3}], v{XA}, s[8:11], s40 offen\nbuffer_load_dwordx4 v[{XR+4}:{XR+7}], v{XA}, s[8:11], s40 offen offset:16\nbuffer_load_dwordx2 v[{XR+8}:{XR+9}], v{XA}, s[8:11], s40 offen offset:32")
            vm.extend([('x',0)]*3)
        if s==10:
            wait(('p',0))
            A(fdchk+"\ns_nop 1\ns_cmp_eq_u64 vcc, exec\ns_cbranch_scc0 Lnotyet\ns_mov_b32 s51, 1")
            atloads('e')
            A("Lnotyet:")
    assert not hq and not wq
    stamp(A,8)
    FR=96
    A(f"s_cmp_eq_u32 s51, 1\ns_cbranch_scc1 Lhave\n{fdld}\ns_waitcnt vmcnt(0)")
    A(spin('d',fdld,fdchk,S,END,sleep=1))
    atloads('l')
    A("Lhave:")
    VA=ATA
    R0=FR
    A(f"v_add_u32 v{VL+1}, {WPF}, v{VL}\nv_add_u32 v{VL+2}, {WPF+49152}, v{VL}")
    for w in range(4):
        lab=A.label('w')
        if w<3: A(f"s_cmp_lg_u32 s25, {w}\ns_cbranch_scc1 {lab}")
        for nt in range(4):
            if nt==w: continue
            sl=nt if nt<w else nt-1
            for dt in range(5):
                a=ACC2+(nt*5+dt)*4
                off=w*WPFW+(sl*5+dt)*1024
                va,o=(VL+1,off) if off<65536-1024 else (VL+2,off-49152)
                if w==0 and nt==1 and dt==0: pass
                A(f"ds_write_b128 v{va}, v[{a}:{a+3}] offset:{o}")
        A("s_waitcnt vmcnt(0)")
        for i in range(3):
            if i==2 and w>=2: continue
            for h in range(2): A(f"ds_write_b64 v{VA}, v[{AS+4*i+2*h}:{AS+4*i+2*h+1}] offset:{i*32*ATRS+8*h}")
        A("s_waitcnt lgkmcnt(0)\ns_barrier")
        kk=0
        for src in range(4):
            if src==w: continue
            sl=w if w<src else w-1
            for dt in range(5):
                off=src*WPFW+(sl*5+dt)*1024
                va,o=(VL+1,off) if off<65536-1024 else (VL+2,off-49152)
                A(f"ds_read_b128 v[{R0+(kk*5+dt)*4}:{R0+(kk*5+dt)*4+3}], v{va} offset:{o}")
            kk+=1
        if w:
            for r in range(20): A(f"v_mov_b32 v{ACC2+r}, v{ACC2+w*20+r}")
        if w<3: A(f"s_branch Lred\n{lab}:")
    A("Lred:")
    A(f"""
    v_lshrrev_b32 v{VT}, 4, v{VLN}
    v_mul_u32_u24 v{VT}, 20, v{VT}
    v_bfe_u32 v{VT+1}, v{VLN}, 2, 2
    v_add_u32 v{VT}, v{VT}, v{VT+1}
    v_mul_u32_u24 v{VT}, {ATRS}, v{VT}
    v_and_b32 v{VT+1}, 3, v{VLN}
    v_lshl_add_u32 v{VT}, v{VT+1}, 3, v{VT}
    s_lshl_b32 s27, s25, 5
    s_add_u32 s27, s27, {ATL}
    v_add_u32 v{VT}, s27, v{VT}
    """)
    AR=R0+60
    for dt in range(5): A(f"ds_read_b64_tr_b16 v[{AR+2*dt}:{AR+2*dt+1}], v{VT} offset:{4*dt*ATRS}")
    A(f"s_waitcnt lgkmcnt(5)")
    for src in range(3):
        for r in range(0,20,2): A(f"v_pk_add_f32 v[{ACC2+r}:{ACC2+r+1}], v[{ACC2+r}:{ACC2+r+1}], v[{R0+src*20+r}:{R0+src*20+r+1}]")
    stamp(A,9)
    A("s_waitcnt lgkmcnt(0)")
    W=R0
    for e2 in range(10):
        x=XR+e2; a=AR+e2; b0=ACC2+2*e2; w=W+4*(e2%4)
        A(f"""
        v_lshlrev_b32 v{w}, 16, v{x}
        v_and_b32 v{w+1}, 0xffff0000, v{x}
        v_lshlrev_b32 v{w+2}, 16, v{a}
        v_and_b32 v{w+3}, 0xffff0000, v{a}
        v_pk_add_f32 v[{b0}:{b0+1}], v[{b0}:{b0+1}], v[{w}:{w+1}]
        v_pk_add_f32 v[{b0}:{b0+1}], v[{b0}:{b0+1}], v[{w+2}:{w+3}]
        v_cvt_pk_bf16_f32 v{W+20+e2}, v{b0}, v{b0+1}
        """)
    A(f"buffer_store_dwordx4 v[{W+20}:{W+23}], v{XA}, s[52:55], s40 offen\nbuffer_store_dwordx4 v[{W+24}:{W+27}], v{XA}, s[52:55], s40 offen offset:16\nbuffer_store_dwordx2 v[{W+28}:{W+29}], v{XA}, s[52:55], s40 offen offset:32")
def build(A):
    n=KMAIN; A.begin(n)
    A("s_cmp_ge_u32 s2, 256\ns_cbranch_scc1 Lmain_end")
    A(f"""
    s_load_dwordx2 s[4:5], s[0:1], {ARG['u']}
    s_load_dwordx4 s[76:79], s[0:1], {ARG['w1']}
    s_load_dwordx4 s[84:87], s[0:1], {ARG['dbg']}
    s_load_dwordx8 s[64:71], s[0:1], {ARG['logA']}
    s_load_dwordx2 s[74:75], s[0:1], {ARG['logdt']}
    s_load_dwordx4 s[44:47], s[0:1], {ARG['w2']}      ; w2, out
    s_load_dwordx2 s[18:19], s[0:1], {ARG['Dskip']}
    s_and_b32 s20, s2, 7          ; x
    s_lshr_b32 s21, s2, 3         ; j
    s_and_b32 s22, s20, 1
    s_lshl_b32 s22, s22, 3
    s_and_b32 s23, s21, 7
    s_add_u32 s22, s22, s23       ; rb
    s_lshr_b32 s23, s20, 1
    s_lshl_b32 s23, s23, 2
    s_lshr_b32 s24, s21, 3
    s_add_u32 s23, s23, s24       ; cb
    s_and_b32 s3, s20, 1
    s_lshl_b32 s3, s3, 2
    s_add_u32 s3, s3, s24
    v_lshrrev_b32 v1, 6, v0
    s_cmp_ge_u32 s22, 10
    s_cselect_b32 s35, 10, 0
    v_readfirstlane_b32 s25, v1   ; wave
    s_sub_u32 s35, s22, s35       ; rot
    s_nop 2
    s_and_b32 s26, s25, 1         ; wf
    s_bfe_u32 s27, s25, 0x10001   ; wt
    s_and_b32 s24, s25, 3         ; hw
    s_cmp_ge_u32 s25, 4
    s_cbranch_scc1 Lhrole
    """)
    GLN=E('GLN',0)
    g_dma_addr(A,S)
    if GLN: g_ln_loads(A,S)
    A("s_waitcnt lgkmcnt(0)")
    A.srd(8,4,SIZE['u']); A.srd(12,76,SIZE['w1']); A.srd(16,78,SIZE['w3']); A.srd(WS,86,SIZE['ws']); A.srd(52,46,SIZE['out'])
    stamp=St(list(range(64,76,2))+[80]+list(range(84,102,2))+[56,42+0])
    stamp.regs=[r for r in stamp.regs if r not in (42,82)]
    stamp(A,0); stamp(A,1,True)
    PRE=E('GPRE',2)
    if GLN: g_ln_issue(A,S)
    for l in g_dma(S,0): A(l)
    g_lds_addr(A,S)
    for l in g_dma(S,1): A(l)
    A(f"s_cmp_eq_u32 s25, 0\ns_cbranch_scc0 Lnoci\nv_mov_b32 v{VT0}, {LCNT}\nv_mov_b32 v{VT0+1}, 0\nds_write_b32 v{VT0}, v{VT0+1}\nLnoci:")
    for i in range(96): A(f"v_mov_b32 v{ACC+i}, 0")
    if GLN:
        A("s_waitcnt vmcnt(20)")
        g_ln_compute(A,S,LB_L,LNRS,LST)
    def gstamp(st):
        if os.environ.get('GDIAG')=='win':
            if not isinstance(st,tuple): stamp(A,32+st)
            elif st[1] in (1,2,3,4,5): stamp(A,48+st[1])
        elif os.environ.get('GDIAG')=='g2': pass
        elif not isinstance(st,tuple) and st in (0,3,6,9): stamp(A,32+st)
    g_loop(A,S,gstamp if DIAG else None,PRE=PRE)
    stamp(A,2)
    A("s_barrier")
    stamp(A,3)
    g_epilogue(A,S,WS,HF,'sc1')
    stamp(A,4)
    g2_phase(A,stamp)
    stamp(A,10); stamp(A,11,True)
    stamp.dump(A)
    A("s_branch Lmain_end")
    A("Lhrole:")
    A(f"v_and_b32 v{HLANE}, 63, v0")
    A(f"""
    s_mul_i32 s28, s21, 3
    s_lshl_b32 s29, s21, 1
    s_add_u32 s29, s29, 16
    s_cmp_lt_u32 s21, 16
    s_cselect_b32 s28, s28, s29
    s_cselect_b32 s101, 3, 2          ; nch
    s_mul_i32 s29, s20, 80
    s_add_u32 s28, s28, s29
    s_add_u32 s88, s28, s24           ; channel
    s_mul_i32 s89, s24, {KSCR}
    s_add_u32 s89, s89, {KB0}
    s_waitcnt lgkmcnt(0)
    s_mov_b32 s80, s44
    s_mov_b32 s81, s45
    """)
    A.srd(8,4,SIZE['u']); A.srd(WS,86,SIZE['ws'])
    A("s_cmp_eq_u32 s24, 3\ns_cbranch_scc1 Lrole_l\ns_cmp_lt_u32 s24, s101\ns_cbranch_scc0 Lrole_w")
    A.srd(40,64,245760); A.srd(44,66,245760); A.srd(48,68,245760); A.srd(52,70,245760); A.srd(56,74,1280); A.srd(12,18,SIZE['Dskip'])
    stamp=St([64,66,68,70,74,76,78,80,60,62,4,6]); stamp(A,0)
    SK=dict(S); SK['kb']=89
    P=Prog(); mark(P,-1); P.atom('s_setprio 3'); kgen_loads(P,S,HLANE,KV)
    P.i(f"s_lshl_b32 s29, s88, 1\nv_mov_b32 v30, s29"); P.vl("buffer_load_ushort v29, v30, s[12:15], 0 offen",'kp2',cost=30); P.atom('s_setprio 0')
    kgen_setup(P,S,HLANE); kgen_dt(P,S); P.wv('kp2'); kgen_groups(P,os.environ.get('PKG0','rows'))
    SO=dict(S); SO['kb']=73
    P.i(f"s_add_u32 s73, s89, 16\nv_mov_b32 v28, s89\nv_mov_b32 v27, 0")
    kgen_out(P,SO,HLANE,WS,"",tolds=False) if False else None
    Pout=Prog(); Pout.l("ds_write_b32 v28, v27 offset:12"); kgen_out(Pout,SO,HLANE,WS,"",tolds=True)
    P.ext(Pout)
    P=schedule(P)
    if os.environ.get('KNOWR'): P.it=[x if not (x[0]=='L' and 'ds_write' in x[1]) else ('I','s_nop 0',4) for x in P.it]
    if os.environ.get('KNOVALU'): P.it=[x for x in P.it if not (x[0]=='I' and x[1].startswith('v_') and 'mfma' not in x[1] and 'readfirst' not in x[1])]
    SC=dict(base=30,ch=88,srd=36,t0=28,t1=29,sv=92,m0=52,m1=54,m2=56,dsk=33,kt=73,lane=HLANE)
    def w8hook():
        A(f"v_lshlrev_b32 v26, 4, v{HLANE}\ns_mov_b32 s31, {FX}\nbuffer_load_dwordx4 v[20:23], v26, s[36:39], s31 offen sc1")
        Em_[0].vm.append(('L','fx'))
    def w9hook():
        Em_[0].wait_vm('fx')
        A(spin('x',"buffer_load_dwordx4 v[20:23], v26, s[36:39], s31 offen sc1","v_and_b32 v24, v20, v21\nv_and_b32 v25, v22, v23\nv_and_b32 v24, v24, v25\nv_cmp_eq_u32 vcc, 1, v24",S,END))
        A(f"s_mul_i32 s30, s24, {CV.CW3}")
        CV.u_loads(A,SC)
        for q in range(4): Em_[0].vm.append(('L','u'))
    Em_=[None]
    Em,rest=h_schedule(A,P,E('KB',850),E('PREK',900),stamp,(0,3,6,9),hook={8:w8hook,9:w9hook},emref=Em_)
    A("s_barrier")
    A(f"s_setprio {E('XPRIO',2)}")
    stamp(A,2)
    for x in rest: Em.item(x)
    print("K role: total",sum(x[2] for x in P.it),"left after loop",sum(x[2] for x in rest))
    stamp(A,3)
    A("s_waitcnt vmcnt(0)\nv_lshlrev_b32 v29, 16, v29\ns_nop 0\nv_readfirstlane_b32 s33, v29")
    CV.u_store(A,SC)
    CV.conv_setup(A,SC)
    A("s_waitcnt lgkmcnt(0)")
    CV.conv_expand(A,SC)
    A("s_waitcnt lgkmcnt(0)")
    stamp(A,4)
    A(f"s_setprio {E('CPRIO',1)}")
    CV.conv_main(A)
    A("s_nop 7")
    stamp(A,5)
    CV.conv_epilogue(A,SC,"sc1")
    A(f"""
    s_waitcnt vmcnt(0)
    s_lshl_b32 s28, s20, 5
    s_add_u32 s28, s28, s21
    s_lshl_b32 s28, s28, 7
    s_lshl_b32 s29, s24, 2
    s_add_u32 s28, s28, s29
    s_add_u32 s28, s28, {FD}
    v_mov_b32 v{CV.CTMP}, 0
    v_mov_b32 v{CV.CTMP+1}, 1
    s_mov_b64 s[92:93], exec
    s_mov_b64 exec, 1
    buffer_store_dword v{CV.CTMP+1}, v{CV.CTMP}, s[36:39], s28 offen sc1
    s_mov_b64 exec, s[92:93]
    """)
    stamp(A,6)
    stamp.dump(A)
    A("s_branch Lmain_end")
    A("Lrole_w:")
    A.srd(40,80,SIZE['w2'])
    A(f"s_sub_u32 s99, s21, 16\ns_lshl_b32 s99, s99, 3\ns_add_u32 s99, s99, s20\ns_mov_b32 s100, {magic(48)}\ns_mov_b32 s98, {LB_W}")
    SW=dict(S); SW['wo']=88
    P=Prog(); mark(P,-1); w2_setup(P,SW,HLANE); mark(P,0); w2b_loads(P,SW,40)
    for k in range(3):
        mark(P,k+1); w2b_unit(P,SW,k,HLANE,WS,"sc1")
    mark(P,5); s3_set_fw(P,SW,WS,WF); must(P,5)
    stamp=St([64,66,68,70,74,76,78,84,86,60,62]); Em,rest=h_schedule(A,P,800,600,stamp)
    assert not [x for x in rest if x[0] not in('MARK','MUST','LOCK')]
    A("s_barrier")
    stamp.dump(A)
    A("s_branch Lmain_end")
    A("Lrole_l:")
    A.srd(40,84,256)
    A(f"s_mov_b32 s98, {LB_L}")
    LP=None
    if E('GLN',0):
        P=Prog(); mark(P,-1); s3_clear(P,S,WS); cs_setup(P,S,HLANE)
        mark(P,0); fl_cleared(P,S,40); cs_reads(P,S,0); cs_mfma(P,S,0); cs_reads(P,S,1); P.wl(('cs',1)); must(P,0)
        mark(P,1); cs_mfma(P,S,1); ln3_xt_reads(P,S,HLANE); ln3_st(P,S,HLANE,WS,"sc1",LST); cs_store(P,S,HLANE,WS,"sc1"); must(P,1)
        mark(P,2); s3_set_fl(P,S,WS,'pub1',0); ln3_xt_stores(P,S,HLANE,WS,"sc1")
        mark(P,5); s3_set_fl(P,S,WS,'pub2',FX-FL)
        mark(P,6); s3_ga_clr_load(P,S,HLANE,40)
        mark(P,7); s3_ga_clr_check(P,S,HLANE,40,WS,END); must(P,7)
        mark(P,8); s3_ga_flag_check(P,S,HLANE,WS,END)
        mark(P,9); ga_finish(P,S,HLANE); must(P,9)
    else:
        P=Prog(); mark(P,-1); P.atom("s_setprio 3"); ln2_loads(P,S,HLANE); P.atom("s_setprio 0"); s3_clear(P,S,WS); cs_setup(P,S,HLANE)
        mark(P,0); fl_cleared(P,S,40); cs_reads(P,S,0); cs_mfma(P,S,0); cs_reads(P,S,1); P.wl(('cs',1)); must(P,0)
        cs_mfma(P,S,1); cs_store(P,S,HLANE,WS,"sc1")
        ln2_stats(P,S,HLANE,WS,"sc1")
        Pn=Prog(); ln2_norm(Pn,S,HLANE,WS,"sc1")
        n1=len(Pn.it)//4
        P.it+=Pn.it[:n1]
        mark(P,3); s3_set_fl(P,S,WS,'pub1',0)
        P.it+=Pn.it[n1:]
        mark(P,5); s3_ga_clr_load(P,S,HLANE,40)
        mark(P,6); s3_ga_clr_check(P,S,HLANE,40,WS,END); must(P,7)
        mark(P,7); s3_set_fl(P,S,WS,'pub2',FX-FL); s3_ga_flag_check(P,S,HLANE,WS,END)
        mark(P,9); ga_finish(P,S,HLANE); must(P,9)
    P=schedule(P)
    stamp=St([44,46,48,50,52,54,56,58,60,62,4]); stamp(A,0)
    if LP: stamp.used.update({2:64,3:66,4:68,5:70,6:74,7:76})
    Em,rest=h_schedule(A,P,E('LB',800),E('PREL',2500),stamp)
    print("L role: total",sum(x[2] for x in P.it))
    assert not [x for x in rest if x[0] not in('MARK','MUST','LOCK')]
    A("s_barrier")
    stamp.dump(A)
    A("Lmain_end:")
    A.end(n,256); A.launch(n,256,512,lds=LDS_S3)
if __name__=='__main__':
    A=Asm(); build(A)
    print("LDS",LDS_S3)
    open(sys.argv[1],'w').write(A.text("S3: fused single launch",single=True))
```

```python
import os
from asmlib import *
from sched import *
from layout import *
from g32lib import WBASE,WSLOT,W3OFF,STAT,CSL,HSCR
LNRS=1344
LNSCR=8*LNRS
LR=32
LF=72
LS=232
def ln_loads(P,S,lane):
    t=LS
    P.i(f"""
    v_lshrrev_b32 v{t}, 3, v{lane}
    v_and_b32 v{t+1}, 7, v{lane}
    v_mul_u32_u24 v{t+2}, 1280, v{t}
    v_lshl_add_u32 v{t+2}, v{t+1}, 4, v{t+2}
    s_mul_i32 s{S['h0']}, s{S['wg']}, {8*1280}
    """)
    for i in range(10):
        P.vl(f"buffer_load_dwordx4 v[{LR+4*i}:{LR+4*i+3}], v{t+2}, s[{S['srdx']}:{S['srdx']+3}], s{S['h0']} offen offset:{128*i}",'ln',cost=30)
def ln_stats(P,S,lane,srd,flags,pk=True):
    t=LS; SM=LS+4; SQ=LS+6
    P.wv('ln')
    P.i(f"v_mov_b32 v{SM}, 0\nv_mov_b32 v{SM+1}, 0\nv_mov_b32 v{SQ}, 0\nv_mov_b32 v{SQ+1}, 0\nv_mov_b32 v{SM+4}, 0\nv_mov_b32 v{SM+5}, 0\nv_mov_b32 v{SQ+4}, 0\nv_mov_b32 v{SQ+5}, 0")
    for k in range(40):
        f=LF+2*k; a=SM+4*(k&1); b=SQ+4*(k&1)
        P.i(f"v_lshlrev_b32 v{f}, 16, v{LR+k}\nv_and_b32 v{f+1}, 0xffff0000, v{LR+k}")
        if pk:
            P.i(f"v_pk_add_f32 v[{a}:{a+1}], v[{a}:{a+1}], v[{f}:{f+1}]",cost=5)
            P.i(f"v_pk_fma_f32 v[{b}:{b+1}], v[{f}:{f+1}], v[{f}:{f+1}], v[{b}:{b+1}]",cost=5)
        else:
            P.i(f"v_add_f32 v{a}, v{a}, v{f}\nv_add_f32 v{a+1}, v{a+1}, v{f+1}\nv_fmac_f32 v{b}, v{f}, v{f}\nv_fmac_f32 v{b+1}, v{f+1}, v{f+1}",cost=6)
    P.i(f"""
    v_add_f32 v{SM}, v{SM}, v{SM+4}
    v_add_f32 v{SM+1}, v{SM+1}, v{SM+5}
    v_add_f32 v{SQ}, v{SQ}, v{SQ+4}
    v_add_f32 v{SQ+1}, v{SQ+1}, v{SQ+5}
    v_add_f32 v{SM}, v{SM}, v{SM+1}
    v_add_f32 v{SQ}, v{SQ}, v{SQ+1}
    """)
    for mod in ("quad_perm:[1,0,3,2]","quad_perm:[2,3,0,1]","row_half_mirror"):
        P.atom(f"s_nop 1\nv_add_f32_dpp v{SM}, v{SM}, v{SM} {mod} row_mask:0xf bank_mask:0xf\nv_add_f32_dpp v{SQ}, v{SQ}, v{SQ} {mod} row_mask:0xf bank_mask:0xf",cost=16)
    M=SM; R=SQ; NR=LS+12
    P.i(f"""
    v_mul_f32 v{M}, 0x3acccccd, v{M}
    v_mul_f32 v{R}, 0x3acccccd, v{R}
    v_fma_f32 v{R}, -v{M}, v{M}, v{R}
    v_max_f32 v{R}, 0, v{R}
    v_cvt_pk_bf16_f32 v{R}, v{R}, v{R}
    v_cvt_pk_bf16_f32 v{M}, v{M}, v{M}
    v_lshlrev_b32 v{R}, 16, v{R}
    v_lshlrev_b32 v{M}, 16, v{M}
    v_add_f32 v{R}, 0x3727c5ac, v{R}
    v_cvt_pk_bf16_f32 v{R}, v{R}, v{R}
    v_lshlrev_b32 v{R}, 16, v{R}
    v_sqrt_f32 v{R}, v{R}
    s_nop 0
    v_cvt_pk_bf16_f32 v{R}, v{R}, v{R}
    v_lshlrev_b32 v{R}, 16, v{R}
    v_rcp_f32 v{R}, v{R}
    s_nop 0
    v_mov_b32 v{M+1}, v{R}
    v_mul_f32 v{NR}, v{M}, v{R}
    v_sub_f32 v{NR}, 0, v{NR}
    v_mov_b32 v{NR+1}, v{R}
    """)
    sv=S['sv']
    P.i(f"v_lshrrev_b32 v{t}, 3, v{lane}\nv_lshlrev_b32 v{t+1}, 3, v{t}\ns_lshl_b32 s{S['h0']}, s{S['wg']}, 6\ns_add_u32 s{S['h0']}, s{S['h0']}, {STG}")
    P.lock()
    P.atom(f"s_mov_b64 s[{sv}:{sv+1}], exec\ns_mov_b32 exec_lo, 0x01010101\ns_mov_b32 exec_hi, 0x01010101")
    P.vs(f"buffer_store_dwordx2 v[{M}:{M+1}], v{t+1}, s[{srd}:{srd+3}], s{S['h0']} offen {flags}",'pub1')
    P.atom(f"s_mov_b64 exec, s[{sv}:{sv+1}]")
    P.unlock()
def ln_norm(P,S,lane,srd,flags):
    t=LS; NR=LS+12
    P.i(f"""
    v_lshrrev_b32 v{t}, 3, v{lane}
    v_and_b32 v{t+1}, 7, v{lane}
    v_mul_u32_u24 v{t+2}, {LNRS}, v{t}
    v_lshl_add_u32 v{t+2}, v{t+1}, 4, v{t+2}
    v_add_u32 v{t+2}, s{S['lb']}, v{t+2}
    """)
    for i in range(10):
        for k in range(4):
            f=LF+2*(4*i+k)
            if True:
                P.i(f"v_fma_f32 v{f}, v{f}, v{NR+1}, v{NR}\nv_fma_f32 v{f+1}, v{f+1}, v{NR+1}, v{NR}")
            else:
                P.i(f"v_pk_fma_f32 v[{f}:{f+1}], v[{f}:{f+1}], v[{NR}:{NR+1}], v[{NR}:{NR+1}] op_sel:[0,1,0] op_sel_hi:[1,1,0]",cost=5)
            P.i(f"v_cvt_pk_bf16_f32 v{LR+4*i+k}, v{f}, v{f+1}",cost=5)
        P.l(f"ds_write_b128 v{t+2}, v[{LR+4*i}:{LR+4*i+3}] offset:{128*i}",cost=30)
    P.i(f"""
    v_bfe_u32 v{t}, v{lane}, 2, 2
    v_mul_u32_u24 v{t}, {LNRS}, v{t}
    v_lshrrev_b32 v{t+1}, 4, v{lane}
    v_lshl_add_u32 v{t}, v{t+1}, 5, v{t}
    v_and_b32 v{t+1}, 3, v{lane}
    v_lshl_add_u32 v{t}, v{t+1}, 3, v{t}
    v_add_u32 v{t}, s{S['lb']}, v{t}
    v_lshlrev_b32 v{t+3}, 4, v{lane}
    s_mul_i32 s{S['h0']}, s{S['wg']}, 10240
    s_add_u32 s{S['h0']}, s{S['h0']}, {XT}
    """)
    if os.environ.get('LNWAIT'): P.wl()
    for i2 in range(10):
        for h in range(2):
            P.l(f"ds_read_b64_tr_b16 v[{LF+4*i2+2*h}:{LF+4*i2+2*h+1}], v{t} offset:{128*i2+4*LNRS*h}",('lt',i2))
        if os.environ.get('LNWAIT') and i2%4==3: P.wl()
    for i2 in range(10):
        P.wl(('lt',i2))
        if i2%4==0 and i2: P.i(f"s_add_u32 s{S['h0']}, s{S['h0']}, 4096")
        P.vs(f"buffer_store_dwordx4 v[{LF+4*i2}:{LF+4*i2+3}], v{t+3}, s[{srd}:{srd+3}], s{S['h0']} offen offset:{1024*(i2%4)} {flags}",'pub2',cost=80)
CFR=152
CD=32
CONE=216
CA=220
CF=226
def CDR(i): return 104+4*i
def cs_setup(P,S,lane):
    t=CF
    P.i(f"""
    v_lshrrev_b32 v{t+1}, 4, v{lane}          ; g
    v_bfe_u32 v{t}, v{lane}, 2, 2             ; r
    v_lshl_add_u32 v{t}, v{t+1}, 3, v{t}
    v_mul_u32_u24 v{t}, 192, v{t}
    v_and_b32 v{t+2}, 3, v{lane}
    v_lshl_add_u32 v{t}, v{t+2}, 3, v{t}
    v_add_u32 v{CA}, {WBASE}, v{t}
    """)
    for i in range(4): P.i(f"v_mov_b32 v{CONE+i}, 0x3f803f80")

CSEQ=[(mat,c) for mat in range(2) for c in range(6)]
CFR2=208
def cs_reads(P,S,s):
    for i,(mat,c) in enumerate(CSEQ):
        b=CFR+4*i
        for h in range(2): P.l(f"ds_read_b64_tr_b16 v[{b+2*h}:{b+2*h+1}], v{CA} offset:{mat*W3OFF+6144*s+768*h+32*c}",('cs',s),cost=8)
def cs_mfma(P,S,s):
    P.wl(('cs',s))
    P.lock(); P.atom("s_setprio 1")
    for i,(mat,c) in enumerate(CSEQ):
        b=CFR+4*i; d=CDR(i)
        src=f"v[{d}:{d+3}]" if s else "0"
        P.i(f"v_mfma_f32_16x16x32_bf16 v[{d}:{d+3}], v[{b}:{b+3}], v[{CONE}:{CONE+3}], {src}",cost=17)
    P.atom("s_setprio 0"); P.unlock()
def cs_store(P,S,lane,srd,flags,stage=None):
    sv=S['sv']; t=CF
    P.i(f"""
    s_nop 7
    v_lshrrev_b32 v{t}, 4, v{lane}
    v_lshlrev_b32 v{t}, 4, v{t}
    v_add_u32 v{t}, {stage if stage is not None else 's%d'%S['lb']}, v{t}
    v_lshlrev_b32 v{t+1}, 4, v{lane}
    v_add_u32 v{t+2}, {stage if stage is not None else 's%d'%S['lb']}, v{t+1}
    s_mul_i32 s{S['h0']}, s{S['cb']}, {16*768}
    s_mul_i32 s{S['h1']}, s{S['rb']}, 768
    s_add_u32 s{S['h0']}, s{S['h0']}, s{S['h1']}
    s_add_u32 s{S['h0']}, s{S['h0']}, {PCS}
    """)
    P.lock()
    P.atom(f"s_mov_b64 s[{sv}:{sv+1}], exec\ns_mov_b32 exec_lo, 0x00010001\ns_mov_b32 exec_hi, 0x00010001")
    for i,(mat,c) in enumerate(CSEQ):
        d=CDR(i)
        P.l(f"ds_write_b128 v{t}, v[{d}:{d+3}] offset:{mat*384+c*64}",cost=12)
    P.atom(f"s_mov_b32 exec_lo, -1\ns_mov_b32 exec_hi, 0xffff")
    P.l(f"ds_read_b128 v[{CFR}:{CFR+3}], v{t+2}",'cso')
    P.wl('cso')
    P.vs(f"buffer_store_dwordx4 v[{CFR}:{CFR+3}], v{t+1}, s[{srd}:{srd+3}], s{S['h0']} offen {flags}",'pub1',cost=50)
    P.atom(f"s_mov_b64 exec, s[{sv}:{sv+1}]")
    P.unlock()
WA=32
WR=38
WF=40
def w2_setup(P,S,lane):
    t=WF
    P.i(f"s_mov_b32 s{S['h0']}, {magic(10)}")
    for i in range(5):
        P.i(f"""
        v_add_u32 v{t}, {64*i}, v{lane}
        v_mul_hi_u32 v{t+1}, v{t}, s{S['h0']}
        v_mul_u32_u24 v{t+2}, 10, v{t+1}
        v_sub_u32 v{t+2}, v{t}, v{t+2}
        v_mul_u32_u24 v{t+1}, 1280, v{t+1}
        v_lshl_add_u32 v{WA+i}, v{t+2}, 4, v{t+1}
        """)
    P.i(f"""
    v_bfe_u32 v{t}, v{lane}, 5, 1
    v_lshlrev_b32 v{t}, 4, v{t}               ; 16*(g>>1)
    v_bfe_u32 v{t+1}, v{lane}, 4, 1
    v_lshl_add_u32 v{t}, v{t+1}, 2, v{t}      ; +4*(g&1)
    v_bfe_u32 v{t+1}, v{lane}, 2, 2
    v_add_u32 v{t}, v{t}, v{t+1}              ; +r
    v_mul_u32_u24 v{t}, 160, v{t}
    v_and_b32 v{t+1}, 3, v{lane}
    v_mul_u32_u24 v{t+1}, 40, v{t+1}
    v_add_u32 v{t}, v{t}, v{t+1}
    v_add_u32 v{WR}, s{S['lb']}, v{t}
    v_lshlrev_b32 v{WR+1}, 4, v{lane}
    """)
def w2_unit(P,S,k,srdw2,srd,flags):
    h0,h1,h2=S['h0'],S['h1'],S['h2']
    P.i(f"""
    s_mul_i32 s{h0}, s{S['u']}, 3
    s_add_u32 s{h0}, s{h0}, {k}
    s_mul_hi_u32 s{h1}, s{h0}, s{S['m48']}     ; db
    s_mul_i32 s{h2}, s{h1}, 48
    s_sub_u32 s{h0}, s{h0}, s{h2}              ; sigma
    s_mul_i32 s{h2}, s{h0}, {32*1280}
    s_mul_i32 s{S['h3']}, s{h1}, 160
    s_add_u32 s{h2}, s{h2}, s{S['h3']}
    """)
    for i in range(5):
        P.vl(f"s_add_u32 m0, s{S['lb']}, {1024*i}\ns_nop 0\nbuffer_load_dwordx4 v{WA+i}, s[{srdw2}:{srdw2+3}], s{h2} offen lds",('w2',k),cost=53)
    P.i(f"""
    s_mul_i32 s{h1}, s{h1}, {5*48}
    s_add_u32 s{h1}, s{h1}, s{h0}
    s_lshl_b32 s{h1}, s{h1}, 10
    s_add_u32 s{h1}, s{h1}, {W2F}
    """)
    P.wv(('w2',k))
    for dt in range(5):
        for h in range(2):
            P.l(f"ds_read_b64_tr_b16 v[{WF+4*dt+2*h}:{WF+4*dt+2*h+1}], v{WR} offset:{8*dt+1280*h}",('wt',k,dt))
    for dt in range(5):
        P.wl(('wt',k,dt))
        P.vs(f"buffer_store_dwordx4 v[{WF+4*dt}:{WF+4*dt+3}], v{WR+1}, s[{srd}:{srd+3}], s{h1} offen {flags}")
        if dt<4: P.i(f"s_add_u32 s{h1}, s{h1}, {48*1024}")

FV=248
def fl_clear(P,S,srd):
    t=FV
    P.i(f"""
    v_mov_b32 v{t}, 0
    v_mov_b32 v{t+1}, 0
    s_lshr_b32 s{S['h0']}, s{S['wg']}, 4
    s_lshl_b32 s{S['h0']}, s{S['h0']}, 7
    s_and_b32 s{S['h1']}, s{S['wg']}, 15
    s_lshl_b32 s{S['h1']}, s{S['h1']}, 2
    s_add_u32 s{S['h0']}, s{S['h0']}, s{S['h1']}
    s_add_u32 s{S['fst']}, s{S['h0']}, {FST}
    s_lshl_b32 s{S['h0']}, s{S['cb']}, 7
    s_lshl_b32 s{S['h1']}, s{S['rb']}, 2
    s_add_u32 s{S['h0']}, s{S['h0']}, s{S['h1']}
    s_add_u32 s{S['fcs']}, s{S['h0']}, {FCS}
    s_lshl_b32 s{S['h0']}, s{S['x']}, 5
    s_add_u32 s{S['h0']}, s{S['h0']}, s{S['j']}
    s_lshl_b32 s{S['h0']}, s{S['h0']}, 7
    s_add_u32 s{S['h0']}, s{S['h0']}, {FD}
    s_sub_u32 s{S['h1']}, 3, s{S['nch']}
    v_mov_b32 v{t+4}, 0
    v_mov_b32 v{t+5}, 0
    v_mov_b32 v{t+6}, s{S['h1']}
    v_mov_b32 v{t+7}, 0
    """)
    sv=S['sv']
    P.lock()
    P.atom(f"s_mov_b64 s[{sv}:{sv+1}], exec\ns_mov_b64 exec, 1")
    P.vs(f"buffer_store_dword v{t}, v{t+1}, s[{srd}:{srd+3}], s{S['fst']} offen sc1",'clr')
    P.vs(f"buffer_store_dword v{t}, v{t+1}, s[{srd}:{srd+3}], s{S['fcs']} offen sc1",'clr')
    P.vs(f"buffer_store_dwordx4 v[{t+4}:{t+7}], v{t+1}, s[{srd}:{srd+3}], s{S['h0']} offen sc1",'clr')
    P.atom(f"s_mov_b64 exec, s[{sv}:{sv+1}]")
    P.unlock()
def fl_cleared(P,S,srddbg):
    t=FV; sv=S['sv']
    P.wv('clr')
    P.i(f"s_and_b32 s{S['h0']}, s{S['wg']}, 1\ns_lshl_b32 s{S['h0']}, s{S['h0']}, 7\nv_mov_b32 v{t+2}, 1\nv_mov_b32 v{t+1}, 0")
    P.lock()
    P.atom(f"s_mov_b64 s[{sv}:{sv+1}], exec\ns_mov_b64 exec, 1")
    P.vs(f"buffer_atomic_add v{t+2}, v{t+1}, s[{srddbg}:{srddbg+3}], s{S['h0']} offen sc1")
    P.atom(f"s_mov_b64 exec, s[{sv}:{sv+1}]")
    P.unlock()
def fl_set(P,S,srd):
    t=FV; sv=S['sv']
    P.wv('pub')
    P.i(f"v_mov_b32 v{t+2}, 1\nv_mov_b32 v{t+1}, 0")
    P.lock()
    P.atom(f"s_mov_b64 s[{sv}:{sv+1}], exec\ns_mov_b64 exec, 1")
    P.vs(f"buffer_store_dword v{t+2}, v{t+1}, s[{srd}:{srd+3}], s{S['fst']} offen sc1")
    P.vs(f"buffer_store_dword v{t+2}, v{t+1}, s[{srd}:{srd+3}], s{S['fcs']} offen sc1")
    P.atom(f"s_mov_b64 exec, s[{sv}:{sv+1}]")
    P.unlock()
GA=32
def ga_clr_load(P,S,lane,srddbg):
    P.i(f"v_and_b32 v{GA}, 1, v{lane}\nv_lshlrev_b32 v{GA}, 7, v{GA}")
    P.vl(f"buffer_load_dword v{GA+1}, v{GA}, s[{srddbg}:{srddbg+3}], 0 offen sc1",'g1')
def ga_clr_check(P,S,lane,srddbg,srd,uid):
    P.wv('g1')
    P.atom(f"""
    Lgc{uid}:
    v_cmp_eq_u32 vcc, 128, v{GA+1}
    s_nop 1
    s_cmp_eq_u64 vcc, exec
    s_cbranch_scc1 Lgcok{uid}
    s_sleep 2
    buffer_load_dword v{GA+1}, v{GA}, s[{srddbg}:{srddbg+3}], 0 offen sc1
    s_waitcnt vmcnt(0)
    s_branch Lgc{uid}
    Lgcok{uid}:
    """,cost=20)
    P.i(f"""
    v_and_b32 v{GA+2}, 15, v{lane}
    v_lshlrev_b32 v{GA+2}, 2, v{GA+2}
    s_lshl_b32 s{S['h0']}, s{S['rb']}, 7
    s_add_u32 s{S['h0']}, s{S['h0']}, {FST}
    s_lshl_b32 s{S['h1']}, s{S['cb']}, 7
    s_add_u32 s{S['h1']}, s{S['h1']}, {FCS}
    v_add_u32 v{GA+3}, s{S['h0']}, v{GA+2}
    v_add_u32 v{GA+4}, s{S['h1']}, v{GA+2}
    v_mov_b32 v{GA+5}, s{S['h0']}
    v_cmp_gt_u32 vcc, 16, v{lane}
    s_nop 1
    v_cndmask_b32 v{GA+4}, v{GA+4}, v{GA+3}, vcc
    v_cmp_lt_u32 vcc, 25, v{lane}
    s_nop 1
    v_cndmask_b32 v{GA+4}, v{GA+4}, v{GA+5}, vcc
    """)
    P.vl(f"buffer_load_dword v{GA+6}, v{GA+4}, s[{srd}:{srd+3}], 0 offen sc1",'g2')
def ga_flag_check(P,S,lane,srd,uid):
    P.wv('g2')
    P.atom(f"""
    Lgf{uid}:
    v_cmp_eq_u32 vcc, 1, v{GA+6}
    s_nop 1
    s_cmp_eq_u64 vcc, exec
    s_cbranch_scc1 Lgfok{uid}
    s_sleep 2
    buffer_load_dword v{GA+6}, v{GA+4}, s[{srd}:{srd+3}], 0 offen sc1
    s_waitcnt vmcnt(0)
    s_branch Lgf{uid}
    Lgfok{uid}:
    """,cost=20)
    P.i(f"""
    v_lshlrev_b32 v{GA+7}, 4, v{lane}
    s_lshl_b32 s{S['h0']}, s{S['rb']}, 10
    s_add_u32 s{S['h0']}, s{S['h0']}, {STG}
    s_mul_i32 s{S['h1']}, s{S['cb']}, {16*768}
    s_add_u32 s{S['h1']}, s{S['h1']}, {PCS}
    """)
    P.vl(f"buffer_load_dwordx4 v[{GA+8}:{GA+11}], v{GA+7}, s[{srd}:{srd+3}], s{S['h0']} offen sc1",'g3')
    for r in range(10):
        P.vl(f"s_add_u32 s{S['h2']}, s{S['h1']}, {768*r}\nbuffer_load_dwordx4 v[{GA+12+4*r}:{GA+15+4*r}], v{GA+7}, s[{srd}:{srd+3}], s{S['h2']} offen sc1",'g3')
def ga_finish(P,S,lane):
    P.wv('g3')
    b=GA+12
    for r in range(1,10):
        for k in range(4): P.i(f"v_add_f32 v{b+k}, v{b+k}, v{b+4*r+k}",cost=5)
    sv=S['sv']
    P.i(f"v_add_u32 v{GA+6}, {STAT}, v{GA+7}\nv_add_u32 v{GA+5}, {CSL}, v{GA+7}")
    P.l(f"ds_write_b128 v{GA+6}, v[{GA+8}:{GA+11}]")
    P.lock()
    P.atom(f"s_mov_b64 s[{sv}:{sv+1}], exec\ns_mov_b32 exec_lo, -1\ns_mov_b32 exec_hi, 0xffff")
    P.l(f"ds_write_b128 v{GA+5}, v[{b}:{b+3}]")
    P.atom(f"s_mov_b64 exec, s[{sv}:{sv+1}]")
    P.unlock()
    P.wl()

SPIN=1<<21
def s3_clear(P,S,srd):
    t=FV
    P.i(f"""
    v_mov_b32 v{t}, 0
    v_mov_b32 v{t+1}, 0
    s_lshl_b32 s{S['h0']}, s{S['wg']}, 2
    s_add_u32 s{S['fst']}, s{S['h0']}, {FL}
    s_sub_u32 s{S['h0']}, s{S['j']}, 16
    s_lshl_b32 s{S['h0']}, s{S['h0']}, 3
    s_add_u32 s{S['h0']}, s{S['h0']}, s{S['x']}
    s_and_b32 s{S['h1']}, s{S['wg']}, 127
    s_add_u32 s{S['h1']}, s{S['h1']}, 128
    """)
    P.atom(f"s_cmp_ge_u32 s{S['j']}, 16\ns_cselect_b32 s{S['h0']}, s{S['h0']}, s{S['h1']}")
    P.i(f"""
    s_lshl_b32 s{S['h0']}, s{S['h0']}, 2
    s_add_u32 s{S['h2']}, s{S['h0']}, {FW}
    s_lshl_b32 s{S['h0']}, s{S['rb']}, 4
    s_add_u32 s{S['h0']}, s{S['h0']}, s{S['cb']}
    s_lshl_b32 s{S['h0']}, s{S['h0']}, 7
    s_add_u32 s{S['h3']}, s{S['h0']}, {FH}
    s_lshl_b32 s{S['h0']}, s{S['x']}, 5
    s_add_u32 s{S['h0']}, s{S['h0']}, s{S['j']}
    s_lshl_b32 s{S['h0']}, s{S['h0']}, 7
    s_add_u32 s{S['h0']}, s{S['h0']}, {FD}
    s_sub_u32 s{S['h1']}, 3, s{S['nch']}
    v_mov_b32 v{t+4}, 0
    v_mov_b32 v{t+5}, 0
    v_mov_b32 v{t+6}, s{S['h1']}
    v_mov_b32 v{t+7}, 0
    """)
    sv=S['sv']
    P.lock()
    P.atom(f"s_mov_b64 s[{sv}:{sv+1}], exec\ns_mov_b64 exec, 1")
    for r in ('fst','h2','h3'):
        P.vs(f"buffer_store_dword v{t}, v{t+1}, s[{srd}:{srd+3}], s{S[r]} offen sc1",'clr',cost=30)
    P.atom(f"s_add_u32 s{S['h1']}, s{S['fst']}, {FX-FL}")
    P.vs(f"buffer_store_dword v{t}, v{t+1}, s[{srd}:{srd+3}], s{S['h1']} offen sc1",'clr',cost=30)
    P.vs(f"buffer_store_dwordx4 v[{t+4}:{t+7}], v{t+1}, s[{srd}:{srd+3}], s{S['h0']} offen sc1",'clr',cost=30)
    P.atom(f"s_mov_b64 exec, s[{sv}:{sv+1}]")
    P.unlock()
def s3_set_fl(P,S,srd,tag='pub1',extra=0):
    t=FV; sv=S['sv']
    P.wv(tag)
    P.i(f"v_mov_b32 v{t+2}, 1\nv_mov_b32 v{t+1}, 0\ns_add_u32 s{S['h0']}, s{S['fst']}, {extra}")
    P.lock()
    P.atom(f"s_mov_b64 s[{sv}:{sv+1}], exec\ns_mov_b64 exec, 1")
    P.vs(f"buffer_store_dword v{t+2}, v{t+1}, s[{srd}:{srd+3}], s{S['h0']} offen sc1",cost=30)
    P.atom(f"s_mov_b64 exec, s[{sv}:{sv+1}]")
    P.unlock()
def s3_set_fw(P,S,srd,t):
    sv=S['sv']
    P.wv('w2pub')
    P.i(f"v_mov_b32 v{t}, 1\nv_mov_b32 v{t+1}, 0\ns_lshl_b32 s{S['h0']}, s{S['u']}, 2\ns_add_u32 s{S['h0']}, s{S['h0']}, {FW}")
    P.lock()
    P.atom(f"s_mov_b64 s[{sv}:{sv+1}], exec\ns_mov_b64 exec, 1")
    P.vs(f"buffer_store_dword v{t}, v{t+1}, s[{srd}:{srd+3}], s{S['h0']} offen sc1",cost=30)
    P.atom(f"s_mov_b64 exec, s[{sv}:{sv+1}]")
    P.unlock()
def spin(uid,load,check,S,endlab,sleep=3):
    return f"""
    s_mov_b32 s{S['spin']}, 0
    Lsp{uid}:
    {check}
    s_nop 1
    s_cmp_eq_u64 vcc, exec
    s_cbranch_scc1 Lspok{uid}
    s_add_u32 s{S['spin']}, s{S['spin']}, 1
    s_cmp_gt_u32 s{S['spin']}, {SPIN}
    s_cbranch_scc1 {endlab}
    s_sleep {sleep}
    {load}
    s_waitcnt vmcnt(0)
    s_branch Lsp{uid}
    Lspok{uid}:
    """
def s3_ga_clr_load(P,S,lane,srddbg):
    P.i(f"v_and_b32 v{GA}, 1, v{lane}\nv_lshlrev_b32 v{GA}, 7, v{GA}")
    P.vl(f"buffer_load_dword v{GA+1}, v{GA}, s[{srddbg}:{srddbg+3}], 0 offen sc1",'g1',cost=30)
def s3_ga_clr_check(P,S,lane,srddbg,srd,endlab):
    P.wv('g1')
    P.atom(spin('clr',f"buffer_load_dword v{GA+1}, v{GA}, s[{srddbg}:{srddbg+3}], 0 offen sc1",f"v_cmp_eq_u32 vcc, 128, v{GA+1}",S,endlab),cost=30)
    P.i(f"""
    v_lshlrev_b32 v{GA+2}, 4, v{lane}
    v_and_b32 v{GA+3}, 15, v{lane}
    v_lshlrev_b32 v{GA+3}, 2, v{GA+3}
    s_lshl_b32 s{S['h0']}, s{S['db']}, 6
    s_add_u32 s{S['h3']}, s{S['h0']}, {FW}
    s_mov_b32 s{S['h2']}, {FL}
    """)
    P.vl(f"buffer_load_dwordx4 v[{GA+4}:{GA+7}], v{GA+2}, s[{srd}:{srd+3}], s{S['h2']} offen sc1",'g2',cost=30)
    P.vl(f"buffer_load_dword v{GA+8}, v{GA+3}, s[{srd}:{srd+3}], s{S['h3']} offen sc1",'g2',cost=30)
def s3_ga_flag_check(P,S,lane,srd,endlab):
    P.wv('g2')
    ld=f"buffer_load_dwordx4 v[{GA+4}:{GA+7}], v{GA+2}, s[{srd}:{srd+3}], s{S['h2']} offen sc1\nbuffer_load_dword v{GA+8}, v{GA+3}, s[{srd}:{srd+3}], s{S['h3']} offen sc1"
    ck=f"v_and_b32 v{GA+9}, v{GA+4}, v{GA+5}\nv_and_b32 v{GA+10}, v{GA+6}, v{GA+7}\nv_and_b32 v{GA+9}, v{GA+9}, v{GA+10}\nv_and_b32 v{GA+9}, v{GA+9}, v{GA+8}\nv_cmp_eq_u32 vcc, 1, v{GA+9}"
    P.atom(spin('fl',ld,ck,S,endlab),cost=40)
    if S.get('nodata'): return
    s3_ga_data(P,S,lane,srd)
def s3_ga_data(P,S,lane,srd):
    P.i(f"""
    v_lshlrev_b32 v{GA+7}, 4, v{lane}
    s_lshl_b32 s{S['h0']}, s{S['rb']}, 10
    s_add_u32 s{S['h0']}, s{S['h0']}, {STG}
    s_mul_i32 s{S['h1']}, s{S['cb']}, {16*768}
    s_add_u32 s{S['h1']}, s{S['h1']}, {PCS}
    """)
    P.vl(f"buffer_load_dwordx4 v[{GA+8}:{GA+11}], v{GA+7}, s[{srd}:{srd+3}], s{S['h0']} offen sc1",'g3',cost=30)
    for r in range(10):
        P.vl(f"s_add_u32 s{S['h2']}, s{S['h1']}, {768*r}\nbuffer_load_dwordx4 v[{GA+12+4*r}:{GA+15+4*r}], v{GA+7}, s[{srd}:{srd+3}], s{S['h2']} offen sc1",'g3',cost=30)

L2ONE=216
L2S=200
def ln2_loads(P,S,lane,raw=None):
    t=LS
    P.i(f"""
    v_and_b32 v{t}, 7, v{lane}                 ; row
    v_bfe_u32 v{t+1}, v{lane}, 3, 1            ; half
    v_lshrrev_b32 v{t+3}, 4, v{lane}           ; g
    v_lshl_add_u32 v{t+1}, v{t+1}, 2, v{t+3}
    v_mul_u32_u24 v{t+2}, 1280, v{t}
    v_lshl_add_u32 v{t+2}, v{t+1}, 4, v{t+2}
    s_mul_i32 s{S['h0']}, s{S['wg']}, {8*1280}
    """)
    for i in range(10):
        P.vl(f"buffer_load_dwordx4 v[{LR+4*i}:{LR+4*i+3}], v{t+2}, s[{S['srdx']}:{S['srdx']+3}], s{S['h0']} offen offset:{128*i}",'ln',cost=30)
def ln2_stats(P,S,lane,srd,flags,raw=None):
    t=LS; M=LS+4; R=LS+6; NR=LS+12; Dm=L2S; Dg=L2S+4; sv=S['sv']
    P.wv('ln')
    P.lock(); P.atom("s_setprio 1")
    for i in range(10):
        x=LR+4*i
        P.i(f"v_mfma_f32_16x16x32_bf16 v[{Dm}:{Dm+3}], v[{CONE}:{CONE+3}], v[{x}:{x+3}], {'0' if i==0 else f'v[{Dm}:{Dm+3}]'}",cost=17)
        P.i(f"v_mfma_f32_16x16x32_bf16 v[{Dg}:{Dg+3}], v[{x}:{x+3}], v[{x}:{x+3}], {'0' if i==0 else f'v[{Dg}:{Dg+3}]'}",cost=17)
    P.atom("s_setprio 0"); P.unlock()
    P.i(f"""
    v_and_b32 v{t}, 3, v{lane}
    v_and_b32 v{t+1}, 15, v{lane}
    v_lshrrev_b32 v{t+3}, 2, v{t+1}
    v_lshl_add_u32 v{t+3}, v{t+3}, 4, v{t+1}
    v_lshlrev_b32 v{t+3}, 2, v{t+3}
    """)
    P.atom(f"""
    s_nop 4
    v_cmp_eq_u32 vcc, 1, v{t}
    s_nop 1
    v_cndmask_b32 v{R}, v{Dg}, v{Dg+1}, vcc
    v_cmp_eq_u32 vcc, 2, v{t}
    s_nop 1
    v_cndmask_b32 v{R}, v{R}, v{Dg+2}, vcc
    v_cmp_eq_u32 vcc, 3, v{t}
    s_nop 1
    v_cndmask_b32 v{R}, v{R}, v{Dg+3}, vcc
    v_mov_b32 v{M}, v{Dm}
    """,cost=70)
    P.l(f"ds_bpermute_b32 v{R}, v{t+3}, v{R}",'bp',cost=10)
    P.wl('bp')
    P.atom(f"s_nop 1\nv_add_f32_dpp v{M}, v{M}, v{M} row_ror:8 row_mask:0xf bank_mask:0xf\nv_add_f32_dpp v{R}, v{R}, v{R} row_ror:8 row_mask:0xf bank_mask:0xf",cost=20)
    P.i(f"""
    v_mul_f32 v{M}, 0x3acccccd, v{M}
    v_mul_f32 v{R}, 0x3acccccd, v{R}
    v_fma_f32 v{R}, -v{M}, v{M}, v{R}
    v_max_f32 v{R}, 0, v{R}
    v_cvt_pk_bf16_f32 v{R}, v{R}, v{R}
    v_cvt_pk_bf16_f32 v{M}, v{M}, v{M}
    v_lshlrev_b32 v{R}, 16, v{R}
    v_lshlrev_b32 v{M}, 16, v{M}
    v_add_f32 v{R}, 0x3727c5ac, v{R}
    v_cvt_pk_bf16_f32 v{R}, v{R}, v{R}
    v_lshlrev_b32 v{R}, 16, v{R}
    v_sqrt_f32 v{R}, v{R}
    s_nop 0
    v_cvt_pk_bf16_f32 v{R}, v{R}, v{R}
    v_lshlrev_b32 v{R}, 16, v{R}
    v_rcp_f32 v{R}, v{R}
    s_nop 0
    v_mov_b32 v{M+1}, v{R}
    v_mul_f32 v{NR}, v{M}, v{R}
    v_sub_f32 v{NR}, 0, v{NR}
    v_mov_b32 v{NR+1}, v{R}
    v_and_b32 v{t}, 7, v{lane}
    v_lshlrev_b32 v{t+1}, 3, v{t}
    s_lshl_b32 s{S['h0']}, s{S['wg']}, 6
    s_add_u32 s{S['h0']}, s{S['h0']}, {STG}
    """,cost=6)
    P.lock()
    P.atom(f"s_mov_b64 s[{sv}:{sv+1}], exec\ns_mov_b64 exec, 0xff")
    P.vs(f"buffer_store_dwordx2 v[{M}:{M+1}], v{t+1}, s[{srd}:{srd+3}], s{S['h0']} offen {flags}",'pub1',cost=40)
    P.atom(f"s_mov_b64 exec, s[{sv}:{sv+1}]")
    P.unlock()
def ln2_norm(P,S,lane,srd,flags,raw=None):
    t=LS; NR=LS+12; F=LF
    P.i(f"""
    v_and_b32 v{t}, 7, v{lane}
    v_bfe_u32 v{t+1}, v{lane}, 3, 1
    v_lshrrev_b32 v{t+3}, 4, v{lane}
    v_lshl_add_u32 v{t+1}, v{t+1}, 2, v{t+3}
    v_mul_u32_u24 v{t+2}, {LNRS}, v{t}
    v_lshl_add_u32 v{t+2}, v{t+1}, 4, v{t+2}
    v_add_u32 v{t+2}, s{S['lb']}, v{t+2}
    """,cost=6)
    for i in range(10):
        for k in range(4):
            r=LR+4*i+k; f=F+2*((4*i+k)%8)
            P.i(f"v_lshlrev_b32 v{f}, 16, v{r}\nv_and_b32 v{f+1}, 0xffff0000, v{r}\nv_fma_f32 v{f}, v{f}, v{NR+1}, v{NR}\nv_fma_f32 v{f+1}, v{f+1}, v{NR+1}, v{NR}\nv_cvt_pk_bf16_f32 v{r}, v{f}, v{f+1}",cost=7)
        P.l(f"ds_write_b128 v{t+2}, v[{LR+4*i}:{LR+4*i+3}] offset:{128*i}",cost=35)
    P.i(f"""
    v_bfe_u32 v{t}, v{lane}, 2, 2
    v_mul_u32_u24 v{t}, {LNRS}, v{t}
    v_lshrrev_b32 v{t+1}, 4, v{lane}
    v_lshl_add_u32 v{t}, v{t+1}, 5, v{t}
    v_and_b32 v{t+1}, 3, v{lane}
    v_lshl_add_u32 v{t}, v{t+1}, 3, v{t}
    v_add_u32 v{t}, s{S['lb']}, v{t}
    v_lshlrev_b32 v{t+3}, 4, v{lane}
    s_mul_i32 s{S['h0']}, s{S['wg']}, 10240
    s_add_u32 s{S['h0']}, s{S['h0']}, {XT}
    """,cost=6)
    TR=LF+16
    for i2 in range(10):
        for h in range(2):
            P.l(f"ds_read_b64_tr_b16 v[{TR+4*i2+2*h}:{TR+4*i2+2*h+1}], v{t} offset:{128*i2+4*LNRS*h}",('lt',i2),cost=8)
        if i2>=2:
            j=i2-2; P.wl(('lt',j))
            if j%4==0 and j: P.i(f"s_add_u32 s{S['h0']}, s{S['h0']}, 4096")
            P.vs(f"buffer_store_dwordx4 v[{TR+4*j}:{TR+4*j+3}], v{t+3}, s[{srd}:{srd+3}], s{S['h0']} offen offset:{1024*(j%4)} {flags}",'pub2',cost=80)
    for j in (8,9):
        P.wl(('lt',j))
        if j%4==0 and j: P.i(f"s_add_u32 s{S['h0']}, s{S['h0']}, 4096")
        P.vs(f"buffer_store_dwordx4 v[{TR+4*j}:{TR+4*j+3}], v{t+3}, s[{srd}:{srd+3}], s{S['h0']} offen offset:{1024*(j%4)} {flags}",'pub2',cost=80)

W2R=64
def w2b_loads(P,S,srdw2):
    h0,h1,h2=S['h0'],S['h1'],S['h2']
    for k in range(3):
        P.i(f"""
        s_mul_i32 s{h0}, s{S['u']}, 3
        s_add_u32 s{h0}, s{h0}, {k}
        s_mul_hi_u32 s{h1}, s{h0}, s{S['m48']}
        s_mul_i32 s{h2}, s{h1}, 48
        s_sub_u32 s{h0}, s{h0}, s{h2}
        s_mul_i32 s{h2}, s{h0}, {32*1280}
        s_mul_i32 s{S['h3']}, s{h1}, 160
        s_add_u32 s{h2}, s{h2}, s{S['h3']}
        s_mul_i32 s{h1}, s{h1}, {5*48}
        s_add_u32 s{h1}, s{h1}, s{h0}
        s_lshl_b32 s{h1}, s{h1}, 10
        s_add_u32 s{S['wo']+k}, s{h1}, {W2F}
        """)
        for i in range(5):
            r=W2R+20*k+4*i
            P.vl(f"buffer_load_dwordx4 v[{r}:{r+3}], v{WA+i}, s[{srdw2}:{srdw2+3}], s{h2} offen",('w2',k),cost=30)
def w2b_unit(P,S,k,lane,srd,flags):
    P.wv(('w2',k))
    P.i(f"v_lshlrev_b32 v37, 4, v{lane}\nv_add_u32 v37, s{S['lb']}, v37")
    for i in range(5):
        r=W2R+20*k+4*i
        P.l(f"ds_write_b128 v37, v[{r}:{r+3}] offset:{1024*i}",cost=35)
    for dt in range(5):
        for h in range(2):
            P.l(f"ds_read_b64_tr_b16 v[{WF+4*dt+2*h}:{WF+4*dt+2*h+1}], v{WR} offset:{8*dt+1280*h}",('wt',k,dt),cost=8)
    for dt in range(5):
        P.wl(('wt',k,dt))
        P.vs(f"s_add_u32 s{S['h1']}, s{S['wo']+k}, {48*1024*dt}\nbuffer_store_dwordx4 v[{WF+4*dt}:{WF+4*dt+3}], v{WR+1}, s[{srd}:{srd+3}], s{S['h1']} offen {flags}",'w2pub',cost=80)

def s3_fx_load(P,S,lane,srd):
    P.i(f"v_lshlrev_b32 v{FV}, 4, v{lane}\ns_mov_b32 s{S.get('fxr',S['h3'])}, {FX}")
    P.vl(f"buffer_load_dwordx4 v[{FV+4}:{FV+7}], v{FV}, s[{srd}:{srd+3}], s{S.get('fxr',S['h3'])} offen sc1",'fx')
def s3_fx_check(P,S,lane,srd,endlab):
    P.wv('fx')
    ld=f"buffer_load_dwordx4 v[{FV+4}:{FV+7}], v{FV}, s[{srd}:{srd+3}], s{S.get('fxr',S['h3'])} offen sc1"
    ck=f"v_and_b32 v{FV+1}, v{FV+4}, v{FV+5}\nv_and_b32 v{FV+2}, v{FV+6}, v{FV+7}\nv_and_b32 v{FV+1}, v{FV+1}, v{FV+2}\nv_cmp_eq_u32 vcc, 1, v{FV+1}"
    P.atom(spin('fx',ld,ck,S,endlab),cost=40)

def ln3_st(P,S,lane,srd,flags,lst):
    t=LS
    P.i(f"""
    v_and_b32 v{t+4}, 7, v{lane}
    v_lshlrev_b32 v{t+4}, 3, v{t+4}
    v_add_u32 v{t+5}, {lst}, v{t+4}
    s_lshl_b32 s{S['h1']}, s{S['wg']}, 6
    s_add_u32 s{S['h1']}, s{S['h1']}, {STG}
    """)
    P.l(f"ds_read_b64 v[{t+6}:{t+7}], v{t+5}",'st')
    sv=S['sv']
    P.wl('st')
    P.lock()
    P.atom(f"s_mov_b64 s[{sv}:{sv+1}], exec\ns_mov_b64 exec, 0xff")
    P.vs(f"buffer_store_dwordx2 v[{t+6}:{t+7}], v{t+4}, s[{srd}:{srd+3}], s{S['h1']} offen {flags}",'pub1')
    P.atom(f"s_mov_b64 exec, s[{sv}:{sv+1}]")
    P.unlock()
def ln3_xt_reads(P,S,lane):
    t=LS; TR=LR
    P.i(f"""
    v_bfe_u32 v{t}, v{lane}, 2, 2
    v_mul_u32_u24 v{t}, {LNRS}, v{t}
    v_lshrrev_b32 v{t+1}, 4, v{lane}
    v_lshl_add_u32 v{t}, v{t+1}, 5, v{t}
    v_and_b32 v{t+1}, 3, v{lane}
    v_lshl_add_u32 v{t}, v{t+1}, 3, v{t}
    v_add_u32 v{t}, s{S['lb']}, v{t}
    """)
    for i2 in range(10):
        for h in range(2):
            P.l(f"ds_read_b64_tr_b16 v[{TR+4*i2+2*h}:{TR+4*i2+2*h+1}], v{t} offset:{128*i2+4*LNRS*h}",'lt')
    P.wl('lt')
def ln3_xt_stores(P,S,lane,srd,flags):
    t=LS; TR=LR
    P.i(f"v_lshlrev_b32 v{t+3}, 4, v{lane}\ns_mul_i32 s{S['h0']}, s{S['wg']}, 10240\ns_add_u32 s{S['h0']}, s{S['h0']}, {XT}")
    for j in range(10):
        if j%4==0 and j: P.i(f"s_add_u32 s{S['h0']}, s{S['h0']}, 4096")
        P.vs(f"buffer_store_dwordx4 v[{TR+4*j}:{TR+4*j+3}], v{t+3}, s[{srd}:{srd+3}], s{S['h0']} offen offset:{1024*(j%4)} {flags}",'pub2')
```

```python
import os
from asmlib import *
from sched import *
from layout import *
KTS=768
KROW=272
KSCR=5888
KP=32
KDT=44
KWA=48
KRA=56
KD=68
KAF=84
KBF=116
KV=132
def cmul(P,d,a,b,t):
    P.i(f"""
    v_pk_mul_f32 v[{t}:{t+1}], v[{a}:{a+1}], v[{b}:{b+1}] op_sel:[1,1] op_sel_hi:[1,0] neg_lo:[1,0]
    v_pk_fma_f32 v[{d}:{d+1}], v[{a}:{a+1}], v[{b}:{b+1}], v[{t}:{t+1}] op_sel:[0,0,0] op_sel_hi:[0,1,1]
    """,cost=5)
def edirect(P,dr,di,al,be,p,t):
    P.i(f"""
    v_mul_f32 v{t}, {p}, v{al}
    v_mul_f32 v{t+1}, {p}, v{be}
    v_exp_f32 v{t}, v{t}
    v_fract_f32 v{t+1}, v{t+1}
    v_cos_f32 v{dr}, v{t+1}
    v_sin_f32 v{di}, v{t+1}
    s_nop 0
    v_mul_f32 v{dr}, v{dr}, v{t}
    v_mul_f32 v{di}, v{di}, v{t}
    """)
def kgen_loads(P,S,lane,tmp):
    P.i(f"s_mul_i32 s{S['k0']}, s{S['ch']}, 384\nv_lshlrev_b32 v{tmp}, 2, v{lane}\nv_lshlrev_b32 v{tmp+2}, 1, v{lane}\ns_lshl_b32 s{S['k1']}, s{S['ch']}, 1\nv_mov_b32 v{tmp+1}, s{S['k1']}")
    P.vl(f"buffer_load_ushort v{KDT}, v{tmp+1}, s[{S['sD']}:{S['sD']+3}], 0 offen",'kp',cost=30)
    for k,nm in enumerate(('sA','sI','sR','sC')):
        P.vl(f"buffer_load_dword v{KP+k}, v{tmp}, s[{S[nm]}:{S[nm]+3}], s{S['k0']} offen",'kp',cost=30)
    for k,nm in enumerate(('sA','sI','sR','sC')):
        P.vl(f"buffer_load_ushort v{KP+4+k}, v{tmp+2}, s[{S[nm]}:{S[nm]+3}], s{S['k0']} offen offset:256",'kp2',cost=30)
def kgen_setup(P,S,lane):
    t=KV
    P.i(f"v_lshlrev_b32 v{t}, 2, v{lane}\nv_add_u32 v{KWA}, s{S['kb']}, v{t}")
    for c in range(1,6): P.i(f"v_add_u32 v{KWA+c}, {4*KROW*c}, v{KWA}")
    P.i(f"""
    v_and_b32 v{t}, 15, v{lane}
    v_lshrrev_b32 v{t+1}, 4, v{lane}
    v_mul_u32_u24 v{t}, {KROW}, v{t}
    v_lshl_add_u32 v{t+1}, v{t+1}, 4, v{t}
    v_add_u32 v{KRA}, s{S['kb']}, v{t+1}
    """)
    for i in range(16): P.i(f"v_mov_b32 v{KD+i}, 0")
def kgen_dt(P,S):
    d=KDT
    P.wv('kp')
    P.i(f"""
    v_lshlrev_b32 v{d}, 16, v{d}
    v_mul_f32 v{d}, 0x3fb8aa3b, v{d}
    v_exp_f32 v{d}, v{d}
    s_nop 0
    v_cvt_pk_bf16_f32 v{d}, v{d}, v{d}
    v_lshlrev_b32 v{d}, 16, v{d}
    """)
class KG:
    V=KV
    def __init__(s,g,pk=False):
        V=s.V; s.g=g; s.pk=pk
        s.AL,s.BE,s.C=V,V+1,V+2
        s.E1,s.E2,s.E4,s.E8,s.E256,s.E16=V+4,V+8,V+12,V+16,V+20,V+24
        s.buf={'X':[V+28,V+30],'Y':[V+32,V+34],'Z':[V+36,V+38],'W':[V+40,V+42]}
        s.cur={}
        s.TT=[V+44+2*i for i in range(4)]; s.tk=0; s.OUT=V+52; s.k=0; s.held={}
    def T(s): s.tk=(s.tk+1)%4; return s.TT[s.tk]
    def mul(s,P,name,a,E):
        b=s.buf[name]; d=b[0] if s.cur.get(name)!=b[0] else b[1]
        if s.pk: cmul(P,d,a,E,s.T())
        else:
            P.i(f"""
            v_mul_f32 v{d}, v{a}, v{E}
            v_mul_f32 v{d+1}, v{a}, v{E+1}
            v_fmac_f32 v{d}, v{a+1}, v{E+2}
            v_fmac_f32 v{d+1}, v{a+1}, v{E}
            """,cost=5)
        s.cur[name]=d; return d
    def sq(s,P,d,a):
        t=s.T()
        P.i(f"""
        v_mul_f32 v{d}, v{a}, v{a}
        v_mul_f32 v{d+1}, v{a}, v{a+1}
        v_fmac_f32 v{d}, v{a+1}, v{a+2}
        v_add_f32 v{d+1}, v{d+1}, v{d+1}
        v_sub_f32 v{d+2}, 0, v{d+1}
        """,cost=5)
    def pack(s,P,v,r,neg):
        o=s.OUT+(s.k%8); s.k+=1
        P.i(f"v_cvt_pk_bf16_f32 v{o}, v{r}, {'-' if neg else ''}v{r+1}",cost=5); s.held[v]=o
    def wr2(s,P,v):
        a=KWA+(v>>2); o0=(v&3)*68
        if os.environ.get('WPRIO'):
            P.l(f"s_setprio 1\nds_write2_b32 v{a}, v{s.held[v]}, v{s.held[v+1]} offset0:{o0} offset1:{o0+68}\ns_setprio 0",cost=30)
        else:
            P.l(f"ds_write2_b32 v{a}, v{s.held[v]}, v{s.held[v+1]} offset0:{o0} offset1:{o0+68}",cost=30)
    def wr1(s,P,v): P.l(f"ds_write_b32 v{KWA+(v>>2)}, v{s.held[v]} offset:{(v&3)*KROW}",cost=14)
    def setup(s,P):
        AL,BE,C=s.AL,s.BE,s.C; d=KDT
        p=KP+(4 if s.g==2 else 0)
        up=(lambda dst,src: f"v_and_b32 v{dst}, 0xffff0000, v{src}") if s.g==1 else (lambda dst,src: f"v_lshlrev_b32 v{dst}, 16, v{src}")
        P.i(f"""
        {up(AL,p)}
        {up(BE,p+1)}
        v_mul_f32 v{AL}, 0x3fb8aa3b, v{AL}
        {up(C,p+2)}
        v_exp_f32 v{AL}, v{AL}
        {up(C+1,p+3)}
        v_mul_f32 v{BE}, v{BE}, v{d}
        v_cvt_pk_bf16_f32 v{AL}, v{AL}, v{AL}
        v_mul_f32 v{C}, v{C}, v{d}
        v_lshlrev_b32 v{AL}, 16, v{AL}
        v_mul_f32 v{C+1}, v{C+1}, v{d}
        v_mul_f32 v{AL}, v{AL}, v{d}
        v_mul_f32 v{BE}, 0.15915494, v{BE}
        v_mul_f32 v{AL}, 0xbfb8aa3b, v{AL}
        v_add_f32 v{C}, v{C}, v{C}
        v_add_f32 v{C+1}, v{C+1}, v{C+1}
        """,cost=5)
        for E,p_ in ((s.E1,"1.0"),(s.E256,"0x43800000"),(s.E8,"0x41000000")):
            edirect(P,E,E+1,AL,BE,p_,s.T()); P.i(f"v_sub_f32 v{E+2}, 0, v{E+1}",cost=5)
        s.sq(P,s.E2,s.E1); s.sq(P,s.E16,s.E8); s.sq(P,s.E4,s.E2)
    def rows(s,P):
        C=s.C; E1,E2,E4,E256=s.E1,s.E2,s.E4,s.E256
        pk=lambda v,r: s.pack(P,v,r,True); wr2=lambda v:s.wr2(P,v); M=lambda n,a,E:s.mul(P,n,a,E)
        c=s.cur
        pk(0,C)
        M('X',C,E1); M('Y',C,E256)
        pk(1,c['X']); pk(8,c['Y']); wr2(0)
        M('X',c['X'],E1); M('Z',c['Y'],E2); M('Y',c['Y'],E256)
        pk(2,c['X']); pk(9,c['Z']); pk(12,c['Y']); wr2(8)
        M('X',c['X'],E1); M('Z',c['Z'],E2); M('W',c['Y'],E4); M('Y',c['Y'],E256)
        pk(3,c['X']); pk(13,c['W']); wr2(2); wr2(12); pk(10,c['Z']); pk(14,c['Y'])
        M('X',c['X'],E1); M('Z',c['Z'],E2); M('W',c['Y'],E4); M('Y',c['Y'],E256)
        pk(11,c['Z']); pk(15,c['W']); wr2(10); wr2(14); pk(4,c['X']); pk(16,c['Y'])
        M('X',c['X'],E1); M('Y',c['Y'],E256)
        pk(5,c['X']); pk(17,c['Y']); wr2(4); wr2(16)
        M('X',c['X'],E1); M('Y',c['Y'],E256)
        pk(6,c['X']); pk(18,c['Y'])
        M('X',c['X'],E1); M('Y',c['Y'],E256)
        pk(7,c['X']); pk(19,c['Y']); wr2(6); wr2(18)
        M('Y',c['Y'],E256); pk(20,c['Y']); s.wr1(P,20)
    def readA(s,P):
        for mt in range(2):
            for ks in range(4):
                b=KAF+(mt*4+ks)*4
                P.l(f"ds_read_b128 v[{b}:{b+3}], v{KRA} offset:{16*KROW*mt+64*ks}",('ka',s.g),cost=6)
    def cols(s,P,nh):
        E8,E16=s.E8,s.E16; c=s.cur
        if nh==0:
            o0=s.OUT+(s.k%8); s.k+=1
            P.i(f"v_mov_b32 v{o0}, 0x3f80",cost=5); s.held[0]=o0
            c['X']=E16; c['Z']=E8
        for jp in range(8):
            je=16*nh+2*jp
            if je==0: s.pack(P,1,c['Z'],False); s.wr2(P,0)
            elif je==2: s.mul(P,'Z',c['Z'],E16); s.pack(P,2,c['X'],False); s.pack(P,3,c['Z'],False); s.wr2(P,2)
            else:
                s.mul(P,'X',c['X'],E16); s.mul(P,'Z',c['Z'],E16)
                s.pack(P,je&15,c['X'],False); s.pack(P,(je&15)+1,c['Z'],False); s.wr2(P,je&15)
    def readB(s,P,nh):
        for ks in range(4):
            b=KBF+ks*4
            P.l(f"ds_read_b128 v[{b}:{b+3}], v{KRA} offset:{64*ks}",('kb',s.g,nh),cost=6)
    def mfma(s,P,nh):
        P.wl(('kb',s.g,nh))
        P.lock(); P.atom("s_setprio 1")
        for ks in range(4):
            for mt in range(2):
                a=KAF+(mt*4+ks)*4; b=KBF+ks*4; dd=KD+(mt*2+nh)*4
                P.i(f"v_mfma_f32_16x16x32_bf16 v[{dd}:{dd+3}], v[{a}:{a+3}], v[{b}:{b+3}], v[{dd}:{dd+3}]",cost=17)
        P.atom("s_setprio 0"); P.unlock()
def kgen_groups(P,pkg0='rows',tailpk=False):
    G=[KG(g,False) for g in range(3)]
    G[0].pk = pkg0 in('rows','all','two')
    G[0].setup(P); G[0].rows(P)
    G[0].pk = pkg0 in('all','two')
    G[1].pk = pkg0=='two'
    if pkg0 in('rows','none'): P.it.append(('MARK',0,0))
    for g in range(3):
        k=G[g]
        k.readA(P)
        if g==2 and tailpk:
            P.it.append(('MUST',9,0)); P.it.append(('MARK',10,0)); k.pk=True
        k.cols(P,0); k.readB(P,0); k.cols(P,1)
        k.mfma(P,0); k.readB(P,1)
        if g<2:
            if (g==0 and pkg0=='all') or (g==1 and pkg0=='two'):
                k.mfma(P,1); P.it.append(('MARK',0,0)); G[g+1].setup(P); G[g+1].rows(P)
            else:
                G[g+1].setup(P); k.mfma(P,1); G[g+1].rows(P)
        else: k.mfma(P,1)
def kgen_out(P,S,lane,srd,flags="",tolds=False):
    t=KV
    P.lock()
    P.i(f"""
    s_nop 7
    v_and_b32 v{t}, 15, v{lane}
    v_lshrrev_b32 v{t+1}, 4, v{lane}
    v_lshlrev_b32 v{t+2}, 3, v{t}              ; 8jj
    v_cmp_eq_u32 vcc, 1, v{t+1}
    v_add_u32 v{t+3}, 4, v{t+2}
    s_nop 0
    v_cndmask_b32 v{t+2}, v{t+2}, v{t+3}, vcc
    v_mov_b32 v{t+4}, 128
    v_cmp_eq_u32 vcc, 2, v{t+1}
    v_lshlrev_b32 v{t+3}, 2, v{t}
    v_add_u32 v{t+3}, 256, v{t+3}
    v_cndmask_b32 v{t+2}, v{t+2}, v{t+3}, vcc
    v_cndmask_b32 v{t+4}, v{t+4}, 64, vcc
    v_cmp_eq_u32 vcc, 3, v{t+1}
    v_lshlrev_b32 v{t+3}, 1, v{t}
    v_add_u32 v{t+3}, 384, v{t+3}
    v_cndmask_b32 v{t+2}, v{t+2}, v{t+3}, vcc
    v_cndmask_b32 v{t+4}, v{t+4}, 32, vcc
    """)
    P.i(f"""
    v_mov_b32 v{t+5}, 2
    v_mov_b32 v{t+7}, 64
    v_cndmask_b32 v{t+5}, v{t+5}, v{t+7}, vcc
    v_lshlrev_b32 v{t+2}, 2, v{t+2}
    v_add_u32 v{t+2}, s{S['kb']}, v{t+2}       ; addr i=0 (i=1: +4)
    v_lshl_add_u32 v{t+3}, v{t+5}, 2, v{t+2}   ; addr i=2 (i=3: +4)
    v_lshl_add_u32 v{t+6}, v{t+4}, 2, v{t+2}   ; nh=1
    v_lshl_add_u32 v{t+7}, v{t+4}, 2, v{t+3}
    v_lshlrev_b32 v{t+8}, 2, v{t}
    v_add_u32 v{t+8}, s{S['kb']}, v{t+8}
    """)
    P.unlock()
    for nh in range(2):
        a0,a2=(t+2,t+3) if nh==0 else (t+6,t+7)
        dd=KD+nh*4
        P.l(f"ds_write_b32 v{a0}, v{dd}"); P.l(f"ds_write_b32 v{a0}, v{dd+1} offset:4")
        P.l(f"ds_write_b32 v{a2}, v{dd+2}"); P.l(f"ds_write_b32 v{a2}, v{dd+3} offset:4")
    sv=S['sv']
    P.lock()
    P.atom(f"s_mov_b64 s[{sv}:{sv+1}], exec\ns_mov_b64 exec, 0xffff")
    for nh in range(2):
        dd=KD+8+nh*4
        for i in range(4): P.l(f"ds_write_b32 v{t+8}, v{dd+i} offset:{4*(512+32*i+16*nh)}")
    P.atom(f"s_mov_b64 exec, 0x10000")
    P.l(f"ds_write_b32 v{t+8}, v{KD+8} offset:{4*640}")
    P.atom(f"s_mov_b64 exec, s[{sv}:{sv+1}]")
    P.unlock()
    if tolds:
        P.wl(); return
    P.i(f"v_lshlrev_b32 v{t+9}, 4, v{lane}\nv_add_u32 v{t+10}, s{S['kb']}, v{t+9}")
    P.wl()
    for i in range(3): P.l(f"ds_read_b128 v[{KAF+4*i}:{KAF+4*i+3}], v{t+10} offset:{1024*i}",'ko')
    P.i(f"s_mul_i32 s{S['k0']}, s{S['ch']}, {KTS*4}\ns_add_u32 s{S['k0']}, s{S['k0']}, {KTG}")
    P.wl('ko')
    for i in range(3): P.vs(f"buffer_store_dwordx4 v[{KAF+4*i}:{KAF+4*i+3}], v{t+9}, s[{srd}:{srd+3}], s{S['k0']} offen offset:{1024*i} {flags}")
```

```python
import sys, os
from g32lib import *
from kgenlib import *
from htasks import *
import conv3lib as CV
from asmlib import KMAIN
DIAG=bool(os.environ.get('DIAG'))
E=lambda k,d: int(os.environ.get(k,d))
S=dict(x=20,j=21,rb=22,cb=23,hw=24,w=25,wf=26,wt=27,t0=28,t1=29,sx=30,sw=31,mx=32,mw=33,sl=34,rot=35,
       srdx=8,srd1=12,srd3=16,hb=60,ho=61,wg=2,
       ch=88,kb=89,k0=90,k1=91,sv=92,h0=94,h1=95,h2=96,h3=97,lb=98,u=99,m48=100,nch=101,
       sA=40,sI=44,sR=48,sC=52,sD=56,fst=72,fcs=73,db=3,spin=82,lnb=83)
WS=36
KB0=HSCR
LB_L=HSCR+3*KSCR
LB_W=HSCR+2*KSCR
LCNT=LB_L+11008
LST=LCNT+64
LDS_S3=LCNT+2816
WPF=40960; WPFW=20480
ATL=LB_L; ATRS=136
HLANE=11
END="Lmain_end"
class St:
    def __init__(s,regs): s.regs=list(regs); s.used={}
    def __call__(s,A,idx,rt=False):
        if not DIAG: return
        if os.environ.get('GDIAG')=='rt':
            if idx not in (1,3,5,6,8,11,32): return
            rt=True
        if idx in s.used or not s.regs: return
        r=s.regs.pop(0); s.used[idx]=r
        A(f"{'s_memrealtime' if rt else 's_memtime'} s[{r}:{r+1}]")
    def dump(s,A):
        if not DIAG: return
        A(f"s_waitcnt vmcnt(0) lgkmcnt(0)\ns_lshl_b32 s27, s2, 11\ns_lshl_b32 s28, s25, 8\ns_add_u32 s27, s27, s28\ns_add_u32 s27, s27, {STAMP}\nv_mov_b32 v9, 0\ns_mov_b64 exec, 1")
        for idx,r in s.used.items():
            A(f"v_mov_b32 v10, s{r}\nbuffer_store_dword v10, v9, s[36:39], s27 offen offset:{4*idx}")
def mark(P,st): P.it.append(('MARK',st,0))
def must(P,st): P.it.append(('MUST',st,0))
def h_schedule(A,P,budget,pre,sv,which=range(10),hook=None,emref=None):
    Em=Emit(A)
    if emref is not None: emref[0]=Em
    items=list(P.it); pos=[0]; locked=[0]
    def run_until(cost,window):
        c=0
        while pos[0]<len(items):
            x=items[pos[0]]
            if x[0]=='MARK':
                if x[1]>window: return
                pos[0]+=1; continue
            if x[0]=='MUST': pos[0]+=1; continue
            if x[0]=='LOCK': locked[0]=x[1]; pos[0]+=1; continue
            force=any(y[0]=='MUST' and y[1]<=window for y in items[pos[0]:])
            if c>=cost and not locked[0] and not force: return
            Em.item(x); c+=x[2]; pos[0]+=1
    run_until(pre,-1)
    for st in range(NST):
        if st in which: sv(A,16+st)
        A("s_barrier")
        if hook and st in hook: hook[st]()
        run_until(budget,st)
    return Em,items[pos[0]:]
def g2_phase(A,stamp):
    ACC2=0; WR_=80; HR=160; TT=208; MS=228
    VL=MS; VLN=MS+3; VT=MS+4
    lane=VLANE
    A(f"""
    s_waitcnt vmcnt(0)
    v_mov_b32 v{VT0}, {LCNT}
    v_mov_b32 v{VT0+1}, 1
    s_mov_b64 s[58:59], exec
    s_mov_b64 exec, 1
    ds_add_rtn_u32 v{VT0+2}, v{VT0}, v{VT0+1}
    s_waitcnt lgkmcnt(0)
    v_readfirstlane_b32 s28, v{VT0+2}
    s_nop 3
    s_cmp_eq_u32 s28, 3
    s_cbranch_scc0 Lnopubh
    s_lshl_b32 s28, s22, 4
    s_add_u32 s28, s28, s23
    s_lshl_b32 s28, s28, 7
    s_add_u32 s28, s28, {FH}
    v_mov_b32 v{VT0}, 0
    buffer_store_dword v{VT0+1}, v{VT0}, s[36:39], s28 offen sc1
    Lnopubh:
    s_mov_b64 exec, s[58:59]
    """)
    stamp(A,5)
    A(f"""
    s_lshr_b32 s49, s20, 1
    s_lshl_b32 s49, s49, 3
    s_and_b32 s28, s21, 7
    s_add_u32 s49, s49, s28
    v_mov_b32 v{VLN}, v{lane}
    v_lshlrev_b32 v{VL}, 4, v{lane}
    v_add_u32 v{VL+1}, 4096, v{VL}
    v_add_u32 v{VL+2}, 8192, v{VL}
    s_mul_i32 s26, s25, 12
    """)
    for dt in range(5):
        A(f"s_mul_i32 s27, s3, 5\ns_add_u32 s27, s27, {dt}\ns_mul_i32 s27, s27, 48\ns_add_u32 s27, s27, s26\ns_lshl_b32 s27, s27, 10\ns_add_u32 s{44+dt}, s27, {W2F}")
    vm=[]
    def wreg(k,dt): return WR_+20*k+4*dt
    def hreg(s,nt): return HR+16*(s%3)+4*nt
    def wl(s,k,tag=None):
        va=VL+(s>>2); imm=1024*(s&3)
        for dt in range(5):
            A(f"buffer_load_dwordx4 v[{wreg(k,dt)}:{wreg(k,dt)+3}], v{va}, s[36:39], s{44+dt} offen offset:{imm} {os.environ.get('WSC','sc1')}"); vm.append(tag or ('w',s))
    def hl(s):
        va=VL+(s>>2); imm=1024*(s&3)
        for nt in range(4):
            A(f"buffer_load_dwordx4 v[{hreg(s,nt)}:{hreg(s,nt)+3}], v{va}, s[36:39], s{30+nt} offen offset:{imm} {os.environ.get('HSC','sc1')}"); vm.append(('h',s))
    def wait(*tags):
        idx=max(max(i for i,t in enumerate(vm) if t==tag) for tag in tags); A(f"s_waitcnt vmcnt({min(63,len(vm)-1-idx)})")
    for k in range(4): wl(4+k,k)
    A(f"s_mul_i32 s27, s25, {WPFW}\ns_add_u32 s27, s27, {WPF}\nv_add_u32 v{VT}, s27, v{VL}")
    for nt in range(4):
        A(f"s_lshl_b32 s27, s49, 2\ns_add_u32 s27, s27, {nt}\ns_mul_i32 s27, s27, 48\ns_add_u32 s27, s27, s26\ns_lshl_b32 s27, s27, 10\ns_add_u32 s{30+nt}, s27, {HF}")
    for k in range(4):
        wait(('w',4+k))
        for dt in range(5): A(f"ds_write_b128 v{VT}, v[{wreg(k,dt)}:{wreg(k,dt)+3}] offset:{(k*5+dt)*1024}")
    A("s_waitcnt lgkmcnt(0)")
    for k in range(4): wl(k,k)
    for i in range(80): A(f"v_mov_b32 v{ACC2+i}, 0")
    A(f"""
    v_and_b32 v{VT+1}, 3, v{VLN}
    v_lshlrev_b32 v{VT+1}, 7, v{VT+1}
    s_lshr_b32 s27, s49, 1
    s_lshl_b32 s27, s27, 11
    s_lshl_b32 s28, s25, 9            ; this wave's K quarter comes from column blocks 4w..4w+3
    s_add_u32 s27, s27, s28
    s_add_u32 s50, s27, {FH}
    buffer_load_dword v{VT+2}, v{VT+1}, s[36:39], s50 offen sc1
    s_waitcnt vmcnt(0)
    """)
    A(spin('h',f"buffer_load_dword v{VT+2}, v{VT+1}, s[36:39], s50 offen sc1",f"v_cmp_eq_u32 vcc, 1, v{VT+2}",S,END,sleep=1))
    stamp(A,6)
    vm.clear()
    for s in range(3): hl(s)
    lg=[]
    def tread(s,dt):
        A(f"ds_read_b128 v[{TT+4*dt}:{TT+4*dt+3}], v{VT} offset:{((s-4)*5+dt)*1024}"); lg.append((s,dt))
    def lwait(tag):
        idx=lg.index(tag); A(f"s_waitcnt lgkmcnt({len(lg)-1-idx})")
    PF=VT+4; assert PF%2==0
    XR=TT
    XA=VT+8; ATG=VT+9; ATA=VT+10; AS=WR_
    A(f"""
    v_and_b32 v{VT+3}, 31, v{VLN}
    v_lshlrev_b32 v{VT+3}, 7, v{VT+3}
    s_lshl_b32 s41, s3, 12
    s_add_u32 s41, s41, {FD}
    v_and_b32 v{VT+11}, 15, v{VLN}
    v_lshrrev_b32 v{VT+12}, 4, v{VLN}
    v_mul_u32_u24 v{VT+11}, 1280, v{VT+11}
    v_mul_u32_u24 v{VT+12}, 40, v{VT+12}
    v_add_u32 v{XA}, v{VT+11}, v{VT+12}
    s_lshl_b32 s27, s49, 6
    s_lshl_b32 s28, s25, 4
    s_add_u32 s27, s27, s28
    s_mul_i32 s27, s27, 1280
    s_mul_i32 s28, s3, 160
    s_add_u32 s40, s27, s28
    v_lshrrev_b32 v{VT+11}, 3, v{VLN}
    v_and_b32 v{VT+12}, 7, v{VLN}
    v_lshlrev_b32 v{ATG}, 12, v{VT+11}
    v_lshl_add_u32 v{ATG}, v{VT+12}, 4, v{ATG}
    v_mul_u32_u24 v{ATA}, {ATRS}, v{VT+11}
    v_lshl_add_u32 v{ATA}, v{VT+12}, 4, v{ATA}
    s_mul_i32 s27, s3, {80*4096}
    s_lshl_b32 s28, s49, 7
    s_add_u32 s27, s27, s28
    s_lshl_b32 s28, s25, 15
    s_add_u32 s27, s27, s28
    s_add_u32 s42, s27, {AT}
    s_mul_i32 s28, s25, {8*ATRS}
    s_add_u32 s43, s28, {ATL}
    v_add_u32 v{ATA}, s43, v{ATA}
    s_mov_b32 s51, 0
    """)
    def atloads(u):
        for i in range(3):
            if i<2: A(f"s_add_u32 s27, s42, {i*32*4096}\nbuffer_load_dwordx4 v[{AS+4*i}:{AS+4*i+3}], v{ATG}, s[36:39], s27 offen sc1")
            else: A(f"s_cmp_lt_u32 s25, 2\ns_cbranch_scc0 Lnoat{u}\ns_add_u32 s27, s42, {i*32*4096}\nbuffer_load_dwordx4 v[{AS+4*i}:{AS+4*i+3}], v{ATG}, s[36:39], s27 offen sc1\nLnoat{u}:")
    fdchk=f"v_and_b32 v{PF}, v{PF}, v{PF+1}\nv_and_b32 v{PF}, v{PF}, v{PF+2}\nv_cmp_eq_u32 vcc, 1, v{PF}"
    fdld=f"buffer_load_dwordx4 v[{PF}:{PF+3}], v{VT+3}, s[36:39], s41 offen sc1"
    pend=[]
    def one_h(s,nt):
        va=VL+(s>>2); imm=1024*(s&3)
        A(f"buffer_load_dwordx4 v[{hreg(s,nt)}:{hreg(s,nt)+3}], v{va}, s[36:39], s{30+nt} offen offset:{imm} {os.environ.get('HSC','sc1')}"); vm.append(('h',s))
    def one_w(s,k,dt):
        va=VL+(s>>2); imm=1024*(s&3)
        A(f"buffer_load_dwordx4 v[{wreg(k,dt)}:{wreg(k,dt)+3}], v{va}, s[36:39], s{44+dt} offen offset:{imm} {os.environ.get('WSC','sc1')}"); vm.append(('w',s))
    hq=[]; wq=[]
    def pump(n=1):
        for _ in range(n):
            if hq: f=hq.pop(0); f()
            elif wq: f=wq.pop(0); f()
    for s in range(12):
        tags=[('h',s)]+([('w',s)] if s>=8 else [])
        assert not any(True for f in hq if f.step<=s), "h load not issued in time"
        if s<=10: wait(*tags)
        if s==0: stamp(A,7)
        if os.environ.get('GDIAG')=='g2' and s in (1,2,3,4,6,8,10): stamp(A,40+s)
        lds=4<=s<8
        if lds:
            for dt in range(5):
                lwait((s,dt)); a_=TT+4*dt
                for nt in range(4):
                    a=ACC2+(nt*5+dt)*4
                    A(f"v_mfma_f32_16x16x32_bf16 v[{a}:{a+3}], v[{a_}:{a_+3}], v[{hreg(s,nt)}:{hreg(s,nt)+3}], v[{a}:{a+3}]")
                if s<7: tread(s+1,dt)
                pump()
            if s+3<12:
                for nt in range(4):
                    f=(lambda s_=s+3,nt_=nt: one_h(s_,nt_)); f.step=s+3; hq.append(f)
        else:
            for nt in range(4):
                for dt in range(5):
                    a=ACC2+(nt*5+dt)*4; a_=wreg(s%4,dt)
                    A(f"v_mfma_f32_16x16x32_bf16 v[{a}:{a+3}], v[{a_}:{a_+3}], v[{hreg(s,nt)}:{hreg(s,nt)+3}], v[{a}:{a+3}]")
                    if s==3 and nt==3: tread(4,dt)
                    if dt==1 and nt>0: pump()
                if s+3<12:
                    f=(lambda s_=s+3,nt_=nt: one_h(s_,nt_)); f.step=s+3; hq.append(f)
                pump()
            if s<4:
                for dt in range(5):
                    f=(lambda s_=8+s,k_=s,dt_=dt: one_w(s_,k_,dt_)); f.step=8+s; wq.append(f)
        if s==7:
            pump(len(hq)+len(wq))
        if s==8:
            pump(len(hq)+len(wq))
            A(fdld); vm.append(('p',0))
            A(f"buffer_load_dwordx4 v[{XR}:{XR+3}], v{XA}, s[8:11], s40 offen\nbuffer_load_dwordx4 v[{XR+4}:{XR+7}], v{XA}, s[8:11], s40 offen offset:16\nbuffer_load_dwordx2 v[{XR+8}:{XR+9}], v{XA}, s[8:11], s40 offen offset:32")
            vm.extend([('x',0)]*3)
        if s==10:
            wait(('p',0))
            A(fdchk+"\ns_nop 1\ns_cmp_eq_u64 vcc, exec\ns_cbranch_scc0 Lnotyet\ns_mov_b32 s51, 1")
            atloads('e')
            A("Lnotyet:")
    assert not hq and not wq
    stamp(A,8)
    FR=96
    A(f"s_cmp_eq_u32 s51, 1\ns_cbranch_scc1 Lhave\n{fdld}\ns_waitcnt vmcnt(0)")
    A(spin('d',fdld,fdchk,S,END,sleep=1))
    atloads('l')
    A("Lhave:")
    VA=ATA
    R0=FR
    A(f"v_add_u32 v{VL+1}, {WPF}, v{VL}\nv_add_u32 v{VL+2}, {WPF+49152}, v{VL}")
    for w in range(4):
        lab=A.label('w')
        if w<3: A(f"s_cmp_lg_u32 s25, {w}\ns_cbranch_scc1 {lab}")
        for nt in range(4):
            if nt==w: continue
            sl=nt if nt<w else nt-1
            for dt in range(5):
                a=ACC2+(nt*5+dt)*4
                off=w*WPFW+(sl*5+dt)*1024
                va,o=(VL+1,off) if off<65536-1024 else (VL+2,off-49152)
                if w==0 and nt==1 and dt==0: pass
                A(f"ds_write_b128 v{va}, v[{a}:{a+3}] offset:{o}")
        A("s_waitcnt vmcnt(0)")
        for i in range(3):
            if i==2 and w>=2: continue
            for h in range(2): A(f"ds_write_b64 v{VA}, v[{AS+4*i+2*h}:{AS+4*i+2*h+1}] offset:{i*32*ATRS+8*h}")
        A("s_waitcnt lgkmcnt(0)\ns_barrier")
        kk=0
        for src in range(4):
            if src==w: continue
            sl=w if w<src else w-1
            for dt in range(5):
                off=src*WPFW+(sl*5+dt)*1024
                va,o=(VL+1,off) if off<65536-1024 else (VL+2,off-49152)
                A(f"ds_read_b128 v[{R0+(kk*5+dt)*4}:{R0+(kk*5+dt)*4+3}], v{va} offset:{o}")
            kk+=1
        if w:
            for r in range(20): A(f"v_mov_b32 v{ACC2+r}, v{ACC2+w*20+r}")
        if w<3: A(f"s_branch Lred\n{lab}:")
    A("Lred:")
    A(f"""
    v_lshrrev_b32 v{VT}, 4, v{VLN}
    v_mul_u32_u24 v{VT}, 20, v{VT}
    v_bfe_u32 v{VT+1}, v{VLN}, 2, 2
    v_add_u32 v{VT}, v{VT}, v{VT+1}
    v_mul_u32_u24 v{VT}, {ATRS}, v{VT}
    v_and_b32 v{VT+1}, 3, v{VLN}
    v_lshl_add_u32 v{VT}, v{VT+1}, 3, v{VT}
    s_lshl_b32 s27, s25, 5
    s_add_u32 s27, s27, {ATL}
    v_add_u32 v{VT}, s27, v{VT}
    """)
    AR=R0+60
    for dt in range(5): A(f"ds_read_b64_tr_b16 v[{AR+2*dt}:{AR+2*dt+1}], v{VT} offset:{4*dt*ATRS}")
    A(f"s_waitcnt lgkmcnt(5)")
    for src in range(3):
        for r in range(0,20,2): A(f"v_pk_add_f32 v[{ACC2+r}:{ACC2+r+1}], v[{ACC2+r}:{ACC2+r+1}], v[{R0+src*20+r}:{R0+src*20+r+1}]")
    stamp(A,9)
    A("s_waitcnt lgkmcnt(0)")
    W=R0
    for e2 in range(10):
        x=XR+e2; a=AR+e2; b0=ACC2+2*e2; w=W+4*(e2%4)
        A(f"""
        v_lshlrev_b32 v{w}, 16, v{x}
        v_and_b32 v{w+1}, 0xffff0000, v{x}
        v_lshlrev_b32 v{w+2}, 16, v{a}
        v_and_b32 v{w+3}, 0xffff0000, v{a}
        v_pk_add_f32 v[{b0}:{b0+1}], v[{b0}:{b0+1}], v[{w}:{w+1}]
        v_pk_add_f32 v[{b0}:{b0+1}], v[{b0}:{b0+1}], v[{w+2}:{w+3}]
        v_cvt_pk_bf16_f32 v{W+20+e2}, v{b0}, v{b0+1}
        """)
    A(f"buffer_store_dwordx4 v[{W+20}:{W+23}], v{XA}, s[52:55], s40 offen\nbuffer_store_dwordx4 v[{W+24}:{W+27}], v{XA}, s[52:55], s40 offen offset:16\nbuffer_store_dwordx2 v[{W+28}:{W+29}], v{XA}, s[52:55], s40 offen offset:32")
def build(A):
    n=KMAIN; A.begin(n)
    A("s_cmp_ge_u32 s2, 256\ns_cbranch_scc1 Lmain_end")
    A(f"""
    s_load_dwordx2 s[4:5], s[0:1], {ARG['u']}
    s_load_dwordx4 s[76:79], s[0:1], {ARG['w1']}
    s_load_dwordx4 s[84:87], s[0:1], {ARG['dbg']}
    s_load_dwordx8 s[64:71], s[0:1], {ARG['logA']}
    s_load_dwordx2 s[74:75], s[0:1], {ARG['logdt']}
    s_load_dwordx4 s[44:47], s[0:1], {ARG['w2']}      ; w2, out
    s_load_dwordx2 s[18:19], s[0:1], {ARG['Dskip']}
    s_and_b32 s20, s2, 7          ; x
    s_lshr_b32 s21, s2, 3         ; j
    s_and_b32 s22, s20, 1
    s_lshl_b32 s22, s22, 3
    s_and_b32 s23, s21, 7
    s_add_u32 s22, s22, s23       ; rb
    s_lshr_b32 s23, s20, 1
    s_lshl_b32 s23, s23, 2
    s_lshr_b32 s24, s21, 3
    s_add_u32 s23, s23, s24       ; cb
    s_and_b32 s3, s20, 1
    s_lshl_b32 s3, s3, 2
    s_add_u32 s3, s3, s24
    v_lshrrev_b32 v1, 6, v0
    s_cmp_ge_u32 s22, 10
    s_cselect_b32 s35, 10, 0
    v_readfirstlane_b32 s25, v1   ; wave
    s_sub_u32 s35, s22, s35       ; rot
    s_nop 2
    s_and_b32 s26, s25, 1         ; wf
    s_bfe_u32 s27, s25, 0x10001   ; wt
    s_and_b32 s24, s25, 3         ; hw
    s_cmp_ge_u32 s25, 4
    s_cbranch_scc1 Lhrole
    """)
    GLN=E('GLN',0)
    g_dma_addr(A,S)
    if GLN: g_ln_loads(A,S)
    A("s_waitcnt lgkmcnt(0)")
    A.srd(8,4,SIZE['u']); A.srd(12,76,SIZE['w1']); A.srd(16,78,SIZE['w3']); A.srd(WS,86,SIZE['ws']); A.srd(52,46,SIZE['out'])
    stamp=St(list(range(64,76,2))+[80]+list(range(84,102,2))+[56,42+0])
    stamp.regs=[r for r in stamp.regs if r not in (42,82)]
    stamp(A,0); stamp(A,1,True)
    PRE=E('GPRE',2)
    if GLN: g_ln_issue(A,S)
    for l in g_dma(S,0): A(l)
    g_lds_addr(A,S)
    for l in g_dma(S,1): A(l)
    A(f"s_cmp_eq_u32 s25, 0\ns_cbranch_scc0 Lnoci\nv_mov_b32 v{VT0}, {LCNT}\nv_mov_b32 v{VT0+1}, 0\nds_write_b32 v{VT0}, v{VT0+1}\nLnoci:")
    for i in range(96): A(f"v_mov_b32 v{ACC+i}, 0")
    if GLN:
        A("s_waitcnt vmcnt(20)")
        g_ln_compute(A,S,LB_L,LNRS,LST)
    def gstamp(st):
        if os.environ.get('GDIAG')=='win':
            if not isinstance(st,tuple): stamp(A,32+st)
            elif st[1] in (1,2,3,4,5): stamp(A,48+st[1])
        elif os.environ.get('GDIAG')=='g2': pass
        elif os.environ.get('GDIAG')=='rt':
            if st==0: stamp(A,32)
        elif not isinstance(st,tuple) and st in (0,3,6,9): stamp(A,32+st)
    g_loop(A,S,gstamp if DIAG else None,PRE=PRE)
    stamp(A,2)
    A("s_barrier")
    stamp(A,3)
    g_epilogue(A,S,WS,HF,'sc1')
    stamp(A,4)
    g2_phase(A,stamp)
    stamp(A,10); stamp(A,11,True)
    stamp.dump(A)
    A("s_branch Lmain_end")
    A("Lhrole:")
    A(f"v_and_b32 v{HLANE}, 63, v0")
    A(f"""
    s_mul_i32 s28, s21, 3
    s_lshl_b32 s29, s21, 1
    s_add_u32 s29, s29, 16
    s_cmp_lt_u32 s21, 16
    s_cselect_b32 s28, s28, s29
    s_cselect_b32 s101, 3, 2          ; nch
    s_mul_i32 s29, s20, 80
    s_add_u32 s28, s28, s29
    s_add_u32 s88, s28, s24           ; channel
    s_mul_i32 s89, s24, {KSCR}
    s_add_u32 s89, s89, {KB0}
    s_waitcnt lgkmcnt(0)
    s_mov_b32 s80, s44
    s_mov_b32 s81, s45
    """)
    A.srd(8,4,SIZE['u']); A.srd(WS,86,SIZE['ws'])
    A("s_cmp_eq_u32 s24, 3\ns_cbranch_scc1 Lrole_l\ns_cmp_lt_u32 s24, s101\ns_cbranch_scc0 Lrole_w")
    A.srd(40,64,245760); A.srd(44,66,245760); A.srd(48,68,245760); A.srd(52,70,245760); A.srd(56,74,1280); A.srd(12,18,SIZE['Dskip'])
    stamp=St([64,66,68,70,74,76,78,80,60,62,4,6]); stamp(A,0)
    SK=dict(S); SK['kb']=89
    P=Prog(); mark(P,-1); P.atom('s_setprio 3'); kgen_loads(P,S,HLANE,KV)
    P.i(f"s_lshl_b32 s29, s88, 1\nv_mov_b32 v30, s29"); P.vl("buffer_load_ushort v29, v30, s[12:15], 0 offen",'kp2',cost=30); P.atom('s_setprio 0')
    kgen_setup(P,S,HLANE); kgen_dt(P,S); P.wv('kp2'); kgen_groups(P,os.environ.get('PKG0','rows'),tailpk=bool(E('TAILPK',1)))
    SO=dict(S); SO['kb']=73
    P.i(f"s_add_u32 s73, s89, 16\nv_mov_b32 v28, s89\nv_mov_b32 v27, 0")
    kgen_out(P,SO,HLANE,WS,"",tolds=False) if False else None
    Pout=Prog(); Pout.l("ds_write_b32 v28, v27 offset:12"); kgen_out(Pout,SO,HLANE,WS,"",tolds=True)
    P.ext(Pout)
    P=schedule(P)
    if os.environ.get('KNOWR'): P.it=[x if not (x[0]=='L' and 'ds_write' in x[1]) else ('I','s_nop 0',4) for x in P.it]
    if os.environ.get('KNOVALU'): P.it=[x for x in P.it if not (x[0]=='I' and x[1].startswith('v_') and 'mfma' not in x[1] and 'readfirst' not in x[1])]
    SC=dict(base=30,ch=88,srd=36,t0=28,t1=29,sv=92,m0=52,m1=54,m2=56,dsk=33,kt=73,lane=HLANE)
    def w8hook():
        A(f"v_lshlrev_b32 v26, 4, v{HLANE}\ns_mov_b32 s31, {FX}\nbuffer_load_dwordx4 v[20:23], v26, s[36:39], s31 offen sc1")
        Em_[0].vm.append(('L','fx'))
    def w9hook():
        Em_[0].wait_vm('fx')
        A(spin('x',"buffer_load_dwordx4 v[20:23], v26, s[36:39], s31 offen sc1","v_and_b32 v24, v20, v21\nv_and_b32 v25, v22, v23\nv_and_b32 v24, v24, v25\nv_cmp_eq_u32 vcc, 1, v24",S,END))
        A(f"s_mul_i32 s30, s24, {CV.CW3}")
        CV.u_loads(A,SC)
        for q in range(4): Em_[0].vm.append(('L','u'))
    Em_=[None]
    Em,rest=h_schedule(A,P,E('KB',850),E('PREK',900),stamp,(0,3,6,9),hook={8:w8hook,9:w9hook},emref=Em_)
    A("s_barrier")
    A(f"s_setprio {E('XPRIO',2)}")
    stamp(A,2)
    for x in rest: Em.item(x)
    print("K role: total",sum(x[2] for x in P.it),"left after loop",sum(x[2] for x in rest))
    stamp(A,3)
    A("s_waitcnt vmcnt(0)\nv_lshlrev_b32 v29, 16, v29\ns_nop 0\nv_readfirstlane_b32 s33, v29")
    CV.u_store(A,SC)
    CV.conv_setup(A,SC)
    A("s_waitcnt lgkmcnt(0)")
    CV.conv_expand(A,SC)
    A("s_waitcnt lgkmcnt(0)")
    stamp(A,4)
    A(f"s_setprio {E('CPRIO',1)}")
    CV.conv_main(A)
    A("s_nop 7")
    stamp(A,5)
    CV.conv_epilogue(A,SC,"sc1")
    A(f"""
    s_waitcnt vmcnt(0)
    s_lshl_b32 s28, s20, 5
    s_add_u32 s28, s28, s21
    s_lshl_b32 s28, s28, 7
    s_lshl_b32 s29, s24, 2
    s_add_u32 s28, s28, s29
    s_add_u32 s28, s28, {FD}
    v_mov_b32 v{CV.CTMP}, 0
    v_mov_b32 v{CV.CTMP+1}, 1
    s_mov_b64 s[92:93], exec
    s_mov_b64 exec, 1
    buffer_store_dword v{CV.CTMP+1}, v{CV.CTMP}, s[36:39], s28 offen sc1
    s_mov_b64 exec, s[92:93]
    """)
    stamp(A,6)
    stamp.dump(A)
    A("s_branch Lmain_end")
    A("Lrole_w:")
    A.srd(40,80,SIZE['w2'])
    A(f"s_sub_u32 s99, s21, 16\ns_lshl_b32 s99, s99, 3\ns_add_u32 s99, s99, s20\ns_mov_b32 s100, {magic(48)}\ns_mov_b32 s98, {LB_W}")
    SW=dict(S); SW['wo']=88
    P=Prog(); mark(P,-1); w2_setup(P,SW,HLANE); mark(P,0); w2b_loads(P,SW,40)
    for k in range(3):
        mark(P,k+1); w2b_unit(P,SW,k,HLANE,WS,"sc1")
    mark(P,5); s3_set_fw(P,SW,WS,WF); must(P,5)
    stamp=St([64,66,68,70,74,76,78,84,86,60,62]); Em,rest=h_schedule(A,P,800,600,stamp)
    assert not [x for x in rest if x[0] not in('MARK','MUST','LOCK')]
    A("s_barrier")
    stamp.dump(A)
    A("s_branch Lmain_end")
    A("Lrole_l:")
    A.srd(40,84,256)
    A(f"s_mov_b32 s98, {LB_L}")
    LP=None
    if E('GLN',0):
        P=Prog(); mark(P,-1); s3_clear(P,S,WS); cs_setup(P,S,HLANE)
        mark(P,0); fl_cleared(P,S,40); cs_reads(P,S,0); cs_mfma(P,S,0); cs_reads(P,S,1); P.wl(('cs',1)); must(P,0)
        mark(P,1); cs_mfma(P,S,1); ln3_xt_reads(P,S,HLANE); ln3_st(P,S,HLANE,WS,"sc1",LST); cs_store(P,S,HLANE,WS,"sc1"); must(P,1)
        mark(P,2); s3_set_fl(P,S,WS,'pub1',0); ln3_xt_stores(P,S,HLANE,WS,"sc1")
        mark(P,5); s3_set_fl(P,S,WS,'pub2',FX-FL)
        mark(P,6); s3_ga_clr_load(P,S,HLANE,40)
        mark(P,7); s3_ga_clr_check(P,S,HLANE,40,WS,END); must(P,7)
        mark(P,8); s3_ga_flag_check(P,S,HLANE,WS,END)
        mark(P,9); ga_finish(P,S,HLANE); must(P,9)
    else:
        P=Prog(); mark(P,-1); P.atom("s_setprio 3"); ln2_loads(P,S,HLANE); P.atom("s_setprio 0"); s3_clear(P,S,WS); cs_setup(P,S,HLANE)
        mark(P,0); fl_cleared(P,S,40); cs_reads(P,S,0); cs_mfma(P,S,0); cs_reads(P,S,1); P.wl(('cs',1)); must(P,0)
        cs_mfma(P,S,1); cs_store(P,S,HLANE,WS,"sc1")
        ln2_stats(P,S,HLANE,WS,"sc1")
        Pn=Prog(); ln2_norm(Pn,S,HLANE,WS,"sc1")
        n1=len(Pn.it)//4
        P.it+=Pn.it[:n1]
        mark(P,3); s3_set_fl(P,S,WS,'pub1',0)
        P.it+=Pn.it[n1:]
        mark(P,5); s3_ga_clr_load(P,S,HLANE,40)
        mark(P,6); s3_ga_clr_check(P,S,HLANE,40,WS,END); must(P,7)
        mark(P,7); s3_set_fl(P,S,WS,'pub2',FX-FL); s3_ga_flag_check(P,S,HLANE,WS,END)
        mark(P,9); ga_finish(P,S,HLANE); must(P,9)
    P=schedule(P)
    stamp=St([44,46,48,50,52,54,56,58,60,62,4]); stamp(A,0)
    if LP: stamp.used.update({2:64,3:66,4:68,5:70,6:74,7:76})
    Em,rest=h_schedule(A,P,E('LB',800),E('PREL',2500),stamp)
    print("L role: total",sum(x[2] for x in P.it))
    assert not [x for x in rest if x[0] not in('MARK','MUST','LOCK')]
    A("s_barrier")
    stamp.dump(A)
    A("Lmain_end:")
    A.end(n,256); A.launch(n,256,512,lds=LDS_S3)
if __name__=='__main__':
    A=Asm(); build(A)
    print("LDS",LDS_S3)
    open(sys.argv[1],'w').write(A.text("S3: fused single launch",single=True))
```

```python
import sys, os
from g32lib import *
from kgenlib import *
from htasks import *
import conv3lib as CV
from asmlib import KMAIN
DIAG=bool(os.environ.get('DIAG'))
E=lambda k,d: int(os.environ.get(k,d))
S=dict(x=20,j=21,rb=22,cb=23,hw=24,w=25,wf=26,wt=27,t0=28,t1=29,sx=30,sw=31,mx=32,mw=33,sl=34,rot=35,
       srdx=8,srd1=12,srd3=16,hb=60,ho=61,wg=2,
       ch=88,kb=89,k0=90,k1=91,sv=92,h0=94,h1=95,h2=96,h3=97,lb=98,u=99,m48=100,nch=101,
       sA=40,sI=44,sR=48,sC=52,sD=56,fst=72,fcs=73,db=3,spin=82,lnb=83)
WS=36
KB0=HSCR
LB_L=HSCR+3*KSCR
LB_W=HSCR+2*KSCR
LCNT=LB_L+11008
LST=LCNT+64
LDS_S3=LCNT+2816
WPF=40960; WPFW=20480
ATL=LB_L; ATRS=136
HLANE=11
END="Lmain_end"
class St:
    def __init__(s,regs): s.regs=list(regs); s.used={}
    def __call__(s,A,idx,rt=False):
        if not DIAG: return
        if os.environ.get('GDIAG')=='rt':
            if idx not in (1,3,5,6,8,11,32): return
            rt=True
        if idx in s.used or not s.regs: return
        r=s.regs.pop(0); s.used[idx]=r
        A(f"{'s_memrealtime' if rt else 's_memtime'} s[{r}:{r+1}]")
    def dump(s,A):
        if not DIAG: return
        A(f"s_waitcnt vmcnt(0) lgkmcnt(0)\ns_lshl_b32 s27, s2, 11\ns_lshl_b32 s28, s25, 8\ns_add_u32 s27, s27, s28\ns_add_u32 s27, s27, {STAMP}\nv_mov_b32 v9, 0\ns_mov_b64 exec, 1")
        for idx,r in s.used.items():
            A(f"v_mov_b32 v10, s{r}\nbuffer_store_dword v10, v9, s[36:39], s27 offen offset:{4*idx}")
def mark(P,st): P.it.append(('MARK',st,0))
def must(P,st): P.it.append(('MUST',st,0))
def h_schedule(A,P,budget,pre,sv,which=range(10),hook=None,emref=None):
    Em=Emit(A)
    if emref is not None: emref[0]=Em
    items=list(P.it); pos=[0]; locked=[0]
    def run_until(cost,window):
        c=0
        while pos[0]<len(items):
            x=items[pos[0]]
            if x[0]=='MARK':
                if x[1]>window: return
                pos[0]+=1; continue
            if x[0]=='MUST': pos[0]+=1; continue
            if x[0]=='LOCK': locked[0]=x[1]; pos[0]+=1; continue
            force=any(y[0]=='MUST' and y[1]<=window for y in items[pos[0]:])
            if c>=cost and not locked[0] and not force: return
            Em.item(x); c+=x[2]; pos[0]+=1
    run_until(pre,-1)
    for st in range(NST):
        if st in which: sv(A,16+st)
        A("s_barrier")
        if hook and st in hook: hook[st]()
        run_until(budget,st)
    return Em,items[pos[0]:]
def g2_phase(A,stamp):
    ACC2=0; WR_=80; HR=160; TT=208; MS=228
    VL=MS; VLN=MS+3; VT=MS+4
    lane=VLANE
    A(f"""
    s_waitcnt vmcnt(0)
    v_mov_b32 v{VT0}, {LCNT}
    v_mov_b32 v{VT0+1}, 1
    s_mov_b64 s[58:59], exec
    s_mov_b64 exec, 1
    ds_add_rtn_u32 v{VT0+2}, v{VT0}, v{VT0+1}
    s_waitcnt lgkmcnt(0)
    v_readfirstlane_b32 s28, v{VT0+2}
    s_nop 3
    s_cmp_eq_u32 s28, 3
    s_cbranch_scc0 Lnopubh
    s_lshl_b32 s28, s22, 4
    s_add_u32 s28, s28, s23
    s_lshl_b32 s28, s28, 7
    s_add_u32 s28, s28, {FH}
    v_mov_b32 v{VT0}, 0
    buffer_store_dword v{VT0+1}, v{VT0}, s[36:39], s28 offen sc1
    Lnopubh:
    s_mov_b64 exec, s[58:59]
    """)
    stamp(A,5)
    A(f"""
    s_lshr_b32 s49, s20, 1
    s_lshl_b32 s49, s49, 3
    s_and_b32 s28, s21, 7
    s_add_u32 s49, s49, s28
    v_mov_b32 v{VLN}, v{lane}
    v_lshlrev_b32 v{VL}, 4, v{lane}
    v_add_u32 v{VL+1}, 4096, v{VL}
    v_add_u32 v{VL+2}, 8192, v{VL}
    s_mul_i32 s26, s25, 12
    """)
    for dt in range(5):
        A(f"s_mul_i32 s27, s3, 5\ns_add_u32 s27, s27, {dt}\ns_mul_i32 s27, s27, 48\ns_add_u32 s27, s27, s26\ns_lshl_b32 s27, s27, 10\ns_add_u32 s{44+dt}, s27, {W2F}")
    vm=[]
    def wreg(k,dt): return WR_+20*k+4*dt
    def hreg(s,nt): return HR+16*(s%3)+4*nt
    def wl(s,k,tag=None):
        va=VL+(s>>2); imm=1024*(s&3)
        for dt in range(5):
            A(f"buffer_load_dwordx4 v[{wreg(k,dt)}:{wreg(k,dt)+3}], v{va}, s[36:39], s{44+dt} offen offset:{imm} {os.environ.get('WSC','sc1')}"); vm.append(tag or ('w',s))
    def hl(s):
        va=VL+(s>>2); imm=1024*(s&3)
        for nt in range(4):
            A(f"buffer_load_dwordx4 v[{hreg(s,nt)}:{hreg(s,nt)+3}], v{va}, s[36:39], s{30+nt} offen offset:{imm} {os.environ.get('HSC','sc1')}"); vm.append(('h',s))
    def wait(*tags):
        idx=max(max(i for i,t in enumerate(vm) if t==tag) for tag in tags); A(f"s_waitcnt vmcnt({min(63,len(vm)-1-idx)})")
    for k in range(4): wl(4+k,k)
    A(f"s_mul_i32 s27, s25, {WPFW}\ns_add_u32 s27, s27, {WPF}\nv_add_u32 v{VT}, s27, v{VL}")
    for nt in range(4):
        A(f"s_lshl_b32 s27, s49, 2\ns_add_u32 s27, s27, {nt}\ns_mul_i32 s27, s27, 48\ns_add_u32 s27, s27, s26\ns_lshl_b32 s27, s27, 10\ns_add_u32 s{30+nt}, s27, {HF}")
    for k in range(4):
        wait(('w',4+k))
        for dt in range(5): A(f"ds_write_b128 v{VT}, v[{wreg(k,dt)}:{wreg(k,dt)+3}] offset:{(k*5+dt)*1024}")
    A("s_waitcnt lgkmcnt(0)")
    for k in range(4): wl(k,k)
    for i in range(80): A(f"v_mov_b32 v{ACC2+i}, 0")
    A(f"""
    v_and_b32 v{VT+1}, 3, v{VLN}
    v_lshlrev_b32 v{VT+1}, 7, v{VT+1}
    s_lshr_b32 s27, s49, 1
    s_lshl_b32 s27, s27, 11
    s_lshl_b32 s28, s25, 9            ; this wave's K quarter comes from column blocks 4w..4w+3
    s_add_u32 s27, s27, s28
    s_add_u32 s50, s27, {FH}
    buffer_load_dword v{VT+2}, v{VT+1}, s[36:39], s50 offen sc1
    s_waitcnt vmcnt(0)
    """)
    A(spin('h',f"buffer_load_dword v{VT+2}, v{VT+1}, s[36:39], s50 offen sc1",f"v_cmp_eq_u32 vcc, 1, v{VT+2}",S,END,sleep=1))
    stamp(A,6)
    vm.clear()
    for s in range(3): hl(s)
    lg=[]
    def tread(s,dt):
        A(f"ds_read_b128 v[{TT+4*dt}:{TT+4*dt+3}], v{VT} offset:{((s-4)*5+dt)*1024}"); lg.append((s,dt))
    def lwait(tag):
        idx=lg.index(tag); A(f"s_waitcnt lgkmcnt({len(lg)-1-idx})")
    PF=VT+4; assert PF%2==0
    XR=TT
    XA=VT+8; ATG=VT+9; ATA=VT+10; AS=WR_
    A(f"""
    v_and_b32 v{VT+3}, 31, v{VLN}
    v_lshlrev_b32 v{VT+3}, 7, v{VT+3}
    s_lshl_b32 s41, s3, 12
    s_add_u32 s41, s41, {FD}
    v_and_b32 v{VT+11}, 15, v{VLN}
    v_lshrrev_b32 v{VT+12}, 4, v{VLN}
    v_mul_u32_u24 v{VT+11}, 1280, v{VT+11}
    v_mul_u32_u24 v{VT+12}, 40, v{VT+12}
    v_add_u32 v{XA}, v{VT+11}, v{VT+12}
    s_lshl_b32 s27, s49, 6
    s_lshl_b32 s28, s25, 4
    s_add_u32 s27, s27, s28
    s_mul_i32 s27, s27, 1280
    s_mul_i32 s28, s3, 160
    s_add_u32 s40, s27, s28
    v_lshrrev_b32 v{VT+11}, 3, v{VLN}
    v_and_b32 v{VT+12}, 7, v{VLN}
    v_lshlrev_b32 v{ATG}, 12, v{VT+11}
    v_lshl_add_u32 v{ATG}, v{VT+12}, 4, v{ATG}
    v_mul_u32_u24 v{ATA}, {ATRS}, v{VT+11}
    v_lshl_add_u32 v{ATA}, v{VT+12}, 4, v{ATA}
    s_mul_i32 s27, s3, {80*4096}
    s_lshl_b32 s28, s49, 7
    s_add_u32 s27, s27, s28
    s_lshl_b32 s28, s25, 15
    s_add_u32 s27, s27, s28
    s_add_u32 s42, s27, {AT}
    s_mul_i32 s28, s25, {8*ATRS}
    s_add_u32 s43, s28, {ATL}
    v_add_u32 v{ATA}, s43, v{ATA}
    s_mov_b32 s51, 0
    """)
    def atloads(u):
        for i in range(3):
            if i<2: A(f"s_add_u32 s27, s42, {i*32*4096}\nbuffer_load_dwordx4 v[{AS+4*i}:{AS+4*i+3}], v{ATG}, s[36:39], s27 offen sc1")
            else: A(f"s_cmp_lt_u32 s25, 2\ns_cbranch_scc0 Lnoat{u}\ns_add_u32 s27, s42, {i*32*4096}\nbuffer_load_dwordx4 v[{AS+4*i}:{AS+4*i+3}], v{ATG}, s[36:39], s27 offen sc1\nLnoat{u}:")
    fdchk=f"v_and_b32 v{PF}, v{PF}, v{PF+1}\nv_and_b32 v{PF}, v{PF}, v{PF+2}\nv_cmp_eq_u32 vcc, 1, v{PF}"
    fdld=f"buffer_load_dwordx4 v[{PF}:{PF+3}], v{VT+3}, s[36:39], s41 offen sc1"
    pend=[]
    def one_h(s,nt):
        va=VL+(s>>2); imm=1024*(s&3)
        A(f"buffer_load_dwordx4 v[{hreg(s,nt)}:{hreg(s,nt)+3}], v{va}, s[36:39], s{30+nt} offen offset:{imm} {os.environ.get('HSC','sc1')}"); vm.append(('h',s))
    def one_w(s,k,dt):
        va=VL+(s>>2); imm=1024*(s&3)
        A(f"buffer_load_dwordx4 v[{wreg(k,dt)}:{wreg(k,dt)+3}], v{va}, s[36:39], s{44+dt} offen offset:{imm} {os.environ.get('WSC','sc1')}"); vm.append(('w',s))
    hq=[]; wq=[]
    def pump(n=1):
        for _ in range(n):
            if hq: f=hq.pop(0); f()
            elif wq: f=wq.pop(0); f()
    for s in range(12):
        tags=[('h',s)]+([('w',s)] if s>=8 else [])
        assert not any(True for f in hq if f.step<=s), "h load not issued in time"
        if s<=10: wait(*tags)
        if s==0: stamp(A,7)
        if os.environ.get('GDIAG')=='g2' and s in (1,2,3,4,6,8,10): stamp(A,40+s)
        lds=4<=s<8
        if lds:
            for dt in range(5):
                lwait((s,dt)); a_=TT+4*dt
                for nt in range(4):
                    a=ACC2+(nt*5+dt)*4
                    A(f"v_mfma_f32_16x16x32_bf16 v[{a}:{a+3}], v[{a_}:{a_+3}], v[{hreg(s,nt)}:{hreg(s,nt)+3}], v[{a}:{a+3}]")
                if s<7: tread(s+1,dt)
                pump()
            if s+3<12:
                for nt in range(4):
                    f=(lambda s_=s+3,nt_=nt: one_h(s_,nt_)); f.step=s+3; hq.append(f)
        else:
            for nt in range(4):
                for dt in range(5):
                    a=ACC2+(nt*5+dt)*4; a_=wreg(s%4,dt)
                    A(f"v_mfma_f32_16x16x32_bf16 v[{a}:{a+3}], v[{a_}:{a_+3}], v[{hreg(s,nt)}:{hreg(s,nt)+3}], v[{a}:{a+3}]")
                    if s==3 and nt==3: tread(4,dt)
                    if dt==1 and nt>0: pump()
                if s+3<12:
                    f=(lambda s_=s+3,nt_=nt: one_h(s_,nt_)); f.step=s+3; hq.append(f)
                pump()
            if s<4:
                for dt in range(5):
                    f=(lambda s_=8+s,k_=s,dt_=dt: one_w(s_,k_,dt_)); f.step=8+s; wq.append(f)
        if s==7:
            pump(len(hq)+len(wq))
        if s==8:
            pump(len(hq)+len(wq))
            A(fdld); vm.append(('p',0))
            A(f"buffer_load_dwordx4 v[{XR}:{XR+3}], v{XA}, s[8:11], s40 offen\nbuffer_load_dwordx4 v[{XR+4}:{XR+7}], v{XA}, s[8:11], s40 offen offset:16\nbuffer_load_dwordx2 v[{XR+8}:{XR+9}], v{XA}, s[8:11], s40 offen offset:32")
            vm.extend([('x',0)]*3)
        if s==10:
            wait(('p',0))
            A(fdchk+"\ns_nop 1\ns_cmp_eq_u64 vcc, exec\ns_cbranch_scc0 Lnotyet\ns_mov_b32 s51, 1")
            atloads('e')
            A("Lnotyet:")
    assert not hq and not wq
    stamp(A,8)
    FR=96
    A(f"s_cmp_eq_u32 s51, 1\ns_cbranch_scc1 Lhave\n{fdld}\ns_waitcnt vmcnt(0)")
    A(spin('d',fdld,fdchk,S,END,sleep=1))
    atloads('l')
    A("Lhave:")
    VA=ATA
    R0=FR
    A(f"v_add_u32 v{VL+1}, {WPF}, v{VL}\nv_add_u32 v{VL+2}, {WPF+49152}, v{VL}")
    for w in range(4):
        lab=A.label('w')
        if w<3: A(f"s_cmp_lg_u32 s25, {w}\ns_cbranch_scc1 {lab}")
        for nt in range(4):
            if nt==w: continue
            sl=nt if nt<w else nt-1
            for dt in range(5):
                a=ACC2+(nt*5+dt)*4
                off=w*WPFW+(sl*5+dt)*1024
                va,o=(VL+1,off) if off<65536-1024 else (VL+2,off-49152)
                if w==0 and nt==1 and dt==0: pass
                A(f"ds_write_b128 v{va}, v[{a}:{a+3}] offset:{o}")
        A("s_waitcnt vmcnt(0)")
        for i in range(3):
            if i==2 and w>=2: continue
            for h in range(2): A(f"ds_write_b64 v{VA}, v[{AS+4*i+2*h}:{AS+4*i+2*h+1}] offset:{i*32*ATRS+8*h}")
        A("s_waitcnt lgkmcnt(0)\ns_barrier")
        kk=0
        for src in range(4):
            if src==w: continue
            sl=w if w<src else w-1
            for dt in range(5):
                off=src*WPFW+(sl*5+dt)*1024
                va,o=(VL+1,off) if off<65536-1024 else (VL+2,off-49152)
                A(f"ds_read_b128 v[{R0+(kk*5+dt)*4}:{R0+(kk*5+dt)*4+3}], v{va} offset:{o}")
            kk+=1
        if w:
            for r in range(20): A(f"v_mov_b32 v{ACC2+r}, v{ACC2+w*20+r}")
        if w<3: A(f"s_branch Lred\n{lab}:")
    A("Lred:")
    A(f"""
    v_lshrrev_b32 v{VT}, 4, v{VLN}
    v_mul_u32_u24 v{VT}, 20, v{VT}
    v_bfe_u32 v{VT+1}, v{VLN}, 2, 2
    v_add_u32 v{VT}, v{VT}, v{VT+1}
    v_mul_u32_u24 v{VT}, {ATRS}, v{VT}
    v_and_b32 v{VT+1}, 3, v{VLN}
    v_lshl_add_u32 v{VT}, v{VT+1}, 3, v{VT}
    s_lshl_b32 s27, s25, 5
    s_add_u32 s27, s27, {ATL}
    v_add_u32 v{VT}, s27, v{VT}
    """)
    AR=R0+60
    for dt in range(5): A(f"ds_read_b64_tr_b16 v[{AR+2*dt}:{AR+2*dt+1}], v{VT} offset:{4*dt*ATRS}")
    A(f"s_waitcnt lgkmcnt(5)")
    for src in range(3):
        for r in range(0,20,2): A(f"v_pk_add_f32 v[{ACC2+r}:{ACC2+r+1}], v[{ACC2+r}:{ACC2+r+1}], v[{R0+src*20+r}:{R0+src*20+r+1}]")
    stamp(A,9)
    A("s_waitcnt lgkmcnt(0)")
    W=R0
    for e2 in range(10):
        x=XR+e2; a=AR+e2; b0=ACC2+2*e2; w=W+4*(e2%4)
        A(f"""
        v_lshlrev_b32 v{w}, 16, v{x}
        v_and_b32 v{w+1}, 0xffff0000, v{x}
        v_lshlrev_b32 v{w+2}, 16, v{a}
        v_and_b32 v{w+3}, 0xffff0000, v{a}
        v_pk_add_f32 v[{b0}:{b0+1}], v[{b0}:{b0+1}], v[{w}:{w+1}]
        v_pk_add_f32 v[{b0}:{b0+1}], v[{b0}:{b0+1}], v[{w+2}:{w+3}]
        v_cvt_pk_bf16_f32 v{W+20+e2}, v{b0}, v{b0+1}
        """)
    A(f"buffer_store_dwordx4 v[{W+20}:{W+23}], v{XA}, s[52:55], s40 offen\nbuffer_store_dwordx4 v[{W+24}:{W+27}], v{XA}, s[52:55], s40 offen offset:16\nbuffer_store_dwordx2 v[{W+28}:{W+29}], v{XA}, s[52:55], s40 offen offset:32")
def build(A):
    n=KMAIN; A.begin(n)
    A("s_cmp_ge_u32 s2, 256\ns_cbranch_scc1 Lmain_end")
    A(f"""
    s_load_dwordx2 s[4:5], s[0:1], {ARG['u']}
    s_load_dwordx4 s[76:79], s[0:1], {ARG['w1']}
    s_load_dwordx4 s[84:87], s[0:1], {ARG['dbg']}
    s_load_dwordx8 s[64:71], s[0:1], {ARG['logA']}
    s_load_dwordx2 s[74:75], s[0:1], {ARG['logdt']}
    s_load_dwordx4 s[44:47], s[0:1], {ARG['w2']}      ; w2, out
    s_load_dwordx2 s[18:19], s[0:1], {ARG['Dskip']}
    s_and_b32 s20, s2, 7          ; x
    s_lshr_b32 s21, s2, 3         ; j
    s_and_b32 s22, s20, 1
    s_lshl_b32 s22, s22, 3
    s_and_b32 s23, s21, 7
    s_add_u32 s22, s22, s23       ; rb
    s_lshr_b32 s23, s20, 1
    s_lshl_b32 s23, s23, 2
    s_lshr_b32 s24, s21, 3
    s_add_u32 s23, s23, s24       ; cb
    s_and_b32 s3, s20, 1
    s_lshl_b32 s3, s3, 2
    s_add_u32 s3, s3, s24
    v_lshrrev_b32 v1, 6, v0
    s_cmp_ge_u32 s22, 10
    s_cselect_b32 s35, 10, 0
    v_readfirstlane_b32 s25, v1   ; wave
    s_sub_u32 s35, s22, s35       ; rot
    s_nop 2
    s_and_b32 s26, s25, 1         ; wf
    s_bfe_u32 s27, s25, 0x10001   ; wt
    s_and_b32 s24, s25, 3         ; hw
    s_cmp_ge_u32 s25, 4
    s_cbranch_scc1 Lhrole
    """)
    GLN=E('GLN',0)
    g_dma_addr(A,S)
    if GLN: g_ln_loads(A,S)
    A("s_waitcnt lgkmcnt(0)")
    A.srd(8,4,SIZE['u']); A.srd(12,76,SIZE['w1']); A.srd(16,78,SIZE['w3']); A.srd(WS,86,SIZE['ws']); A.srd(52,46,SIZE['out'])
    stamp=St(list(range(64,76,2))+[80]+list(range(84,102,2))+[56,42+0])
    stamp.regs=[r for r in stamp.regs if r not in (42,82)]
    stamp(A,0); stamp(A,1,True)
    PRE=E('GPRE',2)
    if GLN: g_ln_issue(A,S)
    for l in g_dma(S,0): A(l)
    g_lds_addr(A,S)
    for l in g_dma(S,1): A(l)
    A(f"s_cmp_eq_u32 s25, 0\ns_cbranch_scc0 Lnoci\nv_mov_b32 v{VT0}, {LCNT}\nv_mov_b32 v{VT0+1}, 0\nds_write_b32 v{VT0}, v{VT0+1}\nds_write_b32 v{VT0}, v{VT0+1} offset:4\nLnoci:")
    for i in range(96): A(f"v_mov_b32 v{ACC+i}, 0")
    if GLN:
        A("s_waitcnt vmcnt(20)")
        g_ln_compute(A,S,LB_L,LNRS,LST)
    def gstamp(st):
        if os.environ.get('GDIAG')=='win':
            if not isinstance(st,tuple): stamp(A,32+st)
            elif st[1] in (1,2,3,4,5): stamp(A,48+st[1])
        elif os.environ.get('GDIAG')=='g2': pass
        elif os.environ.get('GDIAG')=='rt':
            if st==0: stamp(A,32)
        elif not isinstance(st,tuple) and st in (0,3,6,9): stamp(A,32+st)
    g_loop(A,S,gstamp if DIAG else None,PRE=PRE)
    stamp(A,2)
    A("s_barrier")
    stamp(A,3)
    g_epilogue(A,S,WS,HF,'sc1')
    A(f"v_mov_b32 v{VT0}, {LCNT+4}\nv_mov_b32 v{VT0+1}, 1\ns_mov_b64 s[58:59], exec\ns_mov_b64 exec, 1\nds_add_u32 v{VT0}, v{VT0+1}\ns_mov_b64 exec, s[58:59]")
    stamp(A,4)
    g2_phase(A,stamp)
    stamp(A,10); stamp(A,11,True)
    stamp.dump(A)
    A("s_branch Lmain_end")
    A("Lhrole:")
    A(f"v_and_b32 v{HLANE}, 63, v0")
    A(f"""
    s_mul_i32 s28, s21, 3
    s_lshl_b32 s29, s21, 1
    s_add_u32 s29, s29, 16
    s_cmp_lt_u32 s21, 16
    s_cselect_b32 s28, s28, s29
    s_cselect_b32 s101, 3, 2          ; nch
    s_mul_i32 s29, s20, 80
    s_add_u32 s28, s28, s29
    s_add_u32 s88, s28, s24           ; channel
    s_mul_i32 s89, s24, {KSCR}
    s_add_u32 s89, s89, {KB0}
    s_waitcnt lgkmcnt(0)
    s_mov_b32 s80, s44
    s_mov_b32 s81, s45
    """)
    A.srd(8,4,SIZE['u']); A.srd(WS,86,SIZE['ws'])
    A("s_cmp_eq_u32 s24, 3\ns_cbranch_scc1 Lrole_l\ns_cmp_lt_u32 s24, s101\ns_cbranch_scc0 Lrole_w")
    A.srd(40,64,245760); A.srd(44,66,245760); A.srd(48,68,245760); A.srd(52,70,245760); A.srd(56,74,1280); A.srd(12,18,SIZE['Dskip'])
    stamp=St([64,66,68,70,74,76,78,80,60,62,4,6]); stamp(A,0)
    SK=dict(S); SK['kb']=89
    P=Prog(); mark(P,-1); P.atom('s_setprio 3'); kgen_loads(P,S,HLANE,KV)
    P.i(f"s_lshl_b32 s29, s88, 1\nv_mov_b32 v30, s29"); P.vl("buffer_load_ushort v29, v30, s[12:15], 0 offen",'kp2',cost=30); P.atom('s_setprio 0')
    kgen_setup(P,S,HLANE); kgen_dt(P,S); P.wv('kp2'); kgen_groups(P,os.environ.get('PKG0','rows'),tailpk=bool(E('TAILPK',1)))
    SO=dict(S); SO['kb']=73
    P.i(f"s_add_u32 s73, s89, 16\nv_mov_b32 v28, s89\nv_mov_b32 v27, 0")
    kgen_out(P,SO,HLANE,WS,"",tolds=False) if False else None
    Pout=Prog(); Pout.l("ds_write_b32 v28, v27 offset:12"); kgen_out(Pout,SO,HLANE,WS,"",tolds=True)
    P.ext(Pout)
    P=schedule(P)
    if os.environ.get('KNOWR'): P.it=[x if not (x[0]=='L' and 'ds_write' in x[1]) else ('I','s_nop 0',4) for x in P.it]
    if os.environ.get('KNOVALU'): P.it=[x for x in P.it if not (x[0]=='I' and x[1].startswith('v_') and 'mfma' not in x[1] and 'readfirst' not in x[1])]
    SC=dict(base=30,ch=88,srd=36,t0=28,t1=29,sv=92,m0=52,m1=54,m2=56,dsk=33,kt=73,lane=HLANE)
    def w8hook():
        A(f"v_lshlrev_b32 v26, 4, v{HLANE}\ns_mov_b32 s31, {FX}\nbuffer_load_dwordx4 v[20:23], v26, s[36:39], s31 offen sc1")
        Em_[0].vm.append(('L','fx'))
    def w9hook():
        Em_[0].wait_vm('fx')
        A(spin('x',"buffer_load_dwordx4 v[20:23], v26, s[36:39], s31 offen sc1","v_and_b32 v24, v20, v21\nv_and_b32 v25, v22, v23\nv_and_b32 v24, v24, v25\nv_cmp_eq_u32 vcc, 1, v24",S,END))
        A(f"s_mul_i32 s30, s24, {CV.CW3}")
        CV.u_loads(A,SC)
        for q in range(4): Em_[0].vm.append(('L','u'))
    Em_=[None]
    Em,rest=h_schedule(A,P,E('KB',850),E('PREK',900),stamp,(0,3,6,9),hook={8:w8hook,9:w9hook},emref=Em_)
    A("s_barrier")
    A(f"s_setprio {E('XPRIO',2)}")
    stamp(A,2)
    for x in rest: Em.item(x)
    print("K role: total",sum(x[2] for x in P.it),"left after loop",sum(x[2] for x in rest))
    stamp(A,3)
    A("s_waitcnt vmcnt(0)\nv_lshlrev_b32 v29, 16, v29\ns_nop 0\nv_readfirstlane_b32 s33, v29")
    CV.u_store(A,SC)
    CV.conv_setup(A,SC)
    A("s_waitcnt lgkmcnt(0)")
    CV.conv_expand(A,SC)
    A("s_waitcnt lgkmcnt(0)")
    if E('CWAIT',1):
        A(f"""
        s_setprio 0
        v_mov_b32 v{CV.CTMP}, {LCNT+4}
        s_mov_b32 s34, 0
        Lcw:
        ds_read_b32 v{CV.CTMP+1}, v{CV.CTMP}
        s_waitcnt lgkmcnt(0)
        v_readfirstlane_b32 s28, v{CV.CTMP+1}
        s_add_u32 s34, s34, 1
        s_cmp_gt_u32 s34, {1<<24}
        s_cbranch_scc1 {END}
        s_cmp_eq_u32 s28, 4
        s_cbranch_scc1 Lcwok
        s_sleep 1
        s_branch Lcw
        Lcwok:
        """)
    stamp(A,4)
    A(f"s_setprio {E('CPRIO',1)}")
    CV.conv_main(A)
    A("s_nop 7")
    stamp(A,5)
    CV.conv_epilogue(A,SC,"sc1")
    A(f"""
    s_waitcnt vmcnt(0)
    s_lshl_b32 s28, s20, 5
    s_add_u32 s28, s28, s21
    s_lshl_b32 s28, s28, 7
    s_lshl_b32 s29, s24, 2
    s_add_u32 s28, s28, s29
    s_add_u32 s28, s28, {FD}
    v_mov_b32 v{CV.CTMP}, 0
    v_mov_b32 v{CV.CTMP+1}, 1
    s_mov_b64 s[92:93], exec
    s_mov_b64 exec, 1
    buffer_store_dword v{CV.CTMP+1}, v{CV.CTMP}, s[36:39], s28 offen sc1
    s_mov_b64 exec, s[92:93]
    """)
    stamp(A,6)
    stamp.dump(A)
    A("s_branch Lmain_end")
    A("Lrole_w:")
    A.srd(40,80,SIZE['w2'])
    A(f"s_sub_u32 s99, s21, 16\ns_lshl_b32 s99, s99, 3\ns_add_u32 s99, s99, s20\ns_mov_b32 s100, {magic(48)}\ns_mov_b32 s98, {LB_W}")
    SW=dict(S); SW['wo']=88
    P=Prog(); mark(P,-1); w2_setup(P,SW,HLANE); mark(P,0); w2b_loads(P,SW,40)
    for k in range(3):
        mark(P,k+1); w2b_unit(P,SW,k,HLANE,WS,"sc1")
    mark(P,5); s3_set_fw(P,SW,WS,WF); must(P,5)
    stamp=St([64,66,68,70,74,76,78,84,86,60,62]); Em,rest=h_schedule(A,P,800,600,stamp)
    assert not [x for x in rest if x[0] not in('MARK','MUST','LOCK')]
    A("s_barrier")
    stamp.dump(A)
    A("s_branch Lmain_end")
    A("Lrole_l:")
    A.srd(40,84,256)
    A(f"s_mov_b32 s98, {LB_L}")
    LP=None
    if E('GLN',0):
        P=Prog(); mark(P,-1); s3_clear(P,S,WS); cs_setup(P,S,HLANE)
        mark(P,0); fl_cleared(P,S,40); cs_reads(P,S,0); cs_mfma(P,S,0); cs_reads(P,S,1); P.wl(('cs',1)); must(P,0)
        mark(P,1); cs_mfma(P,S,1); ln3_xt_reads(P,S,HLANE); ln3_st(P,S,HLANE,WS,"sc1",LST); cs_store(P,S,HLANE,WS,"sc1"); must(P,1)
        mark(P,2); s3_set_fl(P,S,WS,'pub1',0); ln3_xt_stores(P,S,HLANE,WS,"sc1")
        mark(P,5); s3_set_fl(P,S,WS,'pub2',FX-FL)
        mark(P,6); s3_ga_clr_load(P,S,HLANE,40)
        mark(P,7); s3_ga_clr_check(P,S,HLANE,40,WS,END); must(P,7)
        mark(P,8); s3_ga_flag_check(P,S,HLANE,WS,END)
        mark(P,9); ga_finish(P,S,HLANE); must(P,9)
    else:
        P=Prog(); mark(P,-1); P.atom("s_setprio 3"); ln2_loads(P,S,HLANE); P.atom("s_setprio 0"); s3_clear(P,S,WS); cs_setup(P,S,HLANE)
        mark(P,0); fl_cleared(P,S,40); cs_reads(P,S,0); cs_mfma(P,S,0); cs_reads(P,S,1); P.wl(('cs',1)); must(P,0)
        cs_mfma(P,S,1); cs_store(P,S,HLANE,WS,"sc1")
        ln2_stats(P,S,HLANE,WS,"sc1")
        Pn=Prog(); ln2_norm(Pn,S,HLANE,WS,"sc1")
        n1=len(Pn.it)//4
        P.it+=Pn.it[:n1]
        mark(P,3); s3_set_fl(P,S,WS,'pub1',0)
        P.it+=Pn.it[n1:]
        mark(P,5); s3_ga_clr_load(P,S,HLANE,40)
        mark(P,6); s3_ga_clr_check(P,S,HLANE,40,WS,END); must(P,7)
        mark(P,7); s3_set_fl(P,S,WS,'pub2',FX-FL); s3_ga_flag_check(P,S,HLANE,WS,END)
        mark(P,9); ga_finish(P,S,HLANE); must(P,9)
    P=schedule(P)
    stamp=St([44,46,48,50,52,54,56,58,60,62,4]); stamp(A,0)
    if LP: stamp.used.update({2:64,3:66,4:68,5:70,6:74,7:76})
    Em,rest=h_schedule(A,P,E('LB',800),E('PREL',2500),stamp)
    print("L role: total",sum(x[2] for x in P.it))
    assert not [x for x in rest if x[0] not in('MARK','MUST','LOCK')]
    A("s_barrier")
    stamp.dump(A)
    A("Lmain_end:")
    A.end(n,256); A.launch(n,256,512,lds=LDS_S3)
if __name__=='__main__':
    A=Asm(); build(A)
    print("LDS",LDS_S3)
    open(sys.argv[1],'w').write(A.text("S3: fused single launch",single=True))
```

```python
import os
from asmlib import *
from sched import *
from layout import *
from g32lib import WBASE,WSLOT,W3OFF,STAT,CSL,HSCR
LNRS=1344
LNSCR=8*LNRS
LR=32
LF=72
LS=232
def ln_loads(P,S,lane):
    t=LS
    P.i(f"""
    v_lshrrev_b32 v{t}, 3, v{lane}
    v_and_b32 v{t+1}, 7, v{lane}
    v_mul_u32_u24 v{t+2}, 1280, v{t}
    v_lshl_add_u32 v{t+2}, v{t+1}, 4, v{t+2}
    s_mul_i32 s{S['h0']}, s{S['wg']}, {8*1280}
    """)
    for i in range(10):
        P.vl(f"buffer_load_dwordx4 v[{LR+4*i}:{LR+4*i+3}], v{t+2}, s[{S['srdx']}:{S['srdx']+3}], s{S['h0']} offen offset:{128*i}",'ln',cost=30)
def ln_stats(P,S,lane,srd,flags,pk=True):
    t=LS; SM=LS+4; SQ=LS+6
    P.wv('ln')
    P.i(f"v_mov_b32 v{SM}, 0\nv_mov_b32 v{SM+1}, 0\nv_mov_b32 v{SQ}, 0\nv_mov_b32 v{SQ+1}, 0\nv_mov_b32 v{SM+4}, 0\nv_mov_b32 v{SM+5}, 0\nv_mov_b32 v{SQ+4}, 0\nv_mov_b32 v{SQ+5}, 0")
    for k in range(40):
        f=LF+2*k; a=SM+4*(k&1); b=SQ+4*(k&1)
        P.i(f"v_lshlrev_b32 v{f}, 16, v{LR+k}\nv_and_b32 v{f+1}, 0xffff0000, v{LR+k}")
        if pk:
            P.i(f"v_pk_add_f32 v[{a}:{a+1}], v[{a}:{a+1}], v[{f}:{f+1}]",cost=5)
            P.i(f"v_pk_fma_f32 v[{b}:{b+1}], v[{f}:{f+1}], v[{f}:{f+1}], v[{b}:{b+1}]",cost=5)
        else:
            P.i(f"v_add_f32 v{a}, v{a}, v{f}\nv_add_f32 v{a+1}, v{a+1}, v{f+1}\nv_fmac_f32 v{b}, v{f}, v{f}\nv_fmac_f32 v{b+1}, v{f+1}, v{f+1}",cost=6)
    P.i(f"""
    v_add_f32 v{SM}, v{SM}, v{SM+4}
    v_add_f32 v{SM+1}, v{SM+1}, v{SM+5}
    v_add_f32 v{SQ}, v{SQ}, v{SQ+4}
    v_add_f32 v{SQ+1}, v{SQ+1}, v{SQ+5}
    v_add_f32 v{SM}, v{SM}, v{SM+1}
    v_add_f32 v{SQ}, v{SQ}, v{SQ+1}
    """)
    for mod in ("quad_perm:[1,0,3,2]","quad_perm:[2,3,0,1]","row_half_mirror"):
        P.atom(f"s_nop 1\nv_add_f32_dpp v{SM}, v{SM}, v{SM} {mod} row_mask:0xf bank_mask:0xf\nv_add_f32_dpp v{SQ}, v{SQ}, v{SQ} {mod} row_mask:0xf bank_mask:0xf",cost=16)
    M=SM; R=SQ; NR=LS+12
    P.i(f"""
    v_mul_f32 v{M}, 0x3acccccd, v{M}
    v_mul_f32 v{R}, 0x3acccccd, v{R}
    v_fma_f32 v{R}, -v{M}, v{M}, v{R}
    v_max_f32 v{R}, 0, v{R}
    v_cvt_pk_bf16_f32 v{R}, v{R}, v{R}
    v_cvt_pk_bf16_f32 v{M}, v{M}, v{M}
    v_lshlrev_b32 v{R}, 16, v{R}
    v_lshlrev_b32 v{M}, 16, v{M}
    v_add_f32 v{R}, 0x3727c5ac, v{R}
    v_cvt_pk_bf16_f32 v{R}, v{R}, v{R}
    v_lshlrev_b32 v{R}, 16, v{R}
    v_sqrt_f32 v{R}, v{R}
    s_nop 0
    v_cvt_pk_bf16_f32 v{R}, v{R}, v{R}
    v_lshlrev_b32 v{R}, 16, v{R}
    v_rcp_f32 v{R}, v{R}
    s_nop 0
    v_mov_b32 v{M+1}, v{R}
    v_mul_f32 v{NR}, v{M}, v{R}
    v_sub_f32 v{NR}, 0, v{NR}
    v_mov_b32 v{NR+1}, v{R}
    """)
    sv=S['sv']
    P.i(f"v_lshrrev_b32 v{t}, 3, v{lane}\nv_lshlrev_b32 v{t+1}, 3, v{t}\ns_lshl_b32 s{S['h0']}, s{S['wg']}, 6\ns_add_u32 s{S['h0']}, s{S['h0']}, {STG}")
    P.lock()
    P.atom(f"s_mov_b64 s[{sv}:{sv+1}], exec\ns_mov_b32 exec_lo, 0x01010101\ns_mov_b32 exec_hi, 0x01010101")
    P.vs(f"buffer_store_dwordx2 v[{M}:{M+1}], v{t+1}, s[{srd}:{srd+3}], s{S['h0']} offen {flags}",'pub1')
    P.atom(f"s_mov_b64 exec, s[{sv}:{sv+1}]")
    P.unlock()
def ln_norm(P,S,lane,srd,flags):
    t=LS; NR=LS+12
    P.i(f"""
    v_lshrrev_b32 v{t}, 3, v{lane}
    v_and_b32 v{t+1}, 7, v{lane}
    v_mul_u32_u24 v{t+2}, {LNRS}, v{t}
    v_lshl_add_u32 v{t+2}, v{t+1}, 4, v{t+2}
    v_add_u32 v{t+2}, s{S['lb']}, v{t+2}
    """)
    for i in range(10):
        for k in range(4):
            f=LF+2*(4*i+k)
            if True:
                P.i(f"v_fma_f32 v{f}, v{f}, v{NR+1}, v{NR}\nv_fma_f32 v{f+1}, v{f+1}, v{NR+1}, v{NR}")
            else:
                P.i(f"v_pk_fma_f32 v[{f}:{f+1}], v[{f}:{f+1}], v[{NR}:{NR+1}], v[{NR}:{NR+1}] op_sel:[0,1,0] op_sel_hi:[1,1,0]",cost=5)
            P.i(f"v_cvt_pk_bf16_f32 v{LR+4*i+k}, v{f}, v{f+1}",cost=5)
        P.l(f"ds_write_b128 v{t+2}, v[{LR+4*i}:{LR+4*i+3}] offset:{128*i}",cost=30)
    P.i(f"""
    v_bfe_u32 v{t}, v{lane}, 2, 2
    v_mul_u32_u24 v{t}, {LNRS}, v{t}
    v_lshrrev_b32 v{t+1}, 4, v{lane}
    v_lshl_add_u32 v{t}, v{t+1}, 5, v{t}
    v_and_b32 v{t+1}, 3, v{lane}
    v_lshl_add_u32 v{t}, v{t+1}, 3, v{t}
    v_add_u32 v{t}, s{S['lb']}, v{t}
    v_lshlrev_b32 v{t+3}, 4, v{lane}
    s_mul_i32 s{S['h0']}, s{S['wg']}, 10240
    s_add_u32 s{S['h0']}, s{S['h0']}, {XT}
    """)
    if os.environ.get('LNWAIT'): P.wl()
    for i2 in range(10):
        for h in range(2):
            P.l(f"ds_read_b64_tr_b16 v[{LF+4*i2+2*h}:{LF+4*i2+2*h+1}], v{t} offset:{128*i2+4*LNRS*h}",('lt',i2))
        if os.environ.get('LNWAIT') and i2%4==3: P.wl()
    for i2 in range(10):
        P.wl(('lt',i2))
        if i2%4==0 and i2: P.i(f"s_add_u32 s{S['h0']}, s{S['h0']}, 4096")
        P.vs(f"buffer_store_dwordx4 v[{LF+4*i2}:{LF+4*i2+3}], v{t+3}, s[{srd}:{srd+3}], s{S['h0']} offen offset:{1024*(i2%4)} {flags}",'pub2',cost=80)
CFR=152
CD=32
CONE=216
CA=220
CF=226
def CDR(i): return 104+4*i
def cs_setup(P,S,lane):
    t=CF
    P.i(f"""
    v_lshrrev_b32 v{t+1}, 4, v{lane}          ; g
    v_bfe_u32 v{t}, v{lane}, 2, 2             ; r
    v_lshl_add_u32 v{t}, v{t+1}, 3, v{t}
    v_mul_u32_u24 v{t}, 192, v{t}
    v_and_b32 v{t+2}, 3, v{lane}
    v_lshl_add_u32 v{t}, v{t+2}, 3, v{t}
    v_add_u32 v{CA}, {WBASE}, v{t}
    """)
    for i in range(4): P.i(f"v_mov_b32 v{CONE+i}, 0x3f803f80")

CSEQ=[(mat,c) for mat in range(2) for c in range(6)]
CFR2=208
def cs_reads(P,S,s):
    for i,(mat,c) in enumerate(CSEQ):
        b=CFR+4*i
        for h in range(2): P.l(f"ds_read_b64_tr_b16 v[{b+2*h}:{b+2*h+1}], v{CA} offset:{mat*W3OFF+6144*s+768*h+32*c}",('cs',s),cost=8)
def cs_mfma(P,S,s):
    P.wl(('cs',s))
    P.lock(); P.atom("s_setprio 1")
    for i,(mat,c) in enumerate(CSEQ):
        b=CFR+4*i; d=CDR(i)
        src=f"v[{d}:{d+3}]" if s else "0"
        P.i(f"v_mfma_f32_16x16x32_bf16 v[{d}:{d+3}], v[{b}:{b+3}], v[{CONE}:{CONE+3}], {src}",cost=17)
    P.atom("s_setprio 0"); P.unlock()
def cs_store(P,S,lane,srd,flags,stage=None,CDR=None,CFR=CFR):
    sv=S['sv']; t=CF
    CDR=CDR or globals()['CDR']
    P.i(f"""
    s_nop 7
    v_lshrrev_b32 v{t}, 4, v{lane}
    v_lshlrev_b32 v{t}, 4, v{t}
    v_add_u32 v{t}, {stage if stage is not None else 's%d'%S['lb']}, v{t}
    v_lshlrev_b32 v{t+1}, 4, v{lane}
    v_add_u32 v{t+2}, {stage if stage is not None else 's%d'%S['lb']}, v{t+1}
    s_mul_i32 s{S['h0']}, s{S['cb']}, {16*768}
    s_mul_i32 s{S['h1']}, s{S['rb']}, 768
    s_add_u32 s{S['h0']}, s{S['h0']}, s{S['h1']}
    s_add_u32 s{S['h0']}, s{S['h0']}, {PCS}
    """)
    P.lock()
    P.atom(f"s_mov_b64 s[{sv}:{sv+1}], exec\ns_mov_b32 exec_lo, 0x00010001\ns_mov_b32 exec_hi, 0x00010001")
    for i,(mat,c) in enumerate(CSEQ):
        d=CDR(i)
        P.l(f"ds_write_b128 v{t}, v[{d}:{d+3}] offset:{mat*384+c*64}",cost=12)
    P.atom(f"s_mov_b32 exec_lo, -1\ns_mov_b32 exec_hi, 0xffff")
    P.l(f"ds_read_b128 v[{CFR}:{CFR+3}], v{t+2}",'cso')
    P.wl('cso')
    P.vs(f"buffer_store_dwordx4 v[{CFR}:{CFR+3}], v{t+1}, s[{srd}:{srd+3}], s{S['h0']} offen {flags}",'pub1',cost=50)
    P.atom(f"s_mov_b64 exec, s[{sv}:{sv+1}]")
    P.unlock()
WA=32
WR=38
WF=40
def w2_setup(P,S,lane):
    t=WF
    P.i(f"s_mov_b32 s{S['h0']}, {magic(10)}")
    for i in range(5):
        P.i(f"""
        v_add_u32 v{t}, {64*i}, v{lane}
        v_mul_hi_u32 v{t+1}, v{t}, s{S['h0']}
        v_mul_u32_u24 v{t+2}, 10, v{t+1}
        v_sub_u32 v{t+2}, v{t}, v{t+2}
        v_mul_u32_u24 v{t+1}, 1280, v{t+1}
        v_lshl_add_u32 v{WA+i}, v{t+2}, 4, v{t+1}
        """)
    P.i(f"""
    v_bfe_u32 v{t}, v{lane}, 5, 1
    v_lshlrev_b32 v{t}, 4, v{t}               ; 16*(g>>1)
    v_bfe_u32 v{t+1}, v{lane}, 4, 1
    v_lshl_add_u32 v{t}, v{t+1}, 2, v{t}      ; +4*(g&1)
    v_bfe_u32 v{t+1}, v{lane}, 2, 2
    v_add_u32 v{t}, v{t}, v{t+1}              ; +r
    v_mul_u32_u24 v{t}, 160, v{t}
    v_and_b32 v{t+1}, 3, v{lane}
    v_mul_u32_u24 v{t+1}, 40, v{t+1}
    v_add_u32 v{t}, v{t}, v{t+1}
    v_add_u32 v{WR}, s{S['lb']}, v{t}
    v_lshlrev_b32 v{WR+1}, 4, v{lane}
    """)
def w2_unit(P,S,k,srdw2,srd,flags):
    h0,h1,h2=S['h0'],S['h1'],S['h2']
    P.i(f"""
    s_mul_i32 s{h0}, s{S['u']}, 3
    s_add_u32 s{h0}, s{h0}, {k}
    s_mul_hi_u32 s{h1}, s{h0}, s{S['m48']}     ; db
    s_mul_i32 s{h2}, s{h1}, 48
    s_sub_u32 s{h0}, s{h0}, s{h2}              ; sigma
    s_mul_i32 s{h2}, s{h0}, {32*1280}
    s_mul_i32 s{S['h3']}, s{h1}, 160
    s_add_u32 s{h2}, s{h2}, s{S['h3']}
    """)
    for i in range(5):
        P.vl(f"s_add_u32 m0, s{S['lb']}, {1024*i}\ns_nop 0\nbuffer_load_dwordx4 v{WA+i}, s[{srdw2}:{srdw2+3}], s{h2} offen lds",('w2',k),cost=53)
    P.i(f"""
    s_mul_i32 s{h1}, s{h1}, {5*48}
    s_add_u32 s{h1}, s{h1}, s{h0}
    s_lshl_b32 s{h1}, s{h1}, 10
    s_add_u32 s{h1}, s{h1}, {W2F}
    """)
    P.wv(('w2',k))
    for dt in range(5):
        for h in range(2):
            P.l(f"ds_read_b64_tr_b16 v[{WF+4*dt+2*h}:{WF+4*dt+2*h+1}], v{WR} offset:{8*dt+1280*h}",('wt',k,dt))
    for dt in range(5):
        P.wl(('wt',k,dt))
        P.vs(f"buffer_store_dwordx4 v[{WF+4*dt}:{WF+4*dt+3}], v{WR+1}, s[{srd}:{srd+3}], s{h1} offen {flags}")
        if dt<4: P.i(f"s_add_u32 s{h1}, s{h1}, {48*1024}")

FV=248
def fl_clear(P,S,srd):
    t=FV
    P.i(f"""
    v_mov_b32 v{t}, 0
    v_mov_b32 v{t+1}, 0
    s_lshr_b32 s{S['h0']}, s{S['wg']}, 4
    s_lshl_b32 s{S['h0']}, s{S['h0']}, 7
    s_and_b32 s{S['h1']}, s{S['wg']}, 15
    s_lshl_b32 s{S['h1']}, s{S['h1']}, 2
    s_add_u32 s{S['h0']}, s{S['h0']}, s{S['h1']}
    s_add_u32 s{S['fst']}, s{S['h0']}, {FST}
    s_lshl_b32 s{S['h0']}, s{S['cb']}, 7
    s_lshl_b32 s{S['h1']}, s{S['rb']}, 2
    s_add_u32 s{S['h0']}, s{S['h0']}, s{S['h1']}
    s_add_u32 s{S['fcs']}, s{S['h0']}, {FCS}
    s_lshl_b32 s{S['h0']}, s{S['x']}, 5
    s_add_u32 s{S['h0']}, s{S['h0']}, s{S['j']}
    s_lshl_b32 s{S['h0']}, s{S['h0']}, 7
    s_add_u32 s{S['h0']}, s{S['h0']}, {FD}
    s_sub_u32 s{S['h1']}, 3, s{S['nch']}
    v_mov_b32 v{t+4}, 0
    v_mov_b32 v{t+5}, 0
    v_mov_b32 v{t+6}, s{S['h1']}
    v_mov_b32 v{t+7}, 0
    """)
    sv=S['sv']
    P.lock()
    P.atom(f"s_mov_b64 s[{sv}:{sv+1}], exec\ns_mov_b64 exec, 1")
    P.vs(f"buffer_store_dword v{t}, v{t+1}, s[{srd}:{srd+3}], s{S['fst']} offen sc1",'clr')
    P.vs(f"buffer_store_dword v{t}, v{t+1}, s[{srd}:{srd+3}], s{S['fcs']} offen sc1",'clr')
    P.vs(f"buffer_store_dwordx4 v[{t+4}:{t+7}], v{t+1}, s[{srd}:{srd+3}], s{S['h0']} offen sc1",'clr')
    P.atom(f"s_mov_b64 exec, s[{sv}:{sv+1}]")
    P.unlock()
def fl_cleared(P,S,srddbg):
    t=FV; sv=S['sv']
    P.wv('clr')
    P.i(f"s_and_b32 s{S['h0']}, s{S['wg']}, 1\ns_lshl_b32 s{S['h0']}, s{S['h0']}, 7\nv_mov_b32 v{t+2}, 1\nv_mov_b32 v{t+1}, 0")
    P.lock()
    P.atom(f"s_mov_b64 s[{sv}:{sv+1}], exec\ns_mov_b64 exec, 1")
    P.vs(f"buffer_atomic_add v{t+2}, v{t+1}, s[{srddbg}:{srddbg+3}], s{S['h0']} offen sc1")
    P.atom(f"s_mov_b64 exec, s[{sv}:{sv+1}]")
    P.unlock()
def fl_set(P,S,srd):
    t=FV; sv=S['sv']
    P.wv('pub')
    P.i(f"v_mov_b32 v{t+2}, 1\nv_mov_b32 v{t+1}, 0")
    P.lock()
    P.atom(f"s_mov_b64 s[{sv}:{sv+1}], exec\ns_mov_b64 exec, 1")
    P.vs(f"buffer_store_dword v{t+2}, v{t+1}, s[{srd}:{srd+3}], s{S['fst']} offen sc1")
    P.vs(f"buffer_store_dword v{t+2}, v{t+1}, s[{srd}:{srd+3}], s{S['fcs']} offen sc1")
    P.atom(f"s_mov_b64 exec, s[{sv}:{sv+1}]")
    P.unlock()
GA=32
def ga_clr_load(P,S,lane,srddbg):
    P.i(f"v_and_b32 v{GA}, 1, v{lane}\nv_lshlrev_b32 v{GA}, 7, v{GA}")
    P.vl(f"buffer_load_dword v{GA+1}, v{GA}, s[{srddbg}:{srddbg+3}], 0 offen sc1",'g1')
def ga_clr_check(P,S,lane,srddbg,srd,uid):
    P.wv('g1')
    P.atom(f"""
    Lgc{uid}:
    v_cmp_eq_u32 vcc, 128, v{GA+1}
    s_nop 1
    s_cmp_eq_u64 vcc, exec
    s_cbranch_scc1 Lgcok{uid}
    s_sleep 2
    buffer_load_dword v{GA+1}, v{GA}, s[{srddbg}:{srddbg+3}], 0 offen sc1
    s_waitcnt vmcnt(0)
    s_branch Lgc{uid}
    Lgcok{uid}:
    """,cost=20)
    P.i(f"""
    v_and_b32 v{GA+2}, 15, v{lane}
    v_lshlrev_b32 v{GA+2}, 2, v{GA+2}
    s_lshl_b32 s{S['h0']}, s{S['rb']}, 7
    s_add_u32 s{S['h0']}, s{S['h0']}, {FST}
    s_lshl_b32 s{S['h1']}, s{S['cb']}, 7
    s_add_u32 s{S['h1']}, s{S['h1']}, {FCS}
    v_add_u32 v{GA+3}, s{S['h0']}, v{GA+2}
    v_add_u32 v{GA+4}, s{S['h1']}, v{GA+2}
    v_mov_b32 v{GA+5}, s{S['h0']}
    v_cmp_gt_u32 vcc, 16, v{lane}
    s_nop 1
    v_cndmask_b32 v{GA+4}, v{GA+4}, v{GA+3}, vcc
    v_cmp_lt_u32 vcc, 25, v{lane}
    s_nop 1
    v_cndmask_b32 v{GA+4}, v{GA+4}, v{GA+5}, vcc
    """)
    P.vl(f"buffer_load_dword v{GA+6}, v{GA+4}, s[{srd}:{srd+3}], 0 offen sc1",'g2')
def ga_flag_check(P,S,lane,srd,uid):
    P.wv('g2')
    P.atom(f"""
    Lgf{uid}:
    v_cmp_eq_u32 vcc, 1, v{GA+6}
    s_nop 1
    s_cmp_eq_u64 vcc, exec
    s_cbranch_scc1 Lgfok{uid}
    s_sleep 2
    buffer_load_dword v{GA+6}, v{GA+4}, s[{srd}:{srd+3}], 0 offen sc1
    s_waitcnt vmcnt(0)
    s_branch Lgf{uid}
    Lgfok{uid}:
    """,cost=20)
    P.i(f"""
    v_lshlrev_b32 v{GA+7}, 4, v{lane}
    s_lshl_b32 s{S['h0']}, s{S['rb']}, 10
    s_add_u32 s{S['h0']}, s{S['h0']}, {STG}
    s_mul_i32 s{S['h1']}, s{S['cb']}, {16*768}
    s_add_u32 s{S['h1']}, s{S['h1']}, {PCS}
    """)
    P.vl(f"buffer_load_dwordx4 v[{GA+8}:{GA+11}], v{GA+7}, s[{srd}:{srd+3}], s{S['h0']} offen sc1",'g3')
    for r in range(10):
        P.vl(f"s_add_u32 s{S['h2']}, s{S['h1']}, {768*r}\nbuffer_load_dwordx4 v[{GA+12+4*r}:{GA+15+4*r}], v{GA+7}, s[{srd}:{srd+3}], s{S['h2']} offen sc1",'g3')
def ga_finish(P,S,lane):
    P.wv('g3')
    b=GA+12
    for r in range(1,10):
        for k in range(4): P.i(f"v_add_f32 v{b+k}, v{b+k}, v{b+4*r+k}",cost=5)
    sv=S['sv']
    P.i(f"v_add_u32 v{GA+6}, {STAT}, v{GA+7}\nv_add_u32 v{GA+5}, {CSL}, v{GA+7}")
    P.l(f"ds_write_b128 v{GA+6}, v[{GA+8}:{GA+11}]")
    P.lock()
    P.atom(f"s_mov_b64 s[{sv}:{sv+1}], exec\ns_mov_b32 exec_lo, -1\ns_mov_b32 exec_hi, 0xffff")
    P.l(f"ds_write_b128 v{GA+5}, v[{b}:{b+3}]")
    P.atom(f"s_mov_b64 exec, s[{sv}:{sv+1}]")
    P.unlock()
    P.wl()

SPIN=1<<23
def s3_clear(P,S,srd):
    t=FV
    P.i(f"""
    v_mov_b32 v{t}, 0
    v_mov_b32 v{t+1}, 0
    s_lshl_b32 s{S['h0']}, s{S['wg']}, 2
    s_add_u32 s{S['fst']}, s{S['h0']}, {FL}
    s_sub_u32 s{S['h0']}, s{S['j']}, 16
    s_lshl_b32 s{S['h0']}, s{S['h0']}, 3
    s_add_u32 s{S['h0']}, s{S['h0']}, s{S['x']}
    s_and_b32 s{S['h1']}, s{S['wg']}, 127
    s_add_u32 s{S['h1']}, s{S['h1']}, 128
    """)
    P.atom(f"s_cmp_ge_u32 s{S['j']}, 16\ns_cselect_b32 s{S['h0']}, s{S['h0']}, s{S['h1']}")
    P.i(f"""
    s_lshl_b32 s{S['h0']}, s{S['h0']}, 2
    s_add_u32 s{S['h2']}, s{S['h0']}, {FW}
    s_lshl_b32 s{S['h0']}, s{S['rb']}, 4
    s_add_u32 s{S['h0']}, s{S['h0']}, s{S['cb']}
    s_lshl_b32 s{S['h0']}, s{S['h0']}, 7
    s_add_u32 s{S['h3']}, s{S['h0']}, {FH}
    s_lshl_b32 s{S['h0']}, s{S['x']}, 5
    s_add_u32 s{S['h0']}, s{S['h0']}, s{S['j']}
    s_lshl_b32 s{S['h0']}, s{S['h0']}, 7
    s_add_u32 s{S['h0']}, s{S['h0']}, {FD}
    s_sub_u32 s{S['h1']}, 3, s{S['nch']}
    v_mov_b32 v{t+4}, 0
    v_mov_b32 v{t+5}, 0
    v_mov_b32 v{t+6}, s{S['h1']}
    v_mov_b32 v{t+7}, 0
    """)
    sv=S['sv']
    P.lock()
    P.atom(f"s_mov_b64 s[{sv}:{sv+1}], exec\ns_mov_b64 exec, 1")
    for r in ('fst','h2','h3'):
        P.vs(f"buffer_store_dword v{t}, v{t+1}, s[{srd}:{srd+3}], s{S[r]} offen sc1",'clr',cost=30)
    P.atom(f"s_add_u32 s{S['h1']}, s{S['fst']}, {FX-FL}")
    P.vs(f"buffer_store_dword v{t}, v{t+1}, s[{srd}:{srd+3}], s{S['h1']} offen sc1",'clr',cost=30)
    P.vs(f"buffer_store_dwordx4 v[{t+4}:{t+7}], v{t+1}, s[{srd}:{srd+3}], s{S['h0']} offen sc1",'clr',cost=30)
    P.atom(f"s_mov_b64 exec, s[{sv}:{sv+1}]")
    P.unlock()
def s3_set_fl(P,S,srd,tag='pub1',extra=0):
    t=FV; sv=S['sv']
    P.wv(tag)
    P.i(f"v_mov_b32 v{t+2}, 1\nv_mov_b32 v{t+1}, 0\ns_add_u32 s{S['h0']}, s{S['fst']}, {extra}")
    P.lock()
    P.atom(f"s_mov_b64 s[{sv}:{sv+1}], exec\ns_mov_b64 exec, 1")
    P.vs(f"buffer_store_dword v{t+2}, v{t+1}, s[{srd}:{srd+3}], s{S['h0']} offen sc1",cost=30)
    P.atom(f"s_mov_b64 exec, s[{sv}:{sv+1}]")
    P.unlock()
def s3_set_fw(P,S,srd,t):
    sv=S['sv']
    P.wv('w2pub')
    P.i(f"v_mov_b32 v{t}, 1\nv_mov_b32 v{t+1}, 0\ns_lshl_b32 s{S['h0']}, s{S['u']}, 2\ns_add_u32 s{S['h0']}, s{S['h0']}, {FW}")
    P.lock()
    P.atom(f"s_mov_b64 s[{sv}:{sv+1}], exec\ns_mov_b64 exec, 1")
    P.vs(f"buffer_store_dword v{t}, v{t+1}, s[{srd}:{srd+3}], s{S['h0']} offen sc1",cost=30)
    P.atom(f"s_mov_b64 exec, s[{sv}:{sv+1}]")
    P.unlock()
def spin(uid,load,check,S,endlab,sleep=3):
    return f"""
    s_mov_b32 s{S['spin']}, 0
    Lsp{uid}:
    {check}
    s_nop 1
    s_cmp_eq_u64 vcc, exec
    s_cbranch_scc1 Lspok{uid}
    s_add_u32 s{S['spin']}, s{S['spin']}, 1
    s_cmp_gt_u32 s{S['spin']}, {SPIN}
    s_cbranch_scc1 {endlab}
    s_sleep {sleep}
    {load}
    s_waitcnt vmcnt(0)
    s_branch Lsp{uid}
    Lspok{uid}:
    """
def s3_ga_clr_load(P,S,lane,srddbg):
    P.i(f"v_and_b32 v{GA}, 1, v{lane}\nv_lshlrev_b32 v{GA}, 7, v{GA}")
    P.vl(f"buffer_load_dword v{GA+1}, v{GA}, s[{srddbg}:{srddbg+3}], 0 offen sc1",'g1',cost=30)
def s3_ga_clr_check(P,S,lane,srddbg,srd,endlab):
    P.wv('g1')
    P.atom(spin('clr',f"buffer_load_dword v{GA+1}, v{GA}, s[{srddbg}:{srddbg+3}], 0 offen sc1",f"v_cmp_eq_u32 vcc, 128, v{GA+1}",S,endlab),cost=30)
    P.i(f"""
    v_lshlrev_b32 v{GA+2}, 4, v{lane}
    v_and_b32 v{GA+3}, 15, v{lane}
    v_lshlrev_b32 v{GA+3}, 2, v{GA+3}
    s_lshl_b32 s{S['h0']}, s{S['db']}, 6
    s_add_u32 s{S['h3']}, s{S['h0']}, {FW}
    s_mov_b32 s{S['h2']}, {FL}
    """)
    P.vl(f"buffer_load_dwordx4 v[{GA+4}:{GA+7}], v{GA+2}, s[{srd}:{srd+3}], s{S['h2']} offen sc1",'g2',cost=30)
    P.vl(f"buffer_load_dword v{GA+8}, v{GA+3}, s[{srd}:{srd+3}], s{S['h3']} offen sc1",'g2',cost=30)
def s3_ga_flag_check(P,S,lane,srd,endlab):
    P.wv('g2')
    ld=f"buffer_load_dwordx4 v[{GA+4}:{GA+7}], v{GA+2}, s[{srd}:{srd+3}], s{S['h2']} offen sc1\nbuffer_load_dword v{GA+8}, v{GA+3}, s[{srd}:{srd+3}], s{S['h3']} offen sc1"
    ck=f"v_and_b32 v{GA+9}, v{GA+4}, v{GA+5}\nv_and_b32 v{GA+10}, v{GA+6}, v{GA+7}\nv_and_b32 v{GA+9}, v{GA+9}, v{GA+10}\nv_and_b32 v{GA+9}, v{GA+9}, v{GA+8}\nv_cmp_eq_u32 vcc, 1, v{GA+9}"
    P.atom(spin('fl',ld,ck,S,endlab),cost=40)
    if S.get('nodata'): return
    s3_ga_data(P,S,lane,srd)
def s3_ga_data(P,S,lane,srd):
    P.i(f"""
    v_lshlrev_b32 v{GA+7}, 4, v{lane}
    s_lshl_b32 s{S['h0']}, s{S['rb']}, 10
    s_add_u32 s{S['h0']}, s{S['h0']}, {STG}
    s_mul_i32 s{S['h1']}, s{S['cb']}, {16*768}
    s_add_u32 s{S['h1']}, s{S['h1']}, {PCS}
    """)
    P.vl(f"buffer_load_dwordx4 v[{GA+8}:{GA+11}], v{GA+7}, s[{srd}:{srd+3}], s{S['h0']} offen sc1",'g3',cost=30)
    for r in range(10):
        P.vl(f"s_add_u32 s{S['h2']}, s{S['h1']}, {768*r}\nbuffer_load_dwordx4 v[{GA+12+4*r}:{GA+15+4*r}], v{GA+7}, s[{srd}:{srd+3}], s{S['h2']} offen sc1",'g3',cost=30)

L2ONE=216
L2S=200
def ln2_loads(P,S,lane,raw=None):
    t=LS
    P.i(f"""
    v_and_b32 v{t}, 7, v{lane}                 ; row
    v_bfe_u32 v{t+1}, v{lane}, 3, 1            ; half
    v_lshrrev_b32 v{t+3}, 4, v{lane}           ; g
    v_lshl_add_u32 v{t+1}, v{t+1}, 2, v{t+3}
    v_mul_u32_u24 v{t+2}, 1280, v{t}
    v_lshl_add_u32 v{t+2}, v{t+1}, 4, v{t+2}
    s_mul_i32 s{S['h0']}, s{S['wg']}, {8*1280}
    """)
    for i in range(10):
        P.vl(f"buffer_load_dwordx4 v[{LR+4*i}:{LR+4*i+3}], v{t+2}, s[{S['srdx']}:{S['srdx']+3}], s{S['h0']} offen offset:{128*i}",'ln',cost=30)
def ln2_stats(P,S,lane,srd,flags,raw=None):
    t=LS; M=LS+4; R=LS+6; NR=LS+12; Dm=L2S; Dg=L2S+4; sv=S['sv']
    P.wv('ln')
    P.lock(); P.atom("s_setprio 1")
    for i in range(10):
        x=LR+4*i
        P.i(f"v_mfma_f32_16x16x32_bf16 v[{Dm}:{Dm+3}], v[{CONE}:{CONE+3}], v[{x}:{x+3}], {'0' if i==0 else f'v[{Dm}:{Dm+3}]'}",cost=17)
        P.i(f"v_mfma_f32_16x16x32_bf16 v[{Dg}:{Dg+3}], v[{x}:{x+3}], v[{x}:{x+3}], {'0' if i==0 else f'v[{Dg}:{Dg+3}]'}",cost=17)
    P.atom("s_setprio 0"); P.unlock()
    P.i(f"""
    v_and_b32 v{t}, 3, v{lane}
    v_and_b32 v{t+1}, 15, v{lane}
    v_lshrrev_b32 v{t+3}, 2, v{t+1}
    v_lshl_add_u32 v{t+3}, v{t+3}, 4, v{t+1}
    v_lshlrev_b32 v{t+3}, 2, v{t+3}
    """)
    P.atom(f"""
    s_nop 4
    v_cmp_eq_u32 vcc, 1, v{t}
    s_nop 1
    v_cndmask_b32 v{R}, v{Dg}, v{Dg+1}, vcc
    v_cmp_eq_u32 vcc, 2, v{t}
    s_nop 1
    v_cndmask_b32 v{R}, v{R}, v{Dg+2}, vcc
    v_cmp_eq_u32 vcc, 3, v{t}
    s_nop 1
    v_cndmask_b32 v{R}, v{R}, v{Dg+3}, vcc
    v_mov_b32 v{M}, v{Dm}
    """,cost=70)
    P.l(f"ds_bpermute_b32 v{R}, v{t+3}, v{R}",'bp',cost=10)
    P.wl('bp')
    P.atom(f"s_nop 1\nv_add_f32_dpp v{M}, v{M}, v{M} row_ror:8 row_mask:0xf bank_mask:0xf\nv_add_f32_dpp v{R}, v{R}, v{R} row_ror:8 row_mask:0xf bank_mask:0xf",cost=20)
    P.i(f"""
    v_mul_f32 v{M}, 0x3acccccd, v{M}
    v_mul_f32 v{R}, 0x3acccccd, v{R}
    v_fma_f32 v{R}, -v{M}, v{M}, v{R}
    v_max_f32 v{R}, 0, v{R}
    v_cvt_pk_bf16_f32 v{R}, v{R}, v{R}
    v_cvt_pk_bf16_f32 v{M}, v{M}, v{M}
    v_lshlrev_b32 v{R}, 16, v{R}
    v_lshlrev_b32 v{M}, 16, v{M}
    v_add_f32 v{R}, 0x3727c5ac, v{R}
    v_cvt_pk_bf16_f32 v{R}, v{R}, v{R}
    v_lshlrev_b32 v{R}, 16, v{R}
    v_sqrt_f32 v{R}, v{R}
    s_nop 0
    v_cvt_pk_bf16_f32 v{R}, v{R}, v{R}
    v_lshlrev_b32 v{R}, 16, v{R}
    v_rcp_f32 v{R}, v{R}
    s_nop 0
    v_mov_b32 v{M+1}, v{R}
    v_mul_f32 v{NR}, v{M}, v{R}
    v_sub_f32 v{NR}, 0, v{NR}
    v_mov_b32 v{NR+1}, v{R}
    v_and_b32 v{t}, 7, v{lane}
    v_lshlrev_b32 v{t+1}, 3, v{t}
    s_lshl_b32 s{S['h0']}, s{S['wg']}, 6
    s_add_u32 s{S['h0']}, s{S['h0']}, {STG}
    """,cost=6)
    P.lock()
    P.atom(f"s_mov_b64 s[{sv}:{sv+1}], exec\ns_mov_b64 exec, 0xff")
    P.vs(f"buffer_store_dwordx2 v[{M}:{M+1}], v{t+1}, s[{srd}:{srd+3}], s{S['h0']} offen {flags}",'pub1',cost=40)
    P.atom(f"s_mov_b64 exec, s[{sv}:{sv+1}]")
    P.unlock()
def ln2_norm(P,S,lane,srd,flags,raw=None):
    t=LS; NR=LS+12; F=LF
    P.i(f"""
    v_and_b32 v{t}, 7, v{lane}
    v_bfe_u32 v{t+1}, v{lane}, 3, 1
    v_lshrrev_b32 v{t+3}, 4, v{lane}
    v_lshl_add_u32 v{t+1}, v{t+1}, 2, v{t+3}
    v_mul_u32_u24 v{t+2}, {LNRS}, v{t}
    v_lshl_add_u32 v{t+2}, v{t+1}, 4, v{t+2}
    v_add_u32 v{t+2}, s{S['lb']}, v{t+2}
    """,cost=6)
    for i in range(10):
        for k in range(4):
            r=LR+4*i+k; f=F+2*((4*i+k)%8)
            P.i(f"v_lshlrev_b32 v{f}, 16, v{r}\nv_and_b32 v{f+1}, 0xffff0000, v{r}\nv_fma_f32 v{f}, v{f}, v{NR+1}, v{NR}\nv_fma_f32 v{f+1}, v{f+1}, v{NR+1}, v{NR}\nv_cvt_pk_bf16_f32 v{r}, v{f}, v{f+1}",cost=7)
        P.l(f"ds_write_b128 v{t+2}, v[{LR+4*i}:{LR+4*i+3}] offset:{128*i}",cost=35)
    P.i(f"""
    v_bfe_u32 v{t}, v{lane}, 2, 2
    v_mul_u32_u24 v{t}, {LNRS}, v{t}
    v_lshrrev_b32 v{t+1}, 4, v{lane}
    v_lshl_add_u32 v{t}, v{t+1}, 5, v{t}
    v_and_b32 v{t+1}, 3, v{lane}
    v_lshl_add_u32 v{t}, v{t+1}, 3, v{t}
    v_add_u32 v{t}, s{S['lb']}, v{t}
    v_lshlrev_b32 v{t+3}, 4, v{lane}
    s_mul_i32 s{S['h0']}, s{S['wg']}, 10240
    s_add_u32 s{S['h0']}, s{S['h0']}, {XT}
    """,cost=6)
    TR=LF+16
    for i2 in range(10):
        for h in range(2):
            P.l(f"ds_read_b64_tr_b16 v[{TR+4*i2+2*h}:{TR+4*i2+2*h+1}], v{t} offset:{128*i2+4*LNRS*h}",('lt',i2),cost=8)
        if i2>=2:
            j=i2-2; P.wl(('lt',j))
            if j%4==0 and j: P.i(f"s_add_u32 s{S['h0']}, s{S['h0']}, 4096")
            P.vs(f"buffer_store_dwordx4 v[{TR+4*j}:{TR+4*j+3}], v{t+3}, s[{srd}:{srd+3}], s{S['h0']} offen offset:{1024*(j%4)} {flags}",'pub2',cost=80)
    for j in (8,9):
        P.wl(('lt',j))
        if j%4==0 and j: P.i(f"s_add_u32 s{S['h0']}, s{S['h0']}, 4096")
        P.vs(f"buffer_store_dwordx4 v[{TR+4*j}:{TR+4*j+3}], v{t+3}, s[{srd}:{srd+3}], s{S['h0']} offen offset:{1024*(j%4)} {flags}",'pub2',cost=80)

W2R=64
def w2b_loads(P,S,srdw2):
    h0,h1,h2=S['h0'],S['h1'],S['h2']
    for k in range(3):
        P.i(f"""
        s_mul_i32 s{h0}, s{S['u']}, 3
        s_add_u32 s{h0}, s{h0}, {k}
        s_mul_hi_u32 s{h1}, s{h0}, s{S['m48']}
        s_mul_i32 s{h2}, s{h1}, 48
        s_sub_u32 s{h0}, s{h0}, s{h2}
        s_mul_i32 s{h2}, s{h0}, {32*1280}
        s_mul_i32 s{S['h3']}, s{h1}, 160
        s_add_u32 s{h2}, s{h2}, s{S['h3']}
        s_mul_i32 s{h1}, s{h1}, {5*48}
        s_add_u32 s{h1}, s{h1}, s{h0}
        s_lshl_b32 s{h1}, s{h1}, 10
        s_add_u32 s{S['wo']+k}, s{h1}, {W2F}
        """)
        for i in range(5):
            r=W2R+20*k+4*i
            P.vl(f"buffer_load_dwordx4 v[{r}:{r+3}], v{WA+i}, s[{srdw2}:{srdw2+3}], s{h2} offen",('w2',k),cost=30)
def w2b_unit(P,S,k,lane,srd,flags):
    P.wv(('w2',k))
    P.i(f"v_lshlrev_b32 v37, 4, v{lane}\nv_add_u32 v37, s{S['lb']}, v37")
    for i in range(5):
        r=W2R+20*k+4*i
        P.l(f"ds_write_b128 v37, v[{r}:{r+3}] offset:{1024*i}",cost=35)
    for dt in range(5):
        for h in range(2):
            P.l(f"ds_read_b64_tr_b16 v[{WF+4*dt+2*h}:{WF+4*dt+2*h+1}], v{WR} offset:{8*dt+1280*h}",('wt',k,dt),cost=8)
    for dt in range(5):
        P.wl(('wt',k,dt))
        P.vs(f"s_add_u32 s{S['h1']}, s{S['wo']+k}, {48*1024*dt}\nbuffer_store_dwordx4 v[{WF+4*dt}:{WF+4*dt+3}], v{WR+1}, s[{srd}:{srd+3}], s{S['h1']} offen {flags}",'w2pub',cost=80)

def s3_fx_load(P,S,lane,srd):
    P.i(f"v_lshlrev_b32 v{FV}, 4, v{lane}\ns_mov_b32 s{S.get('fxr',S['h3'])}, {FX}")
    P.vl(f"buffer_load_dwordx4 v[{FV+4}:{FV+7}], v{FV}, s[{srd}:{srd+3}], s{S.get('fxr',S['h3'])} offen sc1",'fx')
def s3_fx_check(P,S,lane,srd,endlab):
    P.wv('fx')
    ld=f"buffer_load_dwordx4 v[{FV+4}:{FV+7}], v{FV}, s[{srd}:{srd+3}], s{S.get('fxr',S['h3'])} offen sc1"
    ck=f"v_and_b32 v{FV+1}, v{FV+4}, v{FV+5}\nv_and_b32 v{FV+2}, v{FV+6}, v{FV+7}\nv_and_b32 v{FV+1}, v{FV+1}, v{FV+2}\nv_cmp_eq_u32 vcc, 1, v{FV+1}"
    P.atom(spin('fx',ld,ck,S,endlab),cost=40)

def ln3_st(P,S,lane,srd,flags,lst):
    t=LS
    P.i(f"""
    v_and_b32 v{t+4}, 7, v{lane}
    v_lshlrev_b32 v{t+4}, 3, v{t+4}
    v_add_u32 v{t+5}, {lst}, v{t+4}
    s_lshl_b32 s{S['h1']}, s{S['wg']}, 6
    s_add_u32 s{S['h1']}, s{S['h1']}, {STG}
    """)
    P.l(f"ds_read_b64 v[{t+6}:{t+7}], v{t+5}",'st')
    sv=S['sv']
    P.wl('st')
    P.lock()
    P.atom(f"s_mov_b64 s[{sv}:{sv+1}], exec\ns_mov_b64 exec, 0xff")
    P.vs(f"buffer_store_dwordx2 v[{t+6}:{t+7}], v{t+4}, s[{srd}:{srd+3}], s{S['h1']} offen {flags}",'pub1')
    P.atom(f"s_mov_b64 exec, s[{sv}:{sv+1}]")
    P.unlock()
def ln3_xt_reads(P,S,lane):
    t=LS; TR=LR
    P.i(f"""
    v_bfe_u32 v{t}, v{lane}, 2, 2
    v_mul_u32_u24 v{t}, {LNRS}, v{t}
    v_lshrrev_b32 v{t+1}, 4, v{lane}
    v_lshl_add_u32 v{t}, v{t+1}, 5, v{t}
    v_and_b32 v{t+1}, 3, v{lane}
    v_lshl_add_u32 v{t}, v{t+1}, 3, v{t}
    v_add_u32 v{t}, s{S['lb']}, v{t}
    """)
    for i2 in range(10):
        for h in range(2):
            P.l(f"ds_read_b64_tr_b16 v[{TR+4*i2+2*h}:{TR+4*i2+2*h+1}], v{t} offset:{128*i2+4*LNRS*h}",'lt')
    P.wl('lt')
def ln3_xt_stores(P,S,lane,srd,flags):
    t=LS; TR=LR
    P.i(f"v_lshlrev_b32 v{t+3}, 4, v{lane}\ns_mul_i32 s{S['h0']}, s{S['wg']}, 10240\ns_add_u32 s{S['h0']}, s{S['h0']}, {XT}")
    for j in range(10):
        if j%4==0 and j: P.i(f"s_add_u32 s{S['h0']}, s{S['h0']}, 4096")
        P.vs(f"buffer_store_dwordx4 v[{TR+4*j}:{TR+4*j+3}], v{t+3}, s[{srd}:{srd+3}], s{S['h0']} offen offset:{1024*(j%4)} {flags}",'pub2')

CF2=72
def CDR2(i): return 168+4*i
def cs2_reads(P,S):
    for s_ in range(2):
        for i,(mat,c) in enumerate(CSEQ):
            b=CF2+48*s_+4*i
            for h in range(2): P.l(f"ds_read_b64_tr_b16 v[{b+2*h}:{b+2*h+1}], v{CA} offset:{mat*W3OFF+6144*s_+768*h+32*c}",'cs2')
    P.wl('cs2')
def cs2_mfma(P,S):
    for s_ in range(2):
        P.lock(); P.atom("s_setprio 1")
        for i,(mat,c) in enumerate(CSEQ):
            b=CF2+48*s_+4*i; d=CDR2(i)
            src=f"v[{d}:{d+3}]" if s_ else "0"
            P.i(f"v_mfma_f32_16x16x32_bf16 v[{d}:{d+3}], v[{b}:{b+3}], v[{CONE}:{CONE+3}], {src}")
        P.atom("s_setprio 0"); P.unlock()
```

```python
HF   = 0
XT   = 6<<20
AT   = XT+0x280000
W2F  = AT+0x280000
STG  = W2F+0x1E0000
PCS  = STG+0x4000
FST  = PCS+0x30000
FCS  = FST+4096
FD   = FST+8192
FL   = FST+(64<<10)
FW   = FL+4096
FH   = FL+8192
FX   = FL+49152
WSEND= FX+4096
KTG  = 16<<20
STAMP= 48<<20
```

```python
import sys, os
from g32lib import *
from kgenlib import *
from htasks import *
import conv3lib as CV
from asmlib import KMAIN
DIAG=bool(os.environ.get('DIAG'))
E=lambda k,d: int(os.environ.get(k,d))
S=dict(x=20,j=21,rb=22,cb=23,hw=24,w=25,wf=26,wt=27,t0=28,t1=29,sx=30,sw=31,mx=32,mw=33,sl=34,rot=35,
       srdx=8,srd1=12,srd3=16,hb=60,ho=61,wg=2,
       ch=88,kb=89,k0=90,k1=91,sv=92,h0=94,h1=95,h2=96,h3=97,lb=98,u=99,m48=100,nch=101,
       sA=40,sI=44,sR=48,sC=52,sD=56,fst=72,fcs=73,db=3,spin=82,lnb=83)
WS=36
KB0=HSCR
LB_L=HSCR+3*KSCR
LB_W=HSCR+2*KSCR
LCNT=LB_L+11008
LST=LCNT+64
LDS_S3=LCNT+2816
WPF=40960; WPFW=20480
ATL=LB_L; ATRS=136
HLANE=11
END="Lmain_end"
class St:
    def __init__(s,regs): s.regs=list(regs); s.used={}
    def __call__(s,A,idx,rt=False):
        if not DIAG: return
        if os.environ.get('GDIAG')=='rt':
            if idx not in (1,3,5,6,8,11,32): return
            rt=True
        if idx in s.used or not s.regs: return
        r=s.regs.pop(0); s.used[idx]=r
        A(f"{'s_memrealtime' if rt else 's_memtime'} s[{r}:{r+1}]")
    def dump(s,A):
        if not DIAG: return
        A(f"s_waitcnt vmcnt(0) lgkmcnt(0)\ns_lshl_b32 s27, s2, 11\ns_lshl_b32 s28, s25, 8\ns_add_u32 s27, s27, s28\ns_add_u32 s27, s27, {STAMP}\nv_mov_b32 v9, 0\ns_mov_b64 exec, 1")
        for idx,r in s.used.items():
            A(f"v_mov_b32 v10, s{r}\nbuffer_store_dword v10, v9, s[36:39], s27 offen offset:{4*idx}")
def mark(P,st): P.it.append(('MARK',st,0))
def must(P,st): P.it.append(('MUST',st,0))
def h_schedule(A,P,budget,pre,sv,which=range(10),hook=None,emref=None):
    Em=Emit(A)
    if emref is not None: emref[0]=Em
    items=list(P.it); pos=[0]; locked=[0]
    def run_until(cost,window):
        c=0
        while pos[0]<len(items):
            x=items[pos[0]]
            if x[0]=='MARK':
                if x[1]>window: return
                pos[0]+=1; continue
            if x[0]=='MUST': pos[0]+=1; continue
            if x[0]=='LOCK': locked[0]=x[1]; pos[0]+=1; continue
            force=any(y[0]=='MUST' and y[1]<=window for y in items[pos[0]:])
            if c>=cost and not locked[0] and not force: return
            Em.item(x); c+=x[2]; pos[0]+=1
    run_until(pre,-1)
    for st in range(NST):
        if st in which: sv(A,16+st)
        A("s_barrier")
        if hook and st in hook: hook[st]()
        run_until(budget,st)
    return Em,items[pos[0]:]
def g2_phase(A,stamp):
    ACC2=0; WR_=80; HR=160; TT=208; MS=228
    VL=MS; VLN=MS+3; VT=MS+4
    lane=VLANE
    A(f"""
    s_waitcnt vmcnt(0)
    v_mov_b32 v{VT0}, {LCNT}
    v_mov_b32 v{VT0+1}, 1
    s_mov_b64 s[58:59], exec
    s_mov_b64 exec, 1
    ds_add_rtn_u32 v{VT0+2}, v{VT0}, v{VT0+1}
    s_waitcnt lgkmcnt(0)
    v_readfirstlane_b32 s28, v{VT0+2}
    s_nop 3
    s_cmp_eq_u32 s28, 3
    s_cbranch_scc0 Lnopubh
    s_lshl_b32 s28, s22, 4
    s_add_u32 s28, s28, s23
    s_lshl_b32 s28, s28, 7
    s_add_u32 s28, s28, {FH}
    v_mov_b32 v{VT0}, 0
    buffer_store_dword v{VT0+1}, v{VT0}, s[36:39], s28 offen sc1
    Lnopubh:
    s_mov_b64 exec, s[58:59]
    """)
    stamp(A,5)
    A(f"""
    s_lshr_b32 s49, s20, 1
    s_lshl_b32 s49, s49, 3
    s_and_b32 s28, s21, 7
    s_add_u32 s49, s49, s28
    v_mov_b32 v{VLN}, v{lane}
    v_lshlrev_b32 v{VL}, 4, v{lane}
    v_add_u32 v{VL+1}, 4096, v{VL}
    v_add_u32 v{VL+2}, 8192, v{VL}
    s_mul_i32 s26, s25, 12
    """)
    for dt in range(5):
        A(f"s_mul_i32 s27, s3, 5\ns_add_u32 s27, s27, {dt}\ns_mul_i32 s27, s27, 48\ns_add_u32 s27, s27, s26\ns_lshl_b32 s27, s27, 10\ns_add_u32 s{44+dt}, s27, {W2F}")
    vm=[]
    def wreg(k,dt): return WR_+20*k+4*dt
    def hreg(s,nt): return HR+16*(s%3)+4*nt
    def wl(s,k,tag=None):
        va=VL+(s>>2); imm=1024*(s&3)
        for dt in range(5):
            A(f"buffer_load_dwordx4 v[{wreg(k,dt)}:{wreg(k,dt)+3}], v{va}, s[36:39], s{44+dt} offen offset:{imm} {os.environ.get('WSC','sc1')}"); vm.append(tag or ('w',s))
    def hl(s):
        va=VL+(s>>2); imm=1024*(s&3)
        for nt in range(4):
            A(f"buffer_load_dwordx4 v[{hreg(s,nt)}:{hreg(s,nt)+3}], v{va}, s[36:39], s{30+nt} offen offset:{imm} {os.environ.get('HSC','sc1')}"); vm.append(('h',s))
    def wait(*tags):
        idx=max(max(i for i,t in enumerate(vm) if t==tag) for tag in tags); A(f"s_waitcnt vmcnt({min(63,len(vm)-1-idx)})")
    for k in range(4): wl(4+k,k)
    A(f"s_mul_i32 s27, s25, {WPFW}\ns_add_u32 s27, s27, {WPF}\nv_add_u32 v{VT}, s27, v{VL}")
    for nt in range(4):
        A(f"s_lshl_b32 s27, s49, 2\ns_add_u32 s27, s27, {nt}\ns_mul_i32 s27, s27, 48\ns_add_u32 s27, s27, s26\ns_lshl_b32 s27, s27, 10\ns_add_u32 s{30+nt}, s27, {HF}")
    for k in range(4):
        wait(('w',4+k))
        for dt in range(5): A(f"ds_write_b128 v{VT}, v[{wreg(k,dt)}:{wreg(k,dt)+3}] offset:{(k*5+dt)*1024}")
    A("s_waitcnt lgkmcnt(0)")
    for k in range(4): wl(k,k)
    for i in range(80): A(f"v_mov_b32 v{ACC2+i}, 0")
    A(f"""
    v_and_b32 v{VT+1}, 3, v{VLN}
    v_lshlrev_b32 v{VT+1}, 7, v{VT+1}
    s_lshr_b32 s27, s49, 1
    s_lshl_b32 s27, s27, 11
    s_lshl_b32 s28, s25, 9            ; this wave's K quarter comes from column blocks 4w..4w+3
    s_add_u32 s27, s27, s28
    s_add_u32 s50, s27, {FH}
    buffer_load_dword v{VT+2}, v{VT+1}, s[36:39], s50 offen sc1
    s_waitcnt vmcnt(0)
    """)
    A(spin('h',f"buffer_load_dword v{VT+2}, v{VT+1}, s[36:39], s50 offen sc1",f"v_cmp_eq_u32 vcc, 1, v{VT+2}",S,END,sleep=1))
    stamp(A,6)
    vm.clear()
    for s in range(3): hl(s)
    lg=[]
    def tread(s,dt):
        A(f"ds_read_b128 v[{TT+4*dt}:{TT+4*dt+3}], v{VT} offset:{((s-4)*5+dt)*1024}"); lg.append((s,dt))
    def lwait(tag):
        idx=lg.index(tag); A(f"s_waitcnt lgkmcnt({len(lg)-1-idx})")
    PF=VT+4; assert PF%2==0
    XR=TT
    XA=VT+8; ATG=VT+9; ATA=VT+10; AS=WR_
    A(f"""
    v_and_b32 v{VT+3}, 31, v{VLN}
    v_lshlrev_b32 v{VT+3}, 7, v{VT+3}
    s_lshl_b32 s41, s3, 12
    s_add_u32 s41, s41, {FD}
    v_and_b32 v{VT+11}, 15, v{VLN}
    v_lshrrev_b32 v{VT+12}, 4, v{VLN}
    v_mul_u32_u24 v{VT+11}, 1280, v{VT+11}
    v_mul_u32_u24 v{VT+12}, 40, v{VT+12}
    v_add_u32 v{XA}, v{VT+11}, v{VT+12}
    s_lshl_b32 s27, s49, 6
    s_lshl_b32 s28, s25, 4
    s_add_u32 s27, s27, s28
    s_mul_i32 s27, s27, 1280
    s_mul_i32 s28, s3, 160
    s_add_u32 s40, s27, s28
    v_lshrrev_b32 v{VT+11}, 3, v{VLN}
    v_and_b32 v{VT+12}, 7, v{VLN}
    v_lshlrev_b32 v{ATG}, 12, v{VT+11}
    v_lshl_add_u32 v{ATG}, v{VT+12}, 4, v{ATG}
    v_mul_u32_u24 v{ATA}, {ATRS}, v{VT+11}
    v_lshl_add_u32 v{ATA}, v{VT+12}, 4, v{ATA}
    s_mul_i32 s27, s3, {80*4096}
    s_lshl_b32 s28, s49, 7
    s_add_u32 s27, s27, s28
    s_lshl_b32 s28, s25, 15
    s_add_u32 s27, s27, s28
    s_add_u32 s42, s27, {AT}
    s_mul_i32 s28, s25, {8*ATRS}
    s_add_u32 s43, s28, {ATL}
    v_add_u32 v{ATA}, s43, v{ATA}
    s_mov_b32 s51, 0
    """)
    def atloads(u):
        for i in range(3):
            if i<2: A(f"s_add_u32 s27, s42, {i*32*4096}\nbuffer_load_dwordx4 v[{AS+4*i}:{AS+4*i+3}], v{ATG}, s[36:39], s27 offen sc1")
            else: A(f"s_cmp_lt_u32 s25, 2\ns_cbranch_scc0 Lnoat{u}\ns_add_u32 s27, s42, {i*32*4096}\nbuffer_load_dwordx4 v[{AS+4*i}:{AS+4*i+3}], v{ATG}, s[36:39], s27 offen sc1\nLnoat{u}:")
    fdchk=f"v_and_b32 v{PF}, v{PF}, v{PF+1}\nv_and_b32 v{PF}, v{PF}, v{PF+2}\nv_cmp_eq_u32 vcc, 1, v{PF}"
    fdld=f"buffer_load_dwordx4 v[{PF}:{PF+3}], v{VT+3}, s[36:39], s41 offen sc1"
    pend=[]
    def one_h(s,nt):
        va=VL+(s>>2); imm=1024*(s&3)
        A(f"buffer_load_dwordx4 v[{hreg(s,nt)}:{hreg(s,nt)+3}], v{va}, s[36:39], s{30+nt} offen offset:{imm} {os.environ.get('HSC','sc1')}"); vm.append(('h',s))
    def one_w(s,k,dt):
        va=VL+(s>>2); imm=1024*(s&3)
        A(f"buffer_load_dwordx4 v[{wreg(k,dt)}:{wreg(k,dt)+3}], v{va}, s[36:39], s{44+dt} offen offset:{imm} {os.environ.get('WSC','sc1')}"); vm.append(('w',s))
    hq=[]; wq=[]
    def pump(n=1):
        for _ in range(n):
            if hq: f=hq.pop(0); f()
            elif wq: f=wq.pop(0); f()
    for s in range(12):
        tags=[('h',s)]+([('w',s)] if s>=8 else [])
        assert not any(True for f in hq if f.step<=s), "h load not issued in time"
        if s<=10: wait(*tags)
        if s==0: stamp(A,7)
        if os.environ.get('GDIAG')=='g2' and s in (1,2,3,4,6,8,10): stamp(A,40+s)
        lds=4<=s<8
        if lds:
            for dt in range(5):
                lwait((s,dt)); a_=TT+4*dt
                for nt in range(4):
                    a=ACC2+(nt*5+dt)*4
                    A(f"v_mfma_f32_16x16x32_bf16 v[{a}:{a+3}], v[{a_}:{a_+3}], v[{hreg(s,nt)}:{hreg(s,nt)+3}], v[{a}:{a+3}]")
                if s<7: tread(s+1,dt)
                pump()
            if s+3<12:
                for nt in range(4):
                    f=(lambda s_=s+3,nt_=nt: one_h(s_,nt_)); f.step=s+3; hq.append(f)
        else:
            for nt in range(4):
                for dt in range(5):
                    a=ACC2+(nt*5+dt)*4; a_=wreg(s%4,dt)
                    A(f"v_mfma_f32_16x16x32_bf16 v[{a}:{a+3}], v[{a_}:{a_+3}], v[{hreg(s,nt)}:{hreg(s,nt)+3}], v[{a}:{a+3}]")
                    if s==3 and nt==3: tread(4,dt)
                    if dt==1 and nt>0: pump()
                if s+3<12:
                    f=(lambda s_=s+3,nt_=nt: one_h(s_,nt_)); f.step=s+3; hq.append(f)
                pump()
            if s<4:
                for dt in range(5):
                    f=(lambda s_=8+s,k_=s,dt_=dt: one_w(s_,k_,dt_)); f.step=8+s; wq.append(f)
        if s==7:
            pump(len(hq)+len(wq))
        if s==8:
            pump(len(hq)+len(wq))
            A(fdld); vm.append(('p',0))
            A(f"buffer_load_dwordx4 v[{XR}:{XR+3}], v{XA}, s[8:11], s40 offen\nbuffer_load_dwordx4 v[{XR+4}:{XR+7}], v{XA}, s[8:11], s40 offen offset:16\nbuffer_load_dwordx2 v[{XR+8}:{XR+9}], v{XA}, s[8:11], s40 offen offset:32")
            vm.extend([('x',0)]*3)
        if s==10:
            wait(('p',0))
            A(fdchk+"\ns_nop 1\ns_cmp_eq_u64 vcc, exec\ns_cbranch_scc0 Lnotyet\ns_mov_b32 s51, 1")
            atloads('e')
            A("Lnotyet:")
    assert not hq and not wq
    stamp(A,8)
    FR=96
    A(f"s_cmp_eq_u32 s51, 1\ns_cbranch_scc1 Lhave\n{fdld}\ns_waitcnt vmcnt(0)")
    A(spin('d',fdld,fdchk,S,END,sleep=1))
    atloads('l')
    A("Lhave:")
    VA=ATA
    R0=FR
    A(f"v_add_u32 v{VL+1}, {WPF}, v{VL}\nv_add_u32 v{VL+2}, {WPF+49152}, v{VL}")
    for w in range(4):
        lab=A.label('w')
        if w<3: A(f"s_cmp_lg_u32 s25, {w}\ns_cbranch_scc1 {lab}")
        for nt in range(4):
            if nt==w: continue
            sl=nt if nt<w else nt-1
            for dt in range(5):
                a=ACC2+(nt*5+dt)*4
                off=w*WPFW+(sl*5+dt)*1024
                va,o=(VL+1,off) if off<65536-1024 else (VL+2,off-49152)
                if w==0 and nt==1 and dt==0: pass
                A(f"ds_write_b128 v{va}, v[{a}:{a+3}] offset:{o}")
        A("s_waitcnt vmcnt(0)")
        for i in range(3):
            if i==2 and w>=2: continue
            for h in range(2): A(f"ds_write_b64 v{VA}, v[{AS+4*i+2*h}:{AS+4*i+2*h+1}] offset:{i*32*ATRS+8*h}")
        A("s_waitcnt lgkmcnt(0)\ns_barrier")
        kk=0
        for src in range(4):
            if src==w: continue
            sl=w if w<src else w-1
            for dt in range(5):
                off=src*WPFW+(sl*5+dt)*1024
                va,o=(VL+1,off) if off<65536-1024 else (VL+2,off-49152)
                A(f"ds_read_b128 v[{R0+(kk*5+dt)*4}:{R0+(kk*5+dt)*4+3}], v{va} offset:{o}")
            kk+=1
        if w:
            for r in range(20): A(f"v_mov_b32 v{ACC2+r}, v{ACC2+w*20+r}")
        if w<3: A(f"s_branch Lred\n{lab}:")
    A("Lred:")
    A(f"""
    v_lshrrev_b32 v{VT}, 4, v{VLN}
    v_mul_u32_u24 v{VT}, 20, v{VT}
    v_bfe_u32 v{VT+1}, v{VLN}, 2, 2
    v_add_u32 v{VT}, v{VT}, v{VT+1}
    v_mul_u32_u24 v{VT}, {ATRS}, v{VT}
    v_and_b32 v{VT+1}, 3, v{VLN}
    v_lshl_add_u32 v{VT}, v{VT+1}, 3, v{VT}
    s_lshl_b32 s27, s25, 5
    s_add_u32 s27, s27, {ATL}
    v_add_u32 v{VT}, s27, v{VT}
    """)
    AR=R0+60
    for dt in range(5): A(f"ds_read_b64_tr_b16 v[{AR+2*dt}:{AR+2*dt+1}], v{VT} offset:{4*dt*ATRS}")
    A(f"s_waitcnt lgkmcnt(5)")
    for src in range(3):
        for r in range(0,20,2): A(f"v_pk_add_f32 v[{ACC2+r}:{ACC2+r+1}], v[{ACC2+r}:{ACC2+r+1}], v[{R0+src*20+r}:{R0+src*20+r+1}]")
    stamp(A,9)
    A("s_waitcnt lgkmcnt(0)")
    W=R0
    for e2 in range(10):
        x=XR+e2; a=AR+e2; b0=ACC2+2*e2; w=W+4*(e2%4)
        A(f"""
        v_lshlrev_b32 v{w}, 16, v{x}
        v_and_b32 v{w+1}, 0xffff0000, v{x}
        v_lshlrev_b32 v{w+2}, 16, v{a}
        v_and_b32 v{w+3}, 0xffff0000, v{a}
        v_pk_add_f32 v[{b0}:{b0+1}], v[{b0}:{b0+1}], v[{w}:{w+1}]
        v_pk_add_f32 v[{b0}:{b0+1}], v[{b0}:{b0+1}], v[{w+2}:{w+3}]
        v_cvt_pk_bf16_f32 v{W+20+e2}, v{b0}, v{b0+1}
        """)
    A(f"buffer_store_dwordx4 v[{W+20}:{W+23}], v{XA}, s[52:55], s40 offen\nbuffer_store_dwordx4 v[{W+24}:{W+27}], v{XA}, s[52:55], s40 offen offset:16\nbuffer_store_dwordx2 v[{W+28}:{W+29}], v{XA}, s[52:55], s40 offen offset:32")
def build(A):
    n=KMAIN; A.begin(n)
    A("s_cmp_ge_u32 s2, 256\ns_cbranch_scc1 Lmain_end")
    A(f"""
    s_load_dwordx2 s[4:5], s[0:1], {ARG['u']}
    s_load_dwordx4 s[76:79], s[0:1], {ARG['w1']}
    s_load_dwordx4 s[84:87], s[0:1], {ARG['dbg']}
    s_load_dwordx8 s[64:71], s[0:1], {ARG['logA']}
    s_load_dwordx2 s[74:75], s[0:1], {ARG['logdt']}
    s_load_dwordx4 s[44:47], s[0:1], {ARG['w2']}      ; w2, out
    s_load_dwordx2 s[18:19], s[0:1], {ARG['Dskip']}
    s_and_b32 s20, s2, 7          ; x
    s_lshr_b32 s21, s2, 3         ; j
    s_and_b32 s22, s20, 1
    s_lshl_b32 s22, s22, 3
    s_and_b32 s23, s21, 7
    s_add_u32 s22, s22, s23       ; rb
    s_lshr_b32 s23, s20, 1
    s_lshl_b32 s23, s23, 2
    s_lshr_b32 s24, s21, 3
    s_add_u32 s23, s23, s24       ; cb
    s_and_b32 s3, s20, 1
    s_lshl_b32 s3, s3, 2
    s_add_u32 s3, s3, s24
    v_lshrrev_b32 v1, 6, v0
    s_cmp_ge_u32 s22, 10
    s_cselect_b32 s35, 10, 0
    v_readfirstlane_b32 s25, v1   ; wave
    s_sub_u32 s35, s22, s35       ; rot
    s_nop 2
    s_and_b32 s26, s25, 1         ; wf
    s_bfe_u32 s27, s25, 0x10001   ; wt
    s_and_b32 s24, s25, 3         ; hw
    s_cmp_ge_u32 s25, 4
    s_cbranch_scc1 Lhrole
    """)
    GLN=E('GLN',0)
    g_dma_addr(A,S)
    if GLN: g_ln_loads(A,S)
    A("s_waitcnt lgkmcnt(0)")
    A.srd(8,4,SIZE['u']); A.srd(12,76,SIZE['w1']); A.srd(16,78,SIZE['w3']); A.srd(WS,86,SIZE['ws']); A.srd(52,46,SIZE['out'])
    stamp=St(list(range(64,76,2))+[80]+list(range(84,102,2))+[56,42+0])
    stamp.regs=[r for r in stamp.regs if r not in (42,82)]
    stamp(A,0); stamp(A,1,True)
    PRE=E('GPRE',2)
    if GLN: g_ln_issue(A,S)
    for l in g_dma(S,0): A(l)
    g_lds_addr(A,S)
    for l in g_dma(S,1): A(l)
    A(f"s_cmp_eq_u32 s25, 0\ns_cbranch_scc0 Lnoci\nv_mov_b32 v{VT0}, {LCNT}\nv_mov_b32 v{VT0+1}, 0\nds_write_b32 v{VT0}, v{VT0+1}\nds_write_b32 v{VT0}, v{VT0+1} offset:4\nLnoci:")
    for i in range(96): A(f"v_mov_b32 v{ACC+i}, 0")
    if GLN:
        A("s_waitcnt vmcnt(20)")
        g_ln_compute(A,S,LB_L,LNRS,LST)
    def gstamp(st):
        if os.environ.get('GDIAG')=='win':
            if not isinstance(st,tuple): stamp(A,32+st)
            elif st[1] in (1,2,3,4,5): stamp(A,48+st[1])
        elif os.environ.get('GDIAG')=='g2': pass
        elif os.environ.get('GDIAG')=='rt':
            if st==0: stamp(A,32)
        elif not isinstance(st,tuple) and st in (0,3,6,9): stamp(A,32+st)
    g_loop(A,S,gstamp if DIAG else None,PRE=PRE)
    stamp(A,2)
    A("s_barrier")
    stamp(A,3)
    g_epilogue(A,S,WS,HF,'sc1')
    A(f"v_mov_b32 v{VT0}, {LCNT+4}\nv_mov_b32 v{VT0+1}, 1\ns_mov_b64 s[58:59], exec\ns_mov_b64 exec, 1\nds_add_u32 v{VT0}, v{VT0+1}\ns_mov_b64 exec, s[58:59]")
    stamp(A,4)
    g2_phase(A,stamp)
    stamp(A,10); stamp(A,11,True)
    stamp.dump(A)
    A("s_branch Lmain_end")
    A("Lhrole:")
    A(f"v_and_b32 v{HLANE}, 63, v0")
    A(f"""
    s_mul_i32 s28, s21, 3
    s_lshl_b32 s29, s21, 1
    s_add_u32 s29, s29, 16
    s_cmp_lt_u32 s21, 16
    s_cselect_b32 s28, s28, s29
    s_cselect_b32 s101, 3, 2          ; nch
    s_mul_i32 s29, s20, 80
    s_add_u32 s28, s28, s29
    s_add_u32 s88, s28, s24           ; channel
    s_mul_i32 s89, s24, {KSCR}
    s_add_u32 s89, s89, {KB0}
    s_waitcnt lgkmcnt(0)
    s_mov_b32 s80, s44
    s_mov_b32 s81, s45
    """)
    A.srd(8,4,SIZE['u']); A.srd(WS,86,SIZE['ws'])
    A("s_cmp_eq_u32 s24, 3\ns_cbranch_scc1 Lrole_l\ns_cmp_lt_u32 s24, s101\ns_cbranch_scc0 Lrole_w")
    A.srd(40,64,245760); A.srd(44,66,245760); A.srd(48,68,245760); A.srd(52,70,245760); A.srd(56,74,1280); A.srd(12,18,SIZE['Dskip'])
    stamp=St([64,66,68,70,74,76,78,80,60,62,4,6]); stamp(A,0)
    SK=dict(S); SK['kb']=89
    P=Prog(); mark(P,-1); P.atom('s_setprio 3'); kgen_loads(P,S,HLANE,KV)
    P.i(f"s_lshl_b32 s29, s88, 1\nv_mov_b32 v30, s29"); P.vl("buffer_load_ushort v29, v30, s[12:15], 0 offen",'kp2',cost=30); P.atom('s_setprio 0')
    kgen_setup(P,S,HLANE); kgen_dt(P,S); P.wv('kp2'); kgen_groups(P,os.environ.get('PKG0','rows'),tailpk=bool(E('TAILPK',1)))
    SO=dict(S); SO['kb']=73
    P.i(f"s_add_u32 s73, s89, 16\nv_mov_b32 v28, s89\nv_mov_b32 v27, 0")
    kgen_out(P,SO,HLANE,WS,"",tolds=False) if False else None
    Pout=Prog(); Pout.l("ds_write_b32 v28, v27 offset:12"); kgen_out(Pout,SO,HLANE,WS,"",tolds=True)
    P.ext(Pout)
    P=schedule(P)
    if os.environ.get('KNOWR'): P.it=[x if not (x[0]=='L' and 'ds_write' in x[1]) else ('I','s_nop 0',4) for x in P.it]
    if os.environ.get('KNOVALU'): P.it=[x for x in P.it if not (x[0]=='I' and x[1].startswith('v_') and 'mfma' not in x[1] and 'readfirst' not in x[1])]
    SC=dict(base=30,ch=88,srd=36,t0=28,t1=29,sv=92,m0=52,m1=54,m2=56,dsk=33,kt=73,lane=HLANE)
    def w8hook():
        A(f"v_lshlrev_b32 v26, 4, v{HLANE}\ns_mov_b32 s31, {FX}\nbuffer_load_dwordx4 v[20:23], v26, s[36:39], s31 offen sc1")
        Em_[0].vm.append(('L','fx'))
    def w9hook():
        Em_[0].wait_vm('fx')
        A(spin('x',"buffer_load_dwordx4 v[20:23], v26, s[36:39], s31 offen sc1","v_and_b32 v24, v20, v21\nv_and_b32 v25, v22, v23\nv_and_b32 v24, v24, v25\nv_cmp_eq_u32 vcc, 1, v24",S,END))
        A(f"s_mul_i32 s30, s24, {CV.CW3}")
        CV.u_loads(A,SC)
        for q in range(4): Em_[0].vm.append(('L','u'))
    Em_=[None]
    Em,rest=h_schedule(A,P,E('KB',850),E('PREK',900),stamp,(0,3,6,9),hook={8:w8hook,9:w9hook},emref=Em_)
    A("s_barrier")
    A(f"s_setprio {E('XPRIO',2)}")
    stamp(A,2)
    for x in rest: Em.item(x)
    print("K role: total",sum(x[2] for x in P.it),"left after loop",sum(x[2] for x in rest))
    stamp(A,3)
    A("s_waitcnt vmcnt(0)\nv_lshlrev_b32 v29, 16, v29\ns_nop 0\nv_readfirstlane_b32 s33, v29")
    CV.u_store(A,SC)
    CV.conv_setup(A,SC)
    A("s_waitcnt lgkmcnt(0)")
    CV.conv_expand(A,SC)
    A("s_waitcnt lgkmcnt(0)")
    if E('CWAIT',1):
        A(f"""
        s_setprio 0
        v_mov_b32 v{CV.CTMP}, {LCNT+4}
        s_mov_b32 s34, 0
        Lcw:
        ds_read_b32 v{CV.CTMP+1}, v{CV.CTMP}
        s_waitcnt lgkmcnt(0)
        v_readfirstlane_b32 s28, v{CV.CTMP+1}
        s_add_u32 s34, s34, 1
        s_cmp_gt_u32 s34, {1<<24}
        s_cbranch_scc1 {END}
        s_cmp_eq_u32 s28, 4
        s_cbranch_scc1 Lcwok
        s_sleep 1
        s_branch Lcw
        Lcwok:
        """)
    stamp(A,4)
    A(f"s_setprio {E('CPRIO',1)}")
    CV.conv_main(A)
    A("s_nop 7")
    stamp(A,5)
    CV.conv_epilogue(A,SC,"sc1")
    A(f"""
    s_waitcnt vmcnt(0)
    s_lshl_b32 s28, s20, 5
    s_add_u32 s28, s28, s21
    s_lshl_b32 s28, s28, 7
    s_lshl_b32 s29, s24, 2
    s_add_u32 s28, s28, s29
    s_add_u32 s28, s28, {FD}
    v_mov_b32 v{CV.CTMP}, 0
    v_mov_b32 v{CV.CTMP+1}, 1
    s_mov_b64 s[92:93], exec
    s_mov_b64 exec, 1
    buffer_store_dword v{CV.CTMP+1}, v{CV.CTMP}, s[36:39], s28 offen sc1
    s_mov_b64 exec, s[92:93]
    """)
    stamp(A,6)
    stamp.dump(A)
    A("s_branch Lmain_end")
    A("Lrole_w:")
    A.srd(40,80,SIZE['w2'])
    A(f"s_sub_u32 s99, s21, 16\ns_lshl_b32 s99, s99, 3\ns_add_u32 s99, s99, s20\ns_mov_b32 s100, {magic(48)}\ns_mov_b32 s98, {LB_W}")
    SW=dict(S); SW['wo']=88
    P=Prog(); mark(P,-1); w2_setup(P,SW,HLANE); mark(P,0); w2b_loads(P,SW,40)
    for k in range(3):
        mark(P,k+1); w2b_unit(P,SW,k,HLANE,WS,"sc1")
    mark(P,5); s3_set_fw(P,SW,WS,WF); must(P,5)
    stamp=St([64,66,68,70,74,76,78,84,86,60,62]); Em,rest=h_schedule(A,P,800,600,stamp)
    assert not [x for x in rest if x[0] not in('MARK','MUST','LOCK')]
    A("s_barrier")
    stamp.dump(A)
    A("s_branch Lmain_end")
    A("Lrole_l:")
    A.srd(40,84,256)
    A(f"s_mov_b32 s98, {LB_L}")
    LP=None
    if E('GLN',0):
        RT=os.environ.get('GDIAG')=='rt' and DIAG
        def rts(r):
            if RT: P.atom(f"s_memrealtime s[{r}:{r+1}]")
        P=Prog(); mark(P,-1); s3_clear(P,S,WS); cs_setup(P,S,HLANE)
        if os.environ.get('LSCHED','early')=='early':
            mark(P,0); fl_cleared(P,S,40); cs_reads(P,S,0); cs_mfma(P,S,0); cs_reads(P,S,1); P.wl(('cs',1)); must(P,0)
            mark(P,1); cs_mfma(P,S,1); ln3_xt_reads(P,S,HLANE); ln3_st(P,S,HLANE,WS,"sc1",LST); cs_store(P,S,HLANE,WS,"sc1"); must(P,1)
            mark(P,2); s3_set_fl(P,S,WS,'pub1',0); rts(64); ln3_xt_stores(P,S,HLANE,WS,"sc1")
            mark(P,5); s3_set_fl(P,S,WS,'pub2',FX-FL); rts(66)
        elif os.environ.get('LSCHED')=='mid':
            mark(P,0); cs2_reads(P,S); must(P,0); fl_cleared(P,S,40)
            mark(P,1); cs2_mfma(P,S); ln3_st(P,S,HLANE,WS,"sc1",LST); cs_store(P,S,HLANE,WS,"sc1",stage=STAT,CDR=CDR2,CFR=72)
            mark(P,2); ln3_xt_reads(P,S,HLANE); s3_set_fl(P,S,WS,'pub1',0); rts(64); ln3_xt_stores(P,S,HLANE,WS,"sc1")
            mark(P,4); s3_set_fl(P,S,WS,'pub2',FX-FL); rts(66)
        mark(P,6); s3_ga_clr_load(P,S,HLANE,40)
        mark(P,7); rts(68); s3_ga_clr_check(P,S,HLANE,40,WS,END); rts(70); must(P,7)
        mark(P,8); rts(74); s3_ga_flag_check(P,S,HLANE,WS,END); rts(76)
        mark(P,9); ga_finish(P,S,HLANE); rts(78); must(P,9)
    else:
        P=Prog(); mark(P,-1); P.atom("s_setprio 3"); ln2_loads(P,S,HLANE); P.atom("s_setprio 0"); s3_clear(P,S,WS); cs_setup(P,S,HLANE)
        mark(P,0); fl_cleared(P,S,40); cs_reads(P,S,0); cs_mfma(P,S,0); cs_reads(P,S,1); P.wl(('cs',1)); must(P,0)
        cs_mfma(P,S,1); cs_store(P,S,HLANE,WS,"sc1")
        ln2_stats(P,S,HLANE,WS,"sc1")
        Pn=Prog(); ln2_norm(Pn,S,HLANE,WS,"sc1")
        n1=len(Pn.it)//4
        P.it+=Pn.it[:n1]
        mark(P,3); s3_set_fl(P,S,WS,'pub1',0)
        P.it+=Pn.it[n1:]
        mark(P,5); s3_ga_clr_load(P,S,HLANE,40)
        mark(P,6); s3_ga_clr_check(P,S,HLANE,40,WS,END); must(P,7)
        mark(P,7); s3_set_fl(P,S,WS,'pub2',FX-FL); s3_ga_flag_check(P,S,HLANE,WS,END)
        mark(P,9); ga_finish(P,S,HLANE); must(P,9)
    P=schedule(P)
    stamp=St([44,46,48,50,52,54,56,58,60,62,4]); stamp(A,0)
    if DIAG and os.environ.get('GDIAG')=='rt' and E('GLN',0): stamp.used.update({2:64,3:66,4:68,5:70,6:74,7:76,8:78})
    if LP: stamp.used.update({2:64,3:66,4:68,5:70,6:74,7:76})
    Em,rest=h_schedule(A,P,E('LB',800),E('PREL',2500),stamp)
    print("L role: total",sum(x[2] for x in P.it))
    assert not [x for x in rest if x[0] not in('MARK','MUST','LOCK')]
    A("s_barrier")
    stamp.dump(A)
    A("Lmain_end:")
    A.end(n,256); A.launch(n,256,512,lds=LDS_S3)
if __name__=='__main__':
    A=Asm(); build(A)
    print("LDS",LDS_S3)
    open(sys.argv[1],'w').write(A.text("S3: fused single launch",single=True))
```

```python
import sys, os
from g32lib import *
from kgenlib import *
from htasks import *
import conv3lib as CV
from asmlib import KMAIN
DIAG=bool(os.environ.get('DIAG'))
E=lambda k,d: int(os.environ.get(k,d))
S=dict(x=20,j=21,rb=22,cb=23,hw=24,w=25,wf=26,wt=27,t0=28,t1=29,sx=30,sw=31,mx=32,mw=33,sl=34,rot=35,
       srdx=8,srd1=12,srd3=16,hb=60,ho=61,wg=2,
       ch=88,kb=89,k0=90,k1=91,sv=92,h0=94,h1=95,h2=96,h3=97,lb=98,u=99,m48=100,nch=101,
       sA=40,sI=44,sR=48,sC=52,sD=56,fst=72,fcs=73,db=3,spin=82,lnb=83)
WS=36
KB0=HSCR
LB_L=HSCR+3*KSCR
LB_W=HSCR+2*KSCR
LCNT=LB_L+11008
LST=LCNT+64
LDS_S3=LCNT+2816
WPF=40960; WPFW=20480
ATL=LB_L; ATRS=136
HLANE=11
END="Lmain_end"
class St:
    def __init__(s,regs): s.regs=list(regs); s.used={}
    def __call__(s,A,idx,rt=False):
        if not DIAG: return
        if os.environ.get('GDIAG')=='rt':
            if idx not in (1,3,5,6,8,11,32): return
            rt=True
        if idx in s.used or not s.regs: return
        r=s.regs.pop(0); s.used[idx]=r
        A(f"{'s_memrealtime' if rt else 's_memtime'} s[{r}:{r+1}]")
    def dump(s,A):
        if not DIAG: return
        A(f"s_waitcnt vmcnt(0) lgkmcnt(0)\ns_lshl_b32 s27, s2, 11\ns_lshl_b32 s28, s25, 8\ns_add_u32 s27, s27, s28\ns_add_u32 s27, s27, {STAMP}\nv_mov_b32 v9, 0\ns_mov_b64 exec, 1")
        for idx,r in s.used.items():
            A(f"v_mov_b32 v10, s{r}\nbuffer_store_dword v10, v9, s[36:39], s27 offen offset:{4*idx}")
def mark(P,st): P.it.append(('MARK',st,0))
def must(P,st): P.it.append(('MUST',st,0))
def h_schedule(A,P,budget,pre,sv,which=range(10),hook=None,emref=None):
    Em=Emit(A)
    if emref is not None: emref[0]=Em
    items=list(P.it); pos=[0]; locked=[0]
    def run_until(cost,window):
        c=0
        while pos[0]<len(items):
            x=items[pos[0]]
            if x[0]=='MARK':
                if x[1]>window: return
                pos[0]+=1; continue
            if x[0]=='MUST': pos[0]+=1; continue
            if x[0]=='LOCK': locked[0]=x[1]; pos[0]+=1; continue
            force=any(y[0]=='MUST' and y[1]<=window for y in items[pos[0]:])
            if c>=cost and not locked[0] and not force: return
            Em.item(x); c+=x[2]; pos[0]+=1
    run_until(pre,-1)
    for st in range(NST):
        if st in which: sv(A,16+st)
        A("s_barrier")
        if hook and st in hook: hook[st]()
        run_until(budget,st)
    return Em,items[pos[0]:]
def g2_phase(A,stamp):
    ACC2=0; WR_=80; HR=160; TT=208; MS=228
    VL=MS; VLN=MS+3; VT=MS+4
    lane=VLANE
    A(f"""
    s_waitcnt vmcnt(0)
    v_mov_b32 v{VT0}, {LCNT}
    v_mov_b32 v{VT0+1}, 1
    s_mov_b64 s[58:59], exec
    s_mov_b64 exec, 1
    ds_add_rtn_u32 v{VT0+2}, v{VT0}, v{VT0+1}
    s_waitcnt lgkmcnt(0)
    v_readfirstlane_b32 s28, v{VT0+2}
    s_nop 3
    s_cmp_eq_u32 s28, 3
    s_cbranch_scc0 Lnopubh
    s_lshl_b32 s28, s22, 4
    s_add_u32 s28, s28, s23
    s_lshl_b32 s28, s28, 7
    s_add_u32 s28, s28, {FH}
    v_mov_b32 v{VT0}, 0
    buffer_store_dword v{VT0+1}, v{VT0}, s[36:39], s28 offen sc1
    Lnopubh:
    s_mov_b64 exec, s[58:59]
    """)
    stamp(A,5)
    A(f"""
    s_lshr_b32 s49, s20, 1
    s_lshl_b32 s49, s49, 3
    s_and_b32 s28, s21, 7
    s_add_u32 s49, s49, s28
    v_mov_b32 v{VLN}, v{lane}
    v_lshlrev_b32 v{VL}, 4, v{lane}
    v_add_u32 v{VL+1}, 4096, v{VL}
    v_add_u32 v{VL+2}, 8192, v{VL}
    s_mul_i32 s26, s25, 12
    """)
    for dt in range(5):
        A(f"s_mul_i32 s27, s3, 5\ns_add_u32 s27, s27, {dt}\ns_mul_i32 s27, s27, 48\ns_add_u32 s27, s27, s26\ns_lshl_b32 s27, s27, 10\ns_add_u32 s{44+dt}, s27, {W2F}")
    vm=[]
    def wreg(k,dt): return WR_+20*k+4*dt
    def hreg(s,nt): return HR+16*(s%3)+4*nt
    def wl(s,k,tag=None):
        va=VL+(s>>2); imm=1024*(s&3)
        for dt in range(5):
            A(f"buffer_load_dwordx4 v[{wreg(k,dt)}:{wreg(k,dt)+3}], v{va}, s[36:39], s{44+dt} offen offset:{imm} {os.environ.get('WSC','sc1')}"); vm.append(tag or ('w',s))
    def hl(s):
        va=VL+(s>>2); imm=1024*(s&3)
        for nt in range(4):
            A(f"buffer_load_dwordx4 v[{hreg(s,nt)}:{hreg(s,nt)+3}], v{va}, s[36:39], s{30+nt} offen offset:{imm} {os.environ.get('HSC','sc1')}"); vm.append(('h',s))
    def wait(*tags):
        idx=max(max(i for i,t in enumerate(vm) if t==tag) for tag in tags); A(f"s_waitcnt vmcnt({min(63,len(vm)-1-idx)})")
    for k in range(4): wl(4+k,k)
    A(f"s_mul_i32 s27, s25, {WPFW}\ns_add_u32 s27, s27, {WPF}\nv_add_u32 v{VT}, s27, v{VL}")
    for nt in range(4):
        A(f"s_lshl_b32 s27, s49, 2\ns_add_u32 s27, s27, {nt}\ns_mul_i32 s27, s27, 48\ns_add_u32 s27, s27, s26\ns_lshl_b32 s27, s27, 10\ns_add_u32 s{30+nt}, s27, {HF}")
    for k in range(4):
        wait(('w',4+k))
        for dt in range(5): A(f"ds_write_b128 v{VT}, v[{wreg(k,dt)}:{wreg(k,dt)+3}] offset:{(k*5+dt)*1024}")
    A("s_waitcnt lgkmcnt(0)")
    for k in range(4): wl(k,k)
    for i in range(80): A(f"v_mov_b32 v{ACC2+i}, 0")
    A(f"""
    v_and_b32 v{VT+1}, 3, v{VLN}
    v_lshlrev_b32 v{VT+1}, 7, v{VT+1}
    s_lshr_b32 s27, s49, 1
    s_lshl_b32 s27, s27, 11
    s_lshl_b32 s28, s25, 9            ; this wave's K quarter comes from column blocks 4w..4w+3
    s_add_u32 s27, s27, s28
    s_add_u32 s50, s27, {FH}
    buffer_load_dword v{VT+2}, v{VT+1}, s[36:39], s50 offen sc1
    s_waitcnt vmcnt(0)
    """)
    A(spin('h',f"buffer_load_dword v{VT+2}, v{VT+1}, s[36:39], s50 offen sc1",f"v_cmp_eq_u32 vcc, 1, v{VT+2}",S,END,sleep=1))
    stamp(A,6)
    vm.clear()
    for s in range(3): hl(s)
    lg=[]
    def tread(s,dt):
        A(f"ds_read_b128 v[{TT+4*dt}:{TT+4*dt+3}], v{VT} offset:{((s-4)*5+dt)*1024}"); lg.append((s,dt))
    def lwait(tag):
        idx=lg.index(tag); A(f"s_waitcnt lgkmcnt({len(lg)-1-idx})")
    PF=VT+4; assert PF%2==0
    XR=TT
    XA=VT+8; ATG=VT+9; ATA=VT+10; AS=WR_
    A(f"""
    v_and_b32 v{VT+3}, 31, v{VLN}
    v_lshlrev_b32 v{VT+3}, 7, v{VT+3}
    s_lshl_b32 s41, s3, 12
    s_add_u32 s41, s41, {FD}
    v_and_b32 v{VT+11}, 15, v{VLN}
    v_lshrrev_b32 v{VT+12}, 4, v{VLN}
    v_mul_u32_u24 v{VT+11}, 1280, v{VT+11}
    v_mul_u32_u24 v{VT+12}, 40, v{VT+12}
    v_add_u32 v{XA}, v{VT+11}, v{VT+12}
    s_lshl_b32 s27, s49, 6
    s_lshl_b32 s28, s25, 4
    s_add_u32 s27, s27, s28
    s_mul_i32 s27, s27, 1280
    s_mul_i32 s28, s3, 160
    s_add_u32 s40, s27, s28
    v_lshrrev_b32 v{VT+11}, 3, v{VLN}
    v_and_b32 v{VT+12}, 7, v{VLN}
    v_lshlrev_b32 v{ATG}, 12, v{VT+11}
    v_lshl_add_u32 v{ATG}, v{VT+12}, 4, v{ATG}
    v_mul_u32_u24 v{ATA}, {ATRS}, v{VT+11}
    v_lshl_add_u32 v{ATA}, v{VT+12}, 4, v{ATA}
    s_mul_i32 s27, s3, {80*4096}
    s_lshl_b32 s28, s49, 7
    s_add_u32 s27, s27, s28
    s_lshl_b32 s28, s25, 15
    s_add_u32 s27, s27, s28
    s_add_u32 s42, s27, {AT}
    s_mul_i32 s28, s25, {8*ATRS}
    s_add_u32 s43, s28, {ATL}
    v_add_u32 v{ATA}, s43, v{ATA}
    s_mov_b32 s51, 0
    """)
    def atloads(u):
        for i in range(3):
            if i<2: A(f"s_add_u32 s27, s42, {i*32*4096}\nbuffer_load_dwordx4 v[{AS+4*i}:{AS+4*i+3}], v{ATG}, s[36:39], s27 offen sc1")
            else: A(f"s_cmp_lt_u32 s25, 2\ns_cbranch_scc0 Lnoat{u}\ns_add_u32 s27, s42, {i*32*4096}\nbuffer_load_dwordx4 v[{AS+4*i}:{AS+4*i+3}], v{ATG}, s[36:39], s27 offen sc1\nLnoat{u}:")
    fdchk=f"v_and_b32 v{PF}, v{PF}, v{PF+1}\nv_and_b32 v{PF}, v{PF}, v{PF+2}\nv_cmp_eq_u32 vcc, 1, v{PF}"
    fdld=f"buffer_load_dwordx4 v[{PF}:{PF+3}], v{VT+3}, s[36:39], s41 offen sc1"
    pend=[]
    def one_h(s,nt):
        va=VL+(s>>2); imm=1024*(s&3)
        A(f"buffer_load_dwordx4 v[{hreg(s,nt)}:{hreg(s,nt)+3}], v{va}, s[36:39], s{30+nt} offen offset:{imm} {os.environ.get('HSC','sc1')}"); vm.append(('h',s))
    def one_w(s,k,dt):
        va=VL+(s>>2); imm=1024*(s&3)
        A(f"buffer_load_dwordx4 v[{wreg(k,dt)}:{wreg(k,dt)+3}], v{va}, s[36:39], s{44+dt} offen offset:{imm} {os.environ.get('WSC','sc1')}"); vm.append(('w',s))
    hq=[]; wq=[]
    def pump(n=1):
        for _ in range(n):
            if hq: f=hq.pop(0); f()
            elif wq: f=wq.pop(0); f()
    for s in range(12):
        tags=[('h',s)]+([('w',s)] if s>=8 else [])
        assert not any(True for f in hq if f.step<=s), "h load not issued in time"
        if s<=10: wait(*tags)
        if s==0: stamp(A,7)
        if os.environ.get('GDIAG')=='g2' and s in (1,2,3,4,6,8,10): stamp(A,40+s)
        lds=4<=s<8
        if lds:
            for dt in range(5):
                lwait((s,dt)); a_=TT+4*dt
                for nt in range(4):
                    a=ACC2+(nt*5+dt)*4
                    A(f"v_mfma_f32_16x16x32_bf16 v[{a}:{a+3}], v[{a_}:{a_+3}], v[{hreg(s,nt)}:{hreg(s,nt)+3}], v[{a}:{a+3}]")
                if s<7: tread(s+1,dt)
                pump()
            if s+3<12:
                for nt in range(4):
                    f=(lambda s_=s+3,nt_=nt: one_h(s_,nt_)); f.step=s+3; hq.append(f)
        else:
            for nt in range(4):
                for dt in range(5):
                    a=ACC2+(nt*5+dt)*4; a_=wreg(s%4,dt)
                    A(f"v_mfma_f32_16x16x32_bf16 v[{a}:{a+3}], v[{a_}:{a_+3}], v[{hreg(s,nt)}:{hreg(s,nt)+3}], v[{a}:{a+3}]")
                    if s==3 and nt==3: tread(4,dt)
                    if dt==1 and nt>0: pump()
                if s+3<12:
                    f=(lambda s_=s+3,nt_=nt: one_h(s_,nt_)); f.step=s+3; hq.append(f)
                pump()
                if s==11 and E('EARLYRED',0) and nt>=1: pass
            if s<4:
                for dt in range(5):
                    f=(lambda s_=8+s,k_=s,dt_=dt: one_w(s_,k_,dt_)); f.step=8+s; wq.append(f)
        if s==7:
            pump(len(hq)+len(wq))
        if s==8:
            pump(len(hq)+len(wq))
            A(fdld); vm.append(('p',0))
            A(f"buffer_load_dwordx4 v[{XR}:{XR+3}], v{XA}, s[8:11], s40 offen\nbuffer_load_dwordx4 v[{XR+4}:{XR+7}], v{XA}, s[8:11], s40 offen offset:16\nbuffer_load_dwordx2 v[{XR+8}:{XR+9}], v{XA}, s[8:11], s40 offen offset:32")
            vm.extend([('x',0)]*3)
        if s==10:
            wait(('p',0))
            A(fdchk+"\ns_nop 1\ns_cmp_eq_u64 vcc, exec\ns_cbranch_scc0 Lnotyet\ns_mov_b32 s51, 1")
            atloads('e')
            A("Lnotyet:")
    assert not hq and not wq
    stamp(A,8)
    FR=96
    A(f"s_cmp_eq_u32 s51, 1\ns_cbranch_scc1 Lhave\n{fdld}\ns_waitcnt vmcnt(0)")
    A(spin('d',fdld,fdchk,S,END,sleep=1))
    atloads('l')
    A("Lhave:")
    VA=ATA
    R0=FR
    A(f"v_add_u32 v{VL+1}, {WPF}, v{VL}\nv_add_u32 v{VL+2}, {WPF+49152}, v{VL}")
    for w in range(4):
        lab=A.label('w')
        if w<3: A(f"s_cmp_lg_u32 s25, {w}\ns_cbranch_scc1 {lab}")
        for nt in range(4):
            if nt==w: continue
            sl=nt if nt<w else nt-1
            for dt in range(5):
                a=ACC2+(nt*5+dt)*4
                off=w*WPFW+(sl*5+dt)*1024
                va,o=(VL+1,off) if off<65536-1024 else (VL+2,off-49152)
                if w==0 and nt==1 and dt==0: pass
                A(f"ds_write_b128 v{va}, v[{a}:{a+3}] offset:{o}")
        A("s_waitcnt vmcnt(0)")
        for i in range(3):
            if i==2 and w>=2: continue
            for h in range(2): A(f"ds_write_b64 v{VA}, v[{AS+4*i+2*h}:{AS+4*i+2*h+1}] offset:{i*32*ATRS+8*h}")
        A("s_waitcnt lgkmcnt(0)\ns_barrier")
        kk=0
        for src in range(4):
            if src==w: continue
            sl=w if w<src else w-1
            for dt in range(5):
                off=src*WPFW+(sl*5+dt)*1024
                va,o=(VL+1,off) if off<65536-1024 else (VL+2,off-49152)
                A(f"ds_read_b128 v[{R0+(kk*5+dt)*4}:{R0+(kk*5+dt)*4+3}], v{va} offset:{o}")
            kk+=1
        if w:
            for r in range(20): A(f"v_mov_b32 v{ACC2+r}, v{ACC2+w*20+r}")
        if w<3: A(f"s_branch Lred\n{lab}:")
    A("Lred:")
    A(f"""
    v_lshrrev_b32 v{VT}, 4, v{VLN}
    v_mul_u32_u24 v{VT}, 20, v{VT}
    v_bfe_u32 v{VT+1}, v{VLN}, 2, 2
    v_add_u32 v{VT}, v{VT}, v{VT+1}
    v_mul_u32_u24 v{VT}, {ATRS}, v{VT}
    v_and_b32 v{VT+1}, 3, v{VLN}
    v_lshl_add_u32 v{VT}, v{VT+1}, 3, v{VT}
    s_lshl_b32 s27, s25, 5
    s_add_u32 s27, s27, {ATL}
    v_add_u32 v{VT}, s27, v{VT}
    """)
    AR=R0+60
    for dt in range(5): A(f"ds_read_b64_tr_b16 v[{AR+2*dt}:{AR+2*dt+1}], v{VT} offset:{4*dt*ATRS}")
    A(f"s_waitcnt lgkmcnt(5)")
    for src in range(3):
        for r in range(0,20,2): A(f"v_pk_add_f32 v[{ACC2+r}:{ACC2+r+1}], v[{ACC2+r}:{ACC2+r+1}], v[{R0+src*20+r}:{R0+src*20+r+1}]")
    stamp(A,9)
    A("s_waitcnt lgkmcnt(0)")
    W=R0
    for e2 in range(10):
        x=XR+e2; a=AR+e2; b0=ACC2+2*e2; w=W+4*(e2%4)
        A(f"""
        v_lshlrev_b32 v{w}, 16, v{x}
        v_and_b32 v{w+1}, 0xffff0000, v{x}
        v_lshlrev_b32 v{w+2}, 16, v{a}
        v_and_b32 v{w+3}, 0xffff0000, v{a}
        v_pk_add_f32 v[{b0}:{b0+1}], v[{b0}:{b0+1}], v[{w}:{w+1}]
        v_pk_add_f32 v[{b0}:{b0+1}], v[{b0}:{b0+1}], v[{w+2}:{w+3}]
        v_cvt_pk_bf16_f32 v{W+20+e2}, v{b0}, v{b0+1}
        """)
    A(f"buffer_store_dwordx4 v[{W+20}:{W+23}], v{XA}, s[52:55], s40 offen\nbuffer_store_dwordx4 v[{W+24}:{W+27}], v{XA}, s[52:55], s40 offen offset:16\nbuffer_store_dwordx2 v[{W+28}:{W+29}], v{XA}, s[52:55], s40 offen offset:32")
def build(A):
    n=KMAIN; A.begin(n)
    A("s_cmp_ge_u32 s2, 256\ns_cbranch_scc1 Lmain_end")
    A(f"""
    s_load_dwordx2 s[4:5], s[0:1], {ARG['u']}
    s_load_dwordx4 s[76:79], s[0:1], {ARG['w1']}
    s_load_dwordx4 s[84:87], s[0:1], {ARG['dbg']}
    s_load_dwordx8 s[64:71], s[0:1], {ARG['logA']}
    s_load_dwordx2 s[74:75], s[0:1], {ARG['logdt']}
    s_load_dwordx4 s[44:47], s[0:1], {ARG['w2']}      ; w2, out
    s_load_dwordx2 s[18:19], s[0:1], {ARG['Dskip']}
    s_and_b32 s20, s2, 7          ; x
    s_lshr_b32 s21, s2, 3         ; j
    s_and_b32 s22, s20, 1
    s_lshl_b32 s22, s22, 3
    s_and_b32 s23, s21, 7
    s_add_u32 s22, s22, s23       ; rb
    s_lshr_b32 s23, s20, 1
    s_lshl_b32 s23, s23, 2
    s_lshr_b32 s24, s21, 3
    s_add_u32 s23, s23, s24       ; cb
    s_and_b32 s3, s20, 1
    s_lshl_b32 s3, s3, 2
    s_add_u32 s3, s3, s24
    v_lshrrev_b32 v1, 6, v0
    s_cmp_ge_u32 s22, 10
    s_cselect_b32 s35, 10, 0
    v_readfirstlane_b32 s25, v1   ; wave
    s_sub_u32 s35, s22, s35       ; rot
    s_nop 2
    s_and_b32 s26, s25, 1         ; wf
    s_bfe_u32 s27, s25, 0x10001   ; wt
    s_and_b32 s24, s25, 3         ; hw
    s_cmp_ge_u32 s25, 4
    s_cbranch_scc1 Lhrole
    """)
    GLN=E('GLN',0)
    g_dma_addr(A,S)
    if GLN: g_ln_loads(A,S)
    A("s_waitcnt lgkmcnt(0)")
    A.srd(8,4,SIZE['u']); A.srd(12,76,SIZE['w1']); A.srd(16,78,SIZE['w3']); A.srd(WS,86,SIZE['ws']); A.srd(52,46,SIZE['out'])
    stamp=St(list(range(64,76,2))+[80]+list(range(84,102,2))+[56,42+0])
    stamp.regs=[r for r in stamp.regs if r not in (42,82)]
    stamp(A,0); stamp(A,1,True)
    PRE=E('GPRE',2)
    if GLN: g_ln_issue(A,S)
    for l in g_dma(S,0): A(l)
    g_lds_addr(A,S)
    for l in g_dma(S,1): A(l)
    A(f"s_cmp_eq_u32 s25, 0\ns_cbranch_scc0 Lnoci\nv_mov_b32 v{VT0}, {LCNT}\nv_mov_b32 v{VT0+1}, 0\nds_write_b32 v{VT0}, v{VT0+1}\nds_write_b32 v{VT0}, v{VT0+1} offset:4\nLnoci:")
    if PRE>=3:
        for l in g_dma(S,2): A(l)
    for i in range(96): A(f"v_mov_b32 v{ACC+i}, 0")
    if GLN:
        A(f"s_waitcnt vmcnt({10*PRE})")
        g_ln_compute(A,S,LB_L,LNRS,LST)
    def gstamp(st):
        if os.environ.get('GDIAG')=='win':
            if not isinstance(st,tuple): stamp(A,32+st)
            elif st[1] in (1,2,3,4,5): stamp(A,48+st[1])
        elif os.environ.get('GDIAG')=='g2': pass
        elif os.environ.get('GDIAG')=='rt':
            if st==0: stamp(A,32)
        elif not isinstance(st,tuple) and st in (0,3,6,9): stamp(A,32+st)
    g_loop(A,S,gstamp if DIAG else None,PRE=PRE)
    stamp(A,2)
    A("s_barrier")
    stamp(A,3)
    g_epilogue(A,S,WS,HF,'sc1')
    A(f"v_mov_b32 v{VT0}, {LCNT+4}\nv_mov_b32 v{VT0+1}, 1\ns_mov_b64 s[58:59], exec\ns_mov_b64 exec, 1\nds_add_u32 v{VT0}, v{VT0+1}\ns_mov_b64 exec, s[58:59]")
    stamp(A,4)
    g2_phase(A,stamp)
    stamp(A,10); stamp(A,11,True)
    stamp.dump(A)
    A("s_branch Lmain_end")
    A("Lhrole:")
    A(f"v_and_b32 v{HLANE}, 63, v0")
    A(f"""
    s_mul_i32 s28, s21, 3
    s_lshl_b32 s29, s21, 1
    s_add_u32 s29, s29, 16
    s_cmp_lt_u32 s21, 16
    s_cselect_b32 s28, s28, s29
    s_cselect_b32 s101, 3, 2          ; nch
    s_mul_i32 s29, s20, 80
    s_add_u32 s28, s28, s29
    s_add_u32 s88, s28, s24           ; channel
    s_mul_i32 s89, s24, {KSCR}
    s_add_u32 s89, s89, {KB0}
    s_waitcnt lgkmcnt(0)
    s_mov_b32 s80, s44
    s_mov_b32 s81, s45
    """)
    A.srd(8,4,SIZE['u']); A.srd(WS,86,SIZE['ws'])
    A("s_cmp_eq_u32 s24, 3\ns_cbranch_scc1 Lrole_l\ns_cmp_lt_u32 s24, s101\ns_cbranch_scc0 Lrole_w")
    A.srd(40,64,245760); A.srd(44,66,245760); A.srd(48,68,245760); A.srd(52,70,245760); A.srd(56,74,1280); A.srd(12,18,SIZE['Dskip'])
    stamp=St([64,66,68,70,74,76,78,80,60,62,4,6]); stamp(A,0)
    SK=dict(S); SK['kb']=89
    P=Prog(); mark(P,-1); P.atom('s_setprio 3'); kgen_loads(P,S,HLANE,KV)
    P.i(f"s_lshl_b32 s29, s88, 1\nv_mov_b32 v30, s29"); P.vl("buffer_load_ushort v29, v30, s[12:15], 0 offen",'kp2',cost=30); P.atom('s_setprio 0')
    kgen_setup(P,S,HLANE); kgen_dt(P,S); P.wv('kp2'); kgen_groups(P,os.environ.get('PKG0','rows'),tailpk=bool(E('TAILPK',1)))
    SO=dict(S); SO['kb']=73
    P.i(f"s_add_u32 s73, s89, 16\nv_mov_b32 v28, s89\nv_mov_b32 v27, 0")
    kgen_out(P,SO,HLANE,WS,"",tolds=False) if False else None
    Pout=Prog(); Pout.l("ds_write_b32 v28, v27 offset:12"); kgen_out(Pout,SO,HLANE,WS,"",tolds=True)
    P.ext(Pout)
    P=schedule(P)
    if os.environ.get('KNOWR'): P.it=[x if not (x[0]=='L' and 'ds_write' in x[1]) else ('I','s_nop 0',4) for x in P.it]
    if os.environ.get('KNOVALU'): P.it=[x for x in P.it if not (x[0]=='I' and x[1].startswith('v_') and 'mfma' not in x[1] and 'readfirst' not in x[1])]
    SC=dict(base=30,ch=88,srd=36,t0=28,t1=29,sv=92,m0=52,m1=54,m2=56,dsk=33,kt=73,lane=HLANE)
    def w8hook():
        A(f"v_lshlrev_b32 v26, 4, v{HLANE}\ns_mov_b32 s31, {FX}\nbuffer_load_dwordx4 v[20:23], v26, s[36:39], s31 offen sc1")
        Em_[0].vm.append(('L','fx'))
    def w9hook():
        Em_[0].wait_vm('fx')
        A(spin('x',"buffer_load_dwordx4 v[20:23], v26, s[36:39], s31 offen sc1","v_and_b32 v24, v20, v21\nv_and_b32 v25, v22, v23\nv_and_b32 v24, v24, v25\nv_cmp_eq_u32 vcc, 1, v24",S,END))
        A(f"s_mul_i32 s30, s24, {CV.CW3}")
        CV.u_loads(A,SC)
        for q in range(4): Em_[0].vm.append(('L','u'))
    Em_=[None]
    Em,rest=h_schedule(A,P,E('KB',850),E('PREK',900),stamp,(0,3,6,9),hook={8:w8hook,9:w9hook},emref=Em_)
    A("s_barrier")
    A(f"s_setprio {E('XPRIO',2)}")
    stamp(A,2)
    for x in rest: Em.item(x)
    print("K role: total",sum(x[2] for x in P.it),"left after loop",sum(x[2] for x in rest))
    stamp(A,3)
    A("s_waitcnt vmcnt(0)\nv_lshlrev_b32 v29, 16, v29\ns_nop 0\nv_readfirstlane_b32 s33, v29")
    CV.u_store(A,SC)
    CV.conv_setup(A,SC)
    A("s_waitcnt lgkmcnt(0)")
    CV.conv_expand(A,SC)
    A("s_waitcnt lgkmcnt(0)")
    if E('CWAIT',1):
        A(f"""
        s_setprio 0
        v_mov_b32 v{CV.CTMP}, {LCNT+4}
        s_mov_b32 s34, 0
        Lcw:
        ds_read_b32 v{CV.CTMP+1}, v{CV.CTMP}
        s_waitcnt lgkmcnt(0)
        v_readfirstlane_b32 s28, v{CV.CTMP+1}
        s_add_u32 s34, s34, 1
        s_cmp_gt_u32 s34, {1<<26}
        s_cbranch_scc1 {END}
        s_cmp_eq_u32 s28, 4
        s_cbranch_scc1 Lcwok
        s_sleep 1
        s_branch Lcw
        Lcwok:
        """)
    stamp(A,4)
    A(f"s_setprio {E('CPRIO',1)}")
    CV.conv_main(A)
    A("s_nop 7")
    stamp(A,5)
    CV.conv_epilogue(A,SC,"sc1")
    A(f"""
    s_waitcnt vmcnt(0)
    s_lshl_b32 s28, s20, 5
    s_add_u32 s28, s28, s21
    s_lshl_b32 s28, s28, 7
    s_lshl_b32 s29, s24, 2
    s_add_u32 s28, s28, s29
    s_add_u32 s28, s28, {FD}
    v_mov_b32 v{CV.CTMP}, 0
    v_mov_b32 v{CV.CTMP+1}, 1
    s_mov_b64 s[92:93], exec
    s_mov_b64 exec, 1
    buffer_store_dword v{CV.CTMP+1}, v{CV.CTMP}, s[36:39], s28 offen sc1
    s_mov_b64 exec, s[92:93]
    """)
    stamp(A,6)
    stamp.dump(A)
    A("s_branch Lmain_end")
    A("Lrole_w:")
    A.srd(40,80,SIZE['w2'])
    A(f"s_sub_u32 s99, s21, 16\ns_lshl_b32 s99, s99, 3\ns_add_u32 s99, s99, s20\ns_mov_b32 s100, {magic(48)}\ns_mov_b32 s98, {LB_W}")
    SW=dict(S); SW['wo']=88
    P=Prog(); mark(P,-1); w2_setup(P,SW,HLANE); mark(P,0); w2b_loads(P,SW,40)
    for k in range(3):
        mark(P,k+1); w2b_unit(P,SW,k,HLANE,WS,"sc1")
    mark(P,5); s3_set_fw(P,SW,WS,WF); must(P,5)
    stamp=St([64,66,68,70,74,76,78,84,86,60,62]); Em,rest=h_schedule(A,P,800,600,stamp)
    assert not [x for x in rest if x[0] not in('MARK','MUST','LOCK')]
    A("s_barrier")
    stamp.dump(A)
    A("s_branch Lmain_end")
    A("Lrole_l:")
    A.srd(40,84,256)
    A(f"s_mov_b32 s98, {LB_L}")
    LP=None
    if E('GLN',0):
        RT=os.environ.get('GDIAG')=='rt' and DIAG
        def rts(r):
            if RT: P.atom(f"s_memrealtime s[{r}:{r+1}]")
        P=Prog(); mark(P,-1); s3_clear(P,S,WS); cs_setup(P,S,HLANE)
        if os.environ.get('LSCHED','early')=='early':
            mark(P,0); fl_cleared(P,S,40); cs_reads(P,S,0); cs_mfma(P,S,0); cs_reads(P,S,1); P.wl(('cs',1)); must(P,0)
            mark(P,1); cs_mfma(P,S,1); ln3_xt_reads(P,S,HLANE); ln3_st(P,S,HLANE,WS,"sc1",LST); cs_store(P,S,HLANE,WS,"sc1"); must(P,1)
            mark(P,2); s3_set_fl(P,S,WS,'pub1',0); rts(64); ln3_xt_stores(P,S,HLANE,WS,"sc1")
            mark(P,5); s3_set_fl(P,S,WS,'pub2',FX-FL); rts(66)
        elif os.environ.get('LSCHED')=='mid':
            mark(P,0); cs2_reads(P,S); must(P,0); fl_cleared(P,S,40)
            mark(P,1); cs2_mfma(P,S); ln3_st(P,S,HLANE,WS,"sc1",LST); cs_store(P,S,HLANE,WS,"sc1",stage=STAT,CDR=CDR2,CFR=72)
            mark(P,2); ln3_xt_reads(P,S,HLANE); s3_set_fl(P,S,WS,'pub1',0); rts(64); ln3_xt_stores(P,S,HLANE,WS,"sc1")
            mark(P,4); s3_set_fl(P,S,WS,'pub2',FX-FL); rts(66)
        mark(P,6); s3_ga_clr_load(P,S,HLANE,40)
        mark(P,7); rts(68); s3_ga_clr_check(P,S,HLANE,40,WS,END); rts(70); must(P,7)
        mark(P,8); rts(74); s3_ga_flag_check(P,S,HLANE,WS,END); rts(76)
        mark(P,9); ga_finish(P,S,HLANE); rts(78); must(P,9)
    else:
        P=Prog(); mark(P,-1); P.atom("s_setprio 3"); ln2_loads(P,S,HLANE); P.atom("s_setprio 0"); s3_clear(P,S,WS); cs_setup(P,S,HLANE)
        mark(P,0); fl_cleared(P,S,40); cs_reads(P,S,0); cs_mfma(P,S,0); cs_reads(P,S,1); P.wl(('cs',1)); must(P,0)
        cs_mfma(P,S,1); cs_store(P,S,HLANE,WS,"sc1")
        ln2_stats(P,S,HLANE,WS,"sc1")
        Pn=Prog(); ln2_norm(Pn,S,HLANE,WS,"sc1")
        n1=len(Pn.it)//4
        P.it+=Pn.it[:n1]
        mark(P,3); s3_set_fl(P,S,WS,'pub1',0)
        P.it+=Pn.it[n1:]
        mark(P,5); s3_ga_clr_load(P,S,HLANE,40)
        mark(P,6); s3_ga_clr_check(P,S,HLANE,40,WS,END); must(P,7)
        mark(P,7); s3_set_fl(P,S,WS,'pub2',FX-FL); s3_ga_flag_check(P,S,HLANE,WS,END)
        mark(P,9); ga_finish(P,S,HLANE); must(P,9)
    P=schedule(P)
    stamp=St([44,46,48,50,52,54,56,58,60,62,4]); stamp(A,0)
    if DIAG and os.environ.get('GDIAG')=='rt' and E('GLN',0): stamp.used.update({2:64,3:66,4:68,5:70,6:74,7:76,8:78})
    if LP: stamp.used.update({2:64,3:66,4:68,5:70,6:74,7:76})
    Em,rest=h_schedule(A,P,E('LB',800),E('PREL',2500),stamp)
    print("L role: total",sum(x[2] for x in P.it))
    assert not [x for x in rest if x[0] not in('MARK','MUST','LOCK')]
    A("s_barrier")
    stamp.dump(A)
    A("Lmain_end:")
    A.end(n,256); A.launch(n,256,512,lds=LDS_S3)
if __name__=='__main__':
    A=Asm(); build(A)
    print("LDS",LDS_S3)
    open(sys.argv[1],'w').write(A.text("S3: fused single launch",single=True))
```

```python
from asmlib import *
from layout import *
import os
XBASE=0; XSLOT=16384; WBASE=3*XSLOT; WSLOT=24832; W3OFF=12320
LDS_G=WBASE+3*WSLOT
STAT=LDS_G
CSL=STAT+1024
HSCR=CSL+1024
NST=10
ACC=0
FA=96
FB=120
VXO=136
VWO=140
VXR=144
VWR=148
VLANE=149; VT0=150
def acc(t,nt): return ACC+(t*2+nt)*16
def g_dma_addr(A,S):
    T=VT0
    A(f"""
    v_and_b32 v{VLANE}, 63, v0
    v_lshrrev_b32 v{T}, 3, v{VLANE}            ; L>>3
    v_and_b32 v{T+1}, 7, v{VLANE}              ; L&7
    v_lshrrev_b32 v{T+2}, 4, v{VLANE}          ; L>>4
    """)
    for jj in range(4):
        A(f"""
        v_add_u32 v{T+3}, {4*jj}, v{T+2}
        v_and_b32 v{T+3}, 7, v{T+3}
        v_xor_b32 v{T+3}, v{T+3}, v{T+1}
        v_lshlrev_b32 v{T+3}, 4, v{T+3}
        v_add_u32 v{T+4}, {8*jj}, v{T}
        v_mul_u32_u24 v{T+4}, 1280, v{T+4}
        v_add_u32 v{VXO+jj}, v{T+3}, v{T+4}
        """)
        if jj: A(f"v_subrev_u32 v{VXO+jj}, {1024*jj}, v{VXO+jj}")
    A(f"s_mov_b32 s{S['t0']}, {magic(12)}")
    for i in range(3):
        A(f"""
        v_add_u32 v{T+3}, {64*i}, v{VLANE}
        v_mul_hi_u32 v{T+4}, v{T+3}, s{S['t0']}
        v_mul_u32_u24 v{T+5}, 12, v{T+4}
        v_sub_u32 v{T+5}, v{T+3}, v{T+5}
        v_mul_u32_u24 v{T+4}, 3072, v{T+4}
        v_lshl_add_u32 v{VWO+i}, v{T+5}, 4, v{T+4}
        """)
        if i: A(f"v_subrev_u32 v{VWO+i}, {1024*i}, v{VWO+i}")
    A(f"""
    s_mul_i32 s{S['sx']}, s{S['rb']}, 163840
    s_mul_i32 s{S['t0']}, s{S['w']}, 40960
    s_add_u32 s{S['sx']}, s{S['sx']}, s{S['t0']}
    s_mul_i32 s{S['sw']}, s{S['cb']}, 192
    s_mul_i32 s{S['t0']}, s{S['w']}, 49152
    s_add_u32 s{S['sw']}, s{S['sw']}, s{S['t0']}
    s_lshl_b32 s{S['t0']}, s{S['rot']}, 7
    s_add_u32 s{S['sx']}, s{S['sx']}, s{S['t0']}
    s_mul_i32 s{S['t0']}, s{S['rot']}, {64*3072}
    s_add_u32 s{S['sw']}, s{S['sw']}, s{S['t0']}
    s_mov_b32 s{S['sl']}, s{S['rot']}
    s_lshl_b32 s{S['mx']}, s{S['w']}, 12
    s_mul_i32 s{S['mw']}, s{S['w']}, 3072
    s_add_u32 s{S['mw']}, s{S['mw']}, {WBASE}
    """)
def g_lds_addr(A,S):
    T=VT0
    A(f"""
    v_and_b32 v{T}, 31, v{VLANE}               ; n
    v_lshrrev_b32 v{T+1}, 5, v{VLANE}          ; g
    v_bfe_u32 v{T+2}, v{VLANE}, 1, 3           ; (n>>1)&7
    v_xor_b32 v{T+2}, v{T+2}, v{T+1}
    v_lshlrev_b32 v{T+2}, 4, v{T+2}
    s_lshl_b32 s{S['t0']}, s{S['wt']}, 6
    v_add_u32 v{T}, s{S['t0']}, v{T}
    v_lshl_add_u32 v{VXR}, v{T}, 7, v{T+2}
    v_xor_b32 v{VXR+1}, 32, v{VXR}
    v_xor_b32 v{VXR+2}, 64, v{VXR}
    v_xor_b32 v{VXR+3}, 96, v{VXR}
    v_bfe_u32 v{T}, v{VLANE}, 2, 2             ; r
    v_lshrrev_b32 v{T+1}, 5, v{VLANE}          ; g
    v_lshl_add_u32 v{T}, v{T+1}, 3, v{T}       ; 8g+r
    v_mul_u32_u24 v{T}, 192, v{T}
    v_bfe_u32 v{T+1}, v{VLANE}, 4, 1           ; grp
    v_lshl_add_u32 v{T}, v{T+1}, 4, v{T}
    v_and_b32 v{T+1}, 1, v{VLANE}
    v_lshl_add_u32 v{T}, v{T+1}, 3, v{T}
    v_bfe_u32 v{T+1}, v{VLANE}, 1, 1           ; c>=2
    v_mul_u32_u24 v{T+1}, {W3OFF}, v{T+1}
    v_add_u32 v{T}, v{T}, v{T+1}
    s_mul_i32 s{S['t0']}, s{S['wf']}, 96
    s_add_u32 s{S['t0']}, s{S['t0']}, {WBASE}
    v_add_u32 v{VWR}, s{S['t0']}, v{T}
    """)
def g_dma(S,stage):
    slot=stage%3; out=[]
    for jj in range(4):
        t=f"buffer_load_dwordx4 v{VXO+jj}, s[{S['srdx']}:{S['srdx']+3}], s{S['sx']} offen offset:{1024*jj} lds"
        if jj==0: t=f"s_add_u32 m0, s{S['mx']}, {XBASE+slot*XSLOT}\ns_nop 0\n"+t
        out.append(t)
    for i in range(3):
        t=f"buffer_load_dwordx4 v{VWO+i}, s[{S['srd1']}:{S['srd1']+3}], s{S['sw']} offen offset:{1024*i} lds"
        if i==0: t=f"s_add_u32 m0, s{S['mw']}, {slot*WSLOT}\ns_nop 0\n"+t
        out.append(t)
    for i in range(3):
        t=f"buffer_load_dwordx4 v{VWO+i}, s[{S['srd3']}:{S['srd3']+3}], s{S['sw']} offen offset:{1024*i} lds"
        if i==0: t=f"s_add_u32 m0, s{S['mw']}, {slot*WSLOT+W3OFF}\ns_nop 0\n"+t
        if i==2: t+=(f"\ns_add_u32 s{S['sl']}, s{S['sl']}, 1\ns_cmp_eq_u32 s{S['sl']}, 10\ns_cselect_b32 s{S['t0']}, 1280, 0"
                     f"\ns_cselect_b32 s{S['t1']}, {640*3072}, 0\ns_cselect_b32 s{S['sl']}, 0, s{S['sl']}"
                     f"\ns_add_u32 s{S['sx']}, s{S['sx']}, 128\ns_add_u32 s{S['sw']}, s{S['sw']}, {64*3072}"
                     f"\ns_sub_u32 s{S['sx']}, s{S['sx']}, s{S['t0']}\ns_sub_u32 s{S['sw']}, s{S['sw']}, s{S['t1']}")
        out.append(t)
    return out
def g_reads(stage,s,p):
    slot=stage%3
    def B(nt): return f"ds_read_b128 v[{FB+p*8+nt*4}:{FB+p*8+nt*4+3}], v{VXR+s} offset:{XBASE+slot*XSLOT+nt*4096}"
    def Aa(t,h):
        r=FA+p*12+t*4+2*h
        return f"ds_read_b64_tr_b16 v[{r}:{r+1}], v{VWR} offset:{slot*WSLOT+3072*s+768*h+32*t}"
    return [B(0),Aa(0,0),Aa(0,1),B(1),Aa(1,0),Aa(1,1),Aa(2,0),Aa(2,1)]
def g_mfma(p):
    out=[]
    for t in range(3):
        for nt in range(2):
            a=acc(t,nt)
            out.append(f"v_mfma_f32_32x32x16_bf16 v[{a}:{a+15}], v[{FA+p*12+t*4}:{FA+p*12+t*4+3}], v[{FB+p*8+nt*4}:{FB+p*8+nt*4+3}], v[{a}:{a+15}]")
    return out
def g_loop(A,S,stamp=None,PRE=2):
    issued=PRE
    for st in range(NST):
        A(f"s_waitcnt vmcnt({(issued-1-st)*10}) lgkmcnt(0)")
        if stamp: stamp(('pre',st))
        A("s_barrier")
        if stamp: stamp(st)
        dma=[]
        while issued<NST and issued-3<st:
            dma+=g_dma(S,issued); issued+=1
        for s in range(4):
            p=s&1
            reads=g_reads(st,s,p)
            dm=dma[(len(dma)*s)//4:(len(dma)*(s+1))//4] if dma else []
            if st==0 and s==0:
                for l in reads: A(l)
                for l in dm: A(l)
                continue
            if s!=0: A("s_waitcnt lgkmcnt(0)")
            m=g_mfma(p^1)
            A(m[0]); [A(l) for l in reads[0:3]]
            A(m[1]); [A(l) for l in reads[3:6]]
            A(m[2]); [A(l) for l in reads[6:8]]
            nd=len(dm); a=(nd+2)//3; b=(2*nd+2)//3
            A(m[3]); [A(l) for l in dm[:a]]
            A(m[4]); [A(l) for l in dm[a:b]]
            A(m[5]); [A(l) for l in dm[b:]]
    A("s_waitcnt lgkmcnt(0)")
    for l in g_mfma(1): A(l)
FS=160
FR=234
CSR=168
VHA=216
EP=218
def g_epilogue(A,S,srd,hbase=HF,flags=""):
    T=VT0
    A(f"""
    v_and_b32 v{T}, 31, v{VLANE}
    s_lshl_b32 s{S['t0']}, s{S['wt']}, 6
    v_add_u32 v{T}, s{S['t0']}, v{T}
    v_lshlrev_b32 v{T}, 3, v{T}
    v_add_u32 v{T}, {STAT}, v{T}
    v_lshrrev_b32 v{T+1}, 5, v{VLANE}
    v_lshlrev_b32 v{T+1}, 4, v{T+1}              ; g*16
    s_mul_i32 s{S['t1']}, s{S['wf']}, 192
    s_add_u32 s{S['t1']}, s{S['t1']}, {CSL}
    v_add_u32 v{T+1}, s{S['t1']}, v{T+1}
    """)
    for nt in range(2): A(f"ds_read_b64 v[{FS+2*nt}:{FS+2*nt+1}], v{T} offset:{256*nt}")
    for t in range(3):
        for q in range(4):
            hq,mat=q>>1,q&1
            A(f"ds_read_b128 v[{CSR+(t*4+q)*4}:{CSR+(t*4+q)*4+3}], v{T+1} offset:{mat*384+t*64+hq*32}")
    A(f"""
    v_and_b32 v{T}, 15, v{VLANE}                 ; n16
    v_bfe_u32 v{T+2}, v{VLANE}, 4, 1
    v_mul_u32_u24 v{T+2}, {48*1024}, v{T+2}
    v_lshl_add_u32 v{T+2}, v{T}, 4, v{T+2}
    v_lshrrev_b32 v{T}, 5, v{VLANE}
    v_lshl_add_u32 v{VHA}, v{T}, 8, v{T+2}       ; + g*256
    s_lshl_b32 s{S['t0']}, s{S['rb']}, 3
    s_lshl_b32 s{S['t1']}, s{S['wt']}, 2
    s_add_u32 s{S['t0']}, s{S['t0']}, s{S['t1']}
    s_mul_i32 s{S['t0']}, s{S['t0']}, 48
    s_mul_i32 s{S['t1']}, s{S['cb']}, 3
    s_add_u32 s{S['t0']}, s{S['t0']}, s{S['t1']}
    s_lshl_b32 s{S['t0']}, s{S['t0']}, 10
    s_add_u32 s{S['hb']}, s{S['t0']}, {hbase}
    """)
    for t in range(3):
        v0=(t>>1)*1024+(t&1)*512; v1=((3+t)>>1)*1024+((3+t)&1)*512
        A(f"s_mul_i32 s{S['t0']}, s{S['wf']}, {v1-v0}\ns_add_u32 s{S['t0']}, s{S['t0']}, {v0}\ns_add_u32 s{S['ho']+t}, s{S['t0']}, s{S['hb']}")
    A("s_waitcnt lgkmcnt(0)")
    for nt in range(2):
        m=FS+2*nt; r=m+1
        A(f"v_mul_f32 v{FR+4*nt}, 0xbfb8aa3b, v{r}\nv_mul_f32 v{FR+4*nt+2}, v{r}, v{r}\nv_sub_f32 v{m}, 0, v{m}")
    E=EP; k=0
    for t in range(3):
        for nt in range(2):
            a=acc(t,nt); negm=FS+2*nt; rp=FR+4*nt
            P=[(hq,ip) for hq in range(2) for ip in range(2)]
            G=lambda hq,ip: a+8*hq+2*ip
            U=lambda hq,ip: a+8*hq+4+2*ip
            CG=lambda hq,ip: CSR+(t*4+2*hq)*4+2*ip
            CU=lambda hq,ip: CSR+(t*4+2*hq+1)*4+2*ip
            O=EP+8+4*(k&1); k+=1
            for hq,ip in P: g=G(hq,ip); A(f"v_pk_fma_f32 v[{g}:{g+1}], v[{negm}:{negm+1}], v[{CG(hq,ip)}:{CG(hq,ip)+1}], v[{g}:{g+1}] op_sel_hi:[0,1,1]")
            for i,(hq,ip) in enumerate(P): g=G(hq,ip); A(f"v_pk_mul_f32 v[{E+2*i}:{E+2*i+1}], v[{g}:{g+1}], v[{rp}:{rp+1}] op_sel_hi:[1,0]")
            for hq,ip in P: u=U(hq,ip); A(f"v_pk_fma_f32 v[{u}:{u+1}], v[{negm}:{negm+1}], v[{CU(hq,ip)}:{CU(hq,ip)+1}], v[{u}:{u+1}] op_sel_hi:[0,1,1]")
            for i in range(8): A(f"v_exp_f32 v{E+i}, v{E+i}")
            for hq,ip in P: g=G(hq,ip); u=U(hq,ip); A(f"v_pk_mul_f32 v[{g}:{g+1}], v[{g}:{g+1}], v[{u}:{u+1}]")
            for i in range(4): A(f"v_pk_add_f32 v[{E+2*i}:{E+2*i+1}], v[{E+2*i}:{E+2*i+1}], 1.0 op_sel_hi:[1,0]")
            for hq,ip in P: g=G(hq,ip); A(f"v_pk_mul_f32 v[{g}:{g+1}], v[{g}:{g+1}], v[{rp+2}:{rp+3}] op_sel_hi:[1,0]")
            for i in range(8): A(f"v_rcp_f32 v{E+i}, v{E+i}")
            A("s_nop 0")
            for i,(hq,ip) in enumerate(P): g=G(hq,ip); A(f"v_pk_mul_f32 v[{g}:{g+1}], v[{g}:{g+1}], v[{E+2*i}:{E+2*i+1}]")
            for i,(hq,ip) in enumerate(P): g=G(hq,ip); A(f"v_cvt_pk_bf16_f32 v{O+i}, v{g}, v{g+1}")
            A(f"s_add_u32 s{S['t0']}, s{S['ho']+t}, {2*nt*48*1024}\ns_nop 0\nbuffer_store_dwordx4 v[{O}:{O+3}], v{VHA}, s[{srd}:{srd+3}], s{S['t0']} offen {flags}")

GL=160
def g_ln_loads(A,S):
    t=GL+36
    A(f"""
    v_lshrrev_b32 v{t}, 5, v{VLANE}
    v_and_b32 v{t+1}, 31, v{VLANE}
    v_mul_u32_u24 v{t+2}, 1280, v{t}
    v_lshl_add_u32 v{t+2}, v{t+1}, 4, v{t+2}
    s_lshl_b32 s{S['t0']}, s{S['wg']}, 3
    s_lshl_b32 s{S['t1']}, s{S['w']}, 1
    s_add_u32 s{S['t0']}, s{S['t0']}, s{S['t1']}
    s_mul_i32 s{S['lnb']}, s{S['t0']}, 1280
    v_mov_b32 v{GL+8}, 0
    v_mov_b32 v{GL+9}, 0
    v_mov_b32 v{GL+10}, 0
    v_mov_b32 v{GL+11}, 0
    """)
def g_ln_issue(A,S):
    t=GL+36
    A(f"""
    buffer_load_dwordx4 v[{GL}:{GL+3}], v{t+2}, s[{S['srdx']}:{S['srdx']+3}], s{S['lnb']} offen
    buffer_load_dwordx4 v[{GL+4}:{GL+7}], v{t+2}, s[{S['srdx']}:{S['srdx']+3}], s{S['lnb']} offen offset:512
    s_mov_b32 exec_lo, 0xffff
    s_mov_b32 exec_hi, 0xffff
    buffer_load_dwordx4 v[{GL+8}:{GL+11}], v{t+2}, s[{S['srdx']}:{S['srdx']+3}], s{S['lnb']} offen offset:1024
    s_mov_b64 exec, -1
    """)
def g_ln_compute(A,S,lb,rs,lst):
    F=GL+12; t=GL+36; M=t+4; R=t+6; T=t+8; NR=t+12
    for k in range(12):
        A(f"v_lshlrev_b32 v{F+2*k}, 16, v{GL+k}\nv_and_b32 v{F+2*k+1}, 0xffff0000, v{GL+k}")
    A(f"v_pk_add_f32 v[{M}:{M+1}], v[{F}:{F+1}], v[{F+2}:{F+3}]\nv_pk_mul_f32 v[{R}:{R+1}], v[{F}:{F+1}], v[{F}:{F+1}]")
    A(f"v_pk_fma_f32 v[{R}:{R+1}], v[{F+2}:{F+3}], v[{F+2}:{F+3}], v[{R}:{R+1}]")
    for k in range(2,12):
        f=F+2*k
        A(f"v_pk_add_f32 v[{M}:{M+1}], v[{M}:{M+1}], v[{f}:{f+1}]\nv_pk_fma_f32 v[{R}:{R+1}], v[{f}:{f+1}], v[{f}:{f+1}], v[{R}:{R+1}]")
    A(f"s_nop 0\nv_add_f32 v{M}, v{M}, v{M+1}\nv_add_f32 v{R}, v{R}, v{R+1}")
    for mod in ("quad_perm:[1,0,3,2]","quad_perm:[2,3,0,1]","row_half_mirror","row_mirror"):
        A(f"s_nop 1\nv_add_f32_dpp v{M}, v{M}, v{M} {mod} row_mask:0xf bank_mask:0xf\nv_add_f32_dpp v{R}, v{R}, v{R} {mod} row_mask:0xf bank_mask:0xf")
    A(f"""
    v_mov_b32 v{T}, v{M}
    v_mov_b32 v{T+1}, v{R}
    s_nop 1
    v_permlane16_swap_b32 v{T}, v{M}
    v_permlane16_swap_b32 v{T+1}, v{R}
    s_nop 1
    v_add_f32 v{M}, v{M}, v{T}
    v_add_f32 v{R}, v{R}, v{T+1}
    v_mul_f32 v{M}, 0x3acccccd, v{M}
    v_mul_f32 v{R}, 0x3acccccd, v{R}
    v_fma_f32 v{R}, -v{M}, v{M}, v{R}
    v_max_f32 v{R}, 0, v{R}
    v_cvt_pk_bf16_f32 v{R}, v{R}, v{R}
    v_cvt_pk_bf16_f32 v{M}, v{M}, v{M}
    v_lshlrev_b32 v{R}, 16, v{R}
    v_lshlrev_b32 v{M}, 16, v{M}
    v_add_f32 v{R}, 0x3727c5ac, v{R}
    v_cvt_pk_bf16_f32 v{R}, v{R}, v{R}
    v_lshlrev_b32 v{R}, 16, v{R}
    v_sqrt_f32 v{R}, v{R}
    s_nop 0
    v_cvt_pk_bf16_f32 v{R}, v{R}, v{R}
    v_lshlrev_b32 v{R}, 16, v{R}
    v_rcp_f32 v{R}, v{R}
    s_nop 0
    v_mov_b32 v{M+1}, v{R}
    v_mul_f32 v{NR}, v{M}, v{R}
    v_mov_b32 v{NR+2}, v{R}
    v_sub_f32 v{NR}, 0, v{NR}
    v_lshrrev_b32 v{T}, 5, v{VLANE}
    s_lshl_b32 s{S['t1']}, s{S['w']}, 1
    v_add_u32 v{T}, s{S['t1']}, v{T}
    v_lshlrev_b32 v{T+1}, 3, v{T}
    v_add_u32 v{T+1}, {lst}, v{T+1}
    v_mul_u32_u24 v{T}, {rs}, v{T}
    v_and_b32 v{T+2}, 31, v{VLANE}
    v_lshl_add_u32 v{T}, v{T+2}, 4, v{T}
    v_add_u32 v{T}, {lb}, v{T}
    """)
    for k in range(12):
        f=F+2*k
        A(f"v_pk_fma_f32 v[{f}:{f+1}], v[{f}:{f+1}], v[{NR+2}:{NR+3}], v[{NR}:{NR+1}] op_sel_hi:[1,0,0]")
    for k in range(12):
        f=F+2*k
        A(f"v_cvt_pk_bf16_f32 v{GL+k}, v{f}, v{f+1}")
    A(f"""
    ds_write_b128 v{T}, v[{GL}:{GL+3}]
    ds_write_b128 v{T}, v[{GL+4}:{GL+7}] offset:512
    s_mov_b32 exec_lo, 0xffff
    s_mov_b32 exec_hi, 0xffff
    ds_write_b128 v{T}, v[{GL+8}:{GL+11}] offset:1024
    s_mov_b32 exec_lo, 1
    s_mov_b32 exec_hi, 1
    ds_write_b64 v{T+1}, v[{M}:{M+1}]
    s_mov_b64 exec, -1
    """)

def g_epilogue2(A,S,srd,hbase,flags,mid):
    T=VT0
    A(f"""
    v_and_b32 v{T}, 31, v{VLANE}
    s_lshl_b32 s{S['t0']}, s{S['wt']}, 6
    v_add_u32 v{T}, s{S['t0']}, v{T}
    v_lshlrev_b32 v{T}, 3, v{T}
    v_add_u32 v{T}, {STAT}, v{T}
    v_lshrrev_b32 v{T+1}, 5, v{VLANE}
    v_lshlrev_b32 v{T+1}, 4, v{T+1}
    s_mul_i32 s{S['t1']}, s{S['wf']}, 192
    s_add_u32 s{S['t1']}, s{S['t1']}, {CSL}
    v_add_u32 v{T+1}, s{S['t1']}, v{T+1}
    """)
    for nt in range(2): A(f"ds_read_b64 v[{FS+2*nt}:{FS+2*nt+1}], v{T} offset:{256*nt}")
    for t in range(3):
        for q in range(4):
            hq,mat=q>>1,q&1
            A(f"ds_read_b128 v[{CSR+(t*4+q)*4}:{CSR+(t*4+q)*4+3}], v{T+1} offset:{mat*384+t*64+hq*32}")
    A(f"""
    v_and_b32 v{T}, 15, v{VLANE}
    v_bfe_u32 v{T+2}, v{VLANE}, 4, 1
    v_mul_u32_u24 v{T+2}, {48*1024}, v{T+2}
    v_lshl_add_u32 v{T+2}, v{T}, 4, v{T+2}
    v_lshrrev_b32 v{T}, 5, v{VLANE}
    v_lshl_add_u32 v{VHA}, v{T}, 8, v{T+2}
    s_lshl_b32 s{S['t0']}, s{S['rb']}, 3
    s_lshl_b32 s{S['t1']}, s{S['wt']}, 2
    s_add_u32 s{S['t0']}, s{S['t0']}, s{S['t1']}
    s_mul_i32 s{S['t0']}, s{S['t0']}, 48
    s_mul_i32 s{S['t1']}, s{S['cb']}, 3
    s_add_u32 s{S['t0']}, s{S['t0']}, s{S['t1']}
    s_lshl_b32 s{S['t0']}, s{S['t0']}, 10
    s_add_u32 s{S['hb']}, s{S['t0']}, {hbase}
    """)
    for t in range(3):
        v0=(t>>1)*1024+(t&1)*512; v1=((3+t)>>1)*1024+((3+t)&1)*512
        A(f"s_mul_i32 s{S['t0']}, s{S['wf']}, {v1-v0}\ns_add_u32 s{S['t0']}, s{S['t0']}, {v0}\ns_add_u32 s{S['ho']+t}, s{S['t0']}, s{S['hb']}")
    A("s_waitcnt lgkmcnt(0)")
    for nt in range(2):
        m=FS+2*nt; r=m+1
        A(f"v_mul_f32 v{FR+4*nt}, 0xbfb8aa3b, v{r}\nv_mul_f32 v{FR+4*nt+2}, v{r}, v{r}\nv_sub_f32 v{m}, 0, v{m}")
    PP=[(hq,ip) for hq in range(2) for ip in range(2)]
    EA=96
    tiles=[(t,nt) for t in range(3) for nt in range(2)]
    for k,(t,nt) in enumerate(tiles):
        a=acc(t,nt); negm=FS+2*nt; rp=FR+4*nt; E=EA+8*k
        G=lambda hq,ip: a+8*hq+2*ip
        U=lambda hq,ip: a+8*hq+4+2*ip
        CG=lambda hq,ip: CSR+(t*4+2*hq)*4+2*ip
        CU=lambda hq,ip: CSR+(t*4+2*hq+1)*4+2*ip
        for hq,ip in PP: g=G(hq,ip); A(f"v_pk_fma_f32 v[{g}:{g+1}], v[{negm}:{negm+1}], v[{CG(hq,ip)}:{CG(hq,ip)+1}], v[{g}:{g+1}] op_sel_hi:[0,1,1]")
        for hq,ip in PP: u=U(hq,ip); A(f"v_pk_fma_f32 v[{u}:{u+1}], v[{negm}:{negm+1}], v[{CU(hq,ip)}:{CU(hq,ip)+1}], v[{u}:{u+1}] op_sel_hi:[0,1,1]")
        for i,(hq,ip) in enumerate(PP): g=G(hq,ip); A(f"v_pk_mul_f32 v[{E+2*i}:{E+2*i+1}], v[{g}:{g+1}], v[{rp}:{rp+1}] op_sel_hi:[1,0]")
        for hq,ip in PP: g=G(hq,ip); u=U(hq,ip); A(f"v_pk_mul_f32 v[{g}:{g+1}], v[{g}:{g+1}], v[{u}:{u+1}]")
        for hq,ip in PP: g=G(hq,ip); A(f"v_pk_mul_f32 v[{g}:{g+1}], v[{g}:{g+1}], v[{rp+2}:{rp+3}] op_sel_hi:[1,0]")
    mid()
    for k,(t,nt) in enumerate(tiles):
        a=acc(t,nt); E=EA+8*k; O=EP+8+4*(k&1)
        G=lambda hq,ip: a+8*hq+2*ip
        for i in range(8): A(f"v_exp_f32 v{E+i}, v{E+i}")
        for i in range(8): A(f"v_add_f32 v{E+i}, 1.0, v{E+i}")
        for i in range(8): A(f"v_rcp_f32 v{E+i}, v{E+i}")
        A("s_nop 0")
        for i,(hq,ip) in enumerate(PP):
            g=G(hq,ip); A(f"v_mul_f32 v{g}, v{g}, v{E+2*i}\nv_mul_f32 v{g+1}, v{g+1}, v{E+2*i+1}")
        for i,(hq,ip) in enumerate(PP): g=G(hq,ip); A(f"v_cvt_pk_bf16_f32 v{O+i}, v{g}, v{g+1}")
        A(f"s_add_u32 s{S['t0']}, s{S['ho']+t}, {2*nt*48*1024}\ns_nop 0\nbuffer_store_dwordx4 v[{O}:{O+3}], v{VHA}, s[{srd}:{srd+3}], s{S['t0']} offen {flags}")
```

```python
import sys, os
from g32lib import *
from kgenlib import *
from htasks import *
import conv3lib as CV
from asmlib import KMAIN
DIAG=bool(os.environ.get('DIAG'))
E=lambda k,d: int(os.environ.get(k,d))
S=dict(x=20,j=21,rb=22,cb=23,hw=24,w=25,wf=26,wt=27,t0=28,t1=29,sx=30,sw=31,mx=32,mw=33,sl=34,rot=35,
       srdx=8,srd1=12,srd3=16,hb=60,ho=61,wg=2,
       ch=88,kb=89,k0=90,k1=91,sv=92,h0=94,h1=95,h2=96,h3=97,lb=98,u=99,m48=100,nch=101,
       sA=40,sI=44,sR=48,sC=52,sD=56,fst=72,fcs=73,db=3,spin=82,lnb=83)
WS=36
KB0=HSCR
LB_L=HSCR+3*KSCR
LB_W=HSCR+2*KSCR
LCNT=LB_L+11008
LST=LCNT+64
LDS_S3=LCNT+2816
WPF=40960; WPFW=20480
ATL=LB_L; ATRS=136
HLANE=11
END="Lmain_end"
class St:
    def __init__(s,regs): s.regs=list(regs); s.used={}
    def __call__(s,A,idx,rt=False):
        if not DIAG: return
        if os.environ.get('GDIAG')=='rt':
            if idx not in (1,3,5,6,8,11,32): return
            rt=True
        if idx in s.used or not s.regs: return
        r=s.regs.pop(0); s.used[idx]=r
        A(f"{'s_memrealtime' if rt else 's_memtime'} s[{r}:{r+1}]")
    def dump(s,A):
        if not DIAG: return
        A(f"s_waitcnt vmcnt(0) lgkmcnt(0)\ns_lshl_b32 s27, s2, 11\ns_lshl_b32 s28, s25, 8\ns_add_u32 s27, s27, s28\ns_add_u32 s27, s27, {STAMP}\nv_mov_b32 v9, 0\ns_mov_b64 exec, 1")
        for idx,r in s.used.items():
            A(f"v_mov_b32 v10, s{r}\nbuffer_store_dword v10, v9, s[36:39], s27 offen offset:{4*idx}")
def mark(P,st): P.it.append(('MARK',st,0))
def must(P,st): P.it.append(('MUST',st,0))
def h_schedule(A,P,budget,pre,sv,which=range(10),hook=None,emref=None):
    Em=Emit(A)
    if emref is not None: emref[0]=Em
    items=list(P.it); pos=[0]; locked=[0]
    def run_until(cost,window):
        c=0
        while pos[0]<len(items):
            x=items[pos[0]]
            if x[0]=='MARK':
                if x[1]>window: return
                pos[0]+=1; continue
            if x[0]=='MUST': pos[0]+=1; continue
            if x[0]=='LOCK': locked[0]=x[1]; pos[0]+=1; continue
            force=any(y[0]=='MUST' and y[1]<=window for y in items[pos[0]:])
            if c>=cost and not locked[0] and not force: return
            Em.item(x); c+=x[2]; pos[0]+=1
    run_until(pre,-1)
    for st in range(NST):
        if st in which: sv(A,16+st)
        A("s_barrier")
        if hook and st in hook: hook[st]()
        run_until(budget,st)
    return Em,items[pos[0]:]
def g2_phase(A,stamp):
    ACC2=0; WR_=80; HR=160; TT=208; MS=228
    VL=MS; VLN=MS+3; VT=MS+4
    lane=VLANE
    A(f"""
    s_waitcnt vmcnt(0)
    v_mov_b32 v{VT0}, {LCNT}
    v_mov_b32 v{VT0+1}, 1
    s_mov_b64 s[58:59], exec
    s_mov_b64 exec, 1
    ds_add_rtn_u32 v{VT0+2}, v{VT0}, v{VT0+1}
    s_waitcnt lgkmcnt(0)
    v_readfirstlane_b32 s28, v{VT0+2}
    s_nop 3
    s_cmp_eq_u32 s28, 3
    s_cbranch_scc0 Lnopubh
    s_lshl_b32 s28, s22, 4
    s_add_u32 s28, s28, s23
    s_lshl_b32 s28, s28, 7
    s_add_u32 s28, s28, {FH}
    v_mov_b32 v{VT0}, 0
    buffer_store_dword v{VT0+1}, v{VT0}, s[36:39], s28 offen sc1
    Lnopubh:
    s_mov_b64 exec, s[58:59]
    """)
    stamp(A,5)
    A(f"""
    s_lshr_b32 s49, s20, 1
    s_lshl_b32 s49, s49, 3
    s_and_b32 s28, s21, 7
    s_add_u32 s49, s49, s28
    v_mov_b32 v{VLN}, v{lane}
    v_lshlrev_b32 v{VL}, 4, v{lane}
    v_add_u32 v{VL+1}, 4096, v{VL}
    v_add_u32 v{VL+2}, 8192, v{VL}
    s_mul_i32 s26, s25, 12
    """)
    for dt in range(5):
        A(f"s_mul_i32 s27, s3, 5\ns_add_u32 s27, s27, {dt}\ns_mul_i32 s27, s27, 48\ns_add_u32 s27, s27, s26\ns_lshl_b32 s27, s27, 10\ns_add_u32 s{44+dt}, s27, {W2F}")
    vm=[]
    def wreg(k,dt): return WR_+20*k+4*dt
    def hreg(s,nt): return HR+16*(s%3)+4*nt
    def wl(s,k,tag=None):
        va=VL+(s>>2); imm=1024*(s&3)
        for dt in range(5):
            A(f"buffer_load_dwordx4 v[{wreg(k,dt)}:{wreg(k,dt)+3}], v{va}, s[36:39], s{44+dt} offen offset:{imm} {os.environ.get('WSC','sc1')}"); vm.append(tag or ('w',s))
    def hl(s):
        va=VL+(s>>2); imm=1024*(s&3)
        for nt in range(4):
            A(f"buffer_load_dwordx4 v[{hreg(s,nt)}:{hreg(s,nt)+3}], v{va}, s[36:39], s{30+nt} offen offset:{imm} {os.environ.get('HSC','sc1')}"); vm.append(('h',s))
    def wait(*tags):
        idx=max(max(i for i,t in enumerate(vm) if t==tag) for tag in tags); A(f"s_waitcnt vmcnt({min(63,len(vm)-1-idx)})")
    for k in range(4): wl(4+k,k)
    A(f"s_mul_i32 s27, s25, {WPFW}\ns_add_u32 s27, s27, {WPF}\nv_add_u32 v{VT}, s27, v{VL}")
    for nt in range(4):
        A(f"s_lshl_b32 s27, s49, 2\ns_add_u32 s27, s27, {nt}\ns_mul_i32 s27, s27, 48\ns_add_u32 s27, s27, s26\ns_lshl_b32 s27, s27, 10\ns_add_u32 s{30+nt}, s27, {HF}")
    for k in range(4):
        wait(('w',4+k))
        for dt in range(5): A(f"ds_write_b128 v{VT}, v[{wreg(k,dt)}:{wreg(k,dt)+3}] offset:{(k*5+dt)*1024}")
    A("s_waitcnt lgkmcnt(0)")
    for k in range(4): wl(k,k)
    for i in range(80): A(f"v_mov_b32 v{ACC2+i}, 0")
    A(f"""
    v_and_b32 v{VT+1}, 3, v{VLN}
    v_lshlrev_b32 v{VT+1}, 7, v{VT+1}
    s_lshr_b32 s27, s49, 1
    s_lshl_b32 s27, s27, 11
    s_lshl_b32 s28, s25, 9            ; this wave's K quarter comes from column blocks 4w..4w+3
    s_add_u32 s27, s27, s28
    s_add_u32 s50, s27, {FH}
    buffer_load_dword v{VT+2}, v{VT+1}, s[36:39], s50 offen sc1
    s_waitcnt vmcnt(0)
    """)
    A(spin('h',f"buffer_load_dword v{VT+2}, v{VT+1}, s[36:39], s50 offen sc1",f"v_cmp_eq_u32 vcc, 1, v{VT+2}",S,END,sleep=1))
    stamp(A,6)
    vm.clear()
    for s in range(3): hl(s)
    lg=[]
    def tread(s,dt):
        A(f"ds_read_b128 v[{TT+4*dt}:{TT+4*dt+3}], v{VT} offset:{((s-4)*5+dt)*1024}"); lg.append((s,dt))
    def lwait(tag):
        idx=lg.index(tag); A(f"s_waitcnt lgkmcnt({len(lg)-1-idx})")
    PF=VT+4; assert PF%2==0
    XR=TT
    XA=VT+8; ATG=VT+9; ATA=VT+10; AS=WR_
    A(f"""
    v_and_b32 v{VT+3}, 31, v{VLN}
    v_lshlrev_b32 v{VT+3}, 7, v{VT+3}
    s_lshl_b32 s41, s3, 12
    s_add_u32 s41, s41, {FD}
    v_and_b32 v{VT+11}, 15, v{VLN}
    v_lshrrev_b32 v{VT+12}, 4, v{VLN}
    v_mul_u32_u24 v{VT+11}, 1280, v{VT+11}
    v_mul_u32_u24 v{VT+12}, 40, v{VT+12}
    v_add_u32 v{XA}, v{VT+11}, v{VT+12}
    s_lshl_b32 s27, s49, 6
    s_lshl_b32 s28, s25, 4
    s_add_u32 s27, s27, s28
    s_mul_i32 s27, s27, 1280
    s_mul_i32 s28, s3, 160
    s_add_u32 s40, s27, s28
    v_lshrrev_b32 v{VT+11}, 3, v{VLN}
    v_and_b32 v{VT+12}, 7, v{VLN}
    v_lshlrev_b32 v{ATG}, 12, v{VT+11}
    v_lshl_add_u32 v{ATG}, v{VT+12}, 4, v{ATG}
    v_mul_u32_u24 v{ATA}, {ATRS}, v{VT+11}
    v_lshl_add_u32 v{ATA}, v{VT+12}, 4, v{ATA}
    s_mul_i32 s27, s3, {80*4096}
    s_lshl_b32 s28, s49, 7
    s_add_u32 s27, s27, s28
    s_lshl_b32 s28, s25, 15
    s_add_u32 s27, s27, s28
    s_add_u32 s42, s27, {AT}
    s_mul_i32 s28, s25, {8*ATRS}
    s_add_u32 s43, s28, {ATL}
    v_add_u32 v{ATA}, s43, v{ATA}
    s_mov_b32 s51, 0
    """)
    def atloads(u):
        for i in range(3):
            if i<2: A(f"s_add_u32 s27, s42, {i*32*4096}\nbuffer_load_dwordx4 v[{AS+4*i}:{AS+4*i+3}], v{ATG}, s[36:39], s27 offen sc1")
            else: A(f"s_cmp_lt_u32 s25, 2\ns_cbranch_scc0 Lnoat{u}\ns_add_u32 s27, s42, {i*32*4096}\nbuffer_load_dwordx4 v[{AS+4*i}:{AS+4*i+3}], v{ATG}, s[36:39], s27 offen sc1\nLnoat{u}:")
    fdchk=f"v_and_b32 v{PF}, v{PF}, v{PF+1}\nv_and_b32 v{PF}, v{PF}, v{PF+2}\nv_cmp_eq_u32 vcc, 1, v{PF}"
    fdld=f"buffer_load_dwordx4 v[{PF}:{PF+3}], v{VT+3}, s[36:39], s41 offen sc1"
    pend=[]
    def one_h(s,nt):
        va=VL+(s>>2); imm=1024*(s&3)
        A(f"buffer_load_dwordx4 v[{hreg(s,nt)}:{hreg(s,nt)+3}], v{va}, s[36:39], s{30+nt} offen offset:{imm} {os.environ.get('HSC','sc1')}"); vm.append(('h',s))
    def one_w(s,k,dt):
        va=VL+(s>>2); imm=1024*(s&3)
        A(f"buffer_load_dwordx4 v[{wreg(k,dt)}:{wreg(k,dt)+3}], v{va}, s[36:39], s{44+dt} offen offset:{imm} {os.environ.get('WSC','sc1')}"); vm.append(('w',s))
    hq=[]; wq=[]
    def pump(n=1):
        for _ in range(n):
            if hq: f=hq.pop(0); f()
            elif wq: f=wq.pop(0); f()
    for s in range(12):
        tags=[('h',s)]+([('w',s)] if s>=8 else [])
        assert not any(True for f in hq if f.step<=s), "h load not issued in time"
        if s<=10: wait(*tags)
        if s==0: stamp(A,7)
        if os.environ.get('GDIAG')=='g2' and s in (1,2,3,4,6,8,10): stamp(A,40+s)
        lds=4<=s<8
        if lds:
            for dt in range(5):
                lwait((s,dt)); a_=TT+4*dt
                for nt in range(4):
                    a=ACC2+(nt*5+dt)*4
                    A(f"v_mfma_f32_16x16x32_bf16 v[{a}:{a+3}], v[{a_}:{a_+3}], v[{hreg(s,nt)}:{hreg(s,nt)+3}], v[{a}:{a+3}]")
                if s<7: tread(s+1,dt)
                pump()
            if s+3<12:
                for nt in range(4):
                    f=(lambda s_=s+3,nt_=nt: one_h(s_,nt_)); f.step=s+3; hq.append(f)
        else:
            for nt in range(4):
                for dt in range(5):
                    a=ACC2+(nt*5+dt)*4; a_=wreg(s%4,dt)
                    A(f"v_mfma_f32_16x16x32_bf16 v[{a}:{a+3}], v[{a_}:{a_+3}], v[{hreg(s,nt)}:{hreg(s,nt)+3}], v[{a}:{a+3}]")
                    if s==3 and nt==3: tread(4,dt)
                    if dt==1 and nt>0: pump()
                if s+3<12:
                    f=(lambda s_=s+3,nt_=nt: one_h(s_,nt_)); f.step=s+3; hq.append(f)
                pump()
                if s==11 and E('EARLYRED',0) and nt>=1: pass
            if s<4:
                for dt in range(5):
                    f=(lambda s_=8+s,k_=s,dt_=dt: one_w(s_,k_,dt_)); f.step=8+s; wq.append(f)
        if s==7:
            pump(len(hq)+len(wq))
        if s==8:
            pump(len(hq)+len(wq))
            A(fdld); vm.append(('p',0))
            A(f"buffer_load_dwordx4 v[{XR}:{XR+3}], v{XA}, s[8:11], s40 offen\nbuffer_load_dwordx4 v[{XR+4}:{XR+7}], v{XA}, s[8:11], s40 offen offset:16\nbuffer_load_dwordx2 v[{XR+8}:{XR+9}], v{XA}, s[8:11], s40 offen offset:32")
            vm.extend([('x',0)]*3)
        if s==10:
            wait(('p',0))
            A(fdchk+"\ns_nop 1\ns_cmp_eq_u64 vcc, exec\ns_cbranch_scc0 Lnotyet\ns_mov_b32 s51, 1")
            atloads('e')
            A("Lnotyet:")
    assert not hq and not wq
    stamp(A,8)
    FR=96
    A(f"s_cmp_eq_u32 s51, 1\ns_cbranch_scc1 Lhave\n{fdld}\ns_waitcnt vmcnt(0)")
    A(spin('d',fdld,fdchk,S,END,sleep=1))
    atloads('l')
    A("Lhave:")
    VA=ATA
    R0=FR
    A(f"v_add_u32 v{VL+1}, {WPF}, v{VL}\nv_add_u32 v{VL+2}, {WPF+49152}, v{VL}")
    for w in range(4):
        lab=A.label('w')
        if w<3: A(f"s_cmp_lg_u32 s25, {w}\ns_cbranch_scc1 {lab}")
        for nt in range(4):
            if nt==w: continue
            sl=nt if nt<w else nt-1
            for dt in range(5):
                a=ACC2+(nt*5+dt)*4
                off=w*WPFW+(sl*5+dt)*1024
                va,o=(VL+1,off) if off<65536-1024 else (VL+2,off-49152)
                if w==0 and nt==1 and dt==0: pass
                A(f"ds_write_b128 v{va}, v[{a}:{a+3}] offset:{o}")
        A("s_waitcnt vmcnt(0)")
        for i in range(3):
            if i==2 and w>=2: continue
            for h in range(2): A(f"ds_write_b64 v{VA}, v[{AS+4*i+2*h}:{AS+4*i+2*h+1}] offset:{i*32*ATRS+8*h}")
        A("s_waitcnt lgkmcnt(0)\ns_barrier")
        kk=0
        for src in range(4):
            if src==w: continue
            sl=w if w<src else w-1
            for dt in range(5):
                off=src*WPFW+(sl*5+dt)*1024
                va,o=(VL+1,off) if off<65536-1024 else (VL+2,off-49152)
                A(f"ds_read_b128 v[{R0+(kk*5+dt)*4}:{R0+(kk*5+dt)*4+3}], v{va} offset:{o}")
            kk+=1
        if w:
            for r in range(20): A(f"v_mov_b32 v{ACC2+r}, v{ACC2+w*20+r}")
        if w<3: A(f"s_branch Lred\n{lab}:")
    A("Lred:")
    A(f"""
    v_lshrrev_b32 v{VT}, 4, v{VLN}
    v_mul_u32_u24 v{VT}, 20, v{VT}
    v_bfe_u32 v{VT+1}, v{VLN}, 2, 2
    v_add_u32 v{VT}, v{VT}, v{VT+1}
    v_mul_u32_u24 v{VT}, {ATRS}, v{VT}
    v_and_b32 v{VT+1}, 3, v{VLN}
    v_lshl_add_u32 v{VT}, v{VT+1}, 3, v{VT}
    s_lshl_b32 s27, s25, 5
    s_add_u32 s27, s27, {ATL}
    v_add_u32 v{VT}, s27, v{VT}
    """)
    AR=R0+60
    for dt in range(5): A(f"ds_read_b64_tr_b16 v[{AR+2*dt}:{AR+2*dt+1}], v{VT} offset:{4*dt*ATRS}")
    A(f"s_waitcnt lgkmcnt(5)")
    for src in range(3):
        for r in range(0,20,2): A(f"v_pk_add_f32 v[{ACC2+r}:{ACC2+r+1}], v[{ACC2+r}:{ACC2+r+1}], v[{R0+src*20+r}:{R0+src*20+r+1}]")
    stamp(A,9)
    A("s_waitcnt lgkmcnt(0)")
    W=R0
    for e2 in range(10):
        x=XR+e2; a=AR+e2; b0=ACC2+2*e2; w=W+4*(e2%4)
        A(f"""
        v_lshlrev_b32 v{w}, 16, v{x}
        v_and_b32 v{w+1}, 0xffff0000, v{x}
        v_lshlrev_b32 v{w+2}, 16, v{a}
        v_and_b32 v{w+3}, 0xffff0000, v{a}
        v_pk_add_f32 v[{b0}:{b0+1}], v[{b0}:{b0+1}], v[{w}:{w+1}]
        v_pk_add_f32 v[{b0}:{b0+1}], v[{b0}:{b0+1}], v[{w+2}:{w+3}]
        v_cvt_pk_bf16_f32 v{W+20+e2}, v{b0}, v{b0+1}
        """)
    A(f"buffer_store_dwordx4 v[{W+20}:{W+23}], v{XA}, s[52:55], s40 offen\nbuffer_store_dwordx4 v[{W+24}:{W+27}], v{XA}, s[52:55], s40 offen offset:16\nbuffer_store_dwordx2 v[{W+28}:{W+29}], v{XA}, s[52:55], s40 offen offset:32")
def build(A):
    n=KMAIN; A.begin(n)
    A("s_cmp_ge_u32 s2, 256\ns_cbranch_scc1 Lmain_end")
    A(f"""
    s_load_dwordx2 s[4:5], s[0:1], {ARG['u']}
    s_load_dwordx4 s[76:79], s[0:1], {ARG['w1']}
    s_load_dwordx4 s[84:87], s[0:1], {ARG['dbg']}
    s_load_dwordx8 s[64:71], s[0:1], {ARG['logA']}
    s_load_dwordx2 s[74:75], s[0:1], {ARG['logdt']}
    s_load_dwordx4 s[44:47], s[0:1], {ARG['w2']}      ; w2, out
    s_load_dwordx2 s[18:19], s[0:1], {ARG['Dskip']}
    s_and_b32 s20, s2, 7          ; x
    s_lshr_b32 s21, s2, 3         ; j
    s_and_b32 s22, s20, 1
    s_lshl_b32 s22, s22, 3
    s_and_b32 s23, s21, 7
    s_add_u32 s22, s22, s23       ; rb
    s_lshr_b32 s23, s20, 1
    s_lshl_b32 s23, s23, 2
    s_lshr_b32 s24, s21, 3
    s_add_u32 s23, s23, s24       ; cb
    s_and_b32 s3, s20, 1
    s_lshl_b32 s3, s3, 2
    s_add_u32 s3, s3, s24
    v_lshrrev_b32 v1, 6, v0
    s_cmp_ge_u32 s22, 10
    s_cselect_b32 s35, 10, 0
    v_readfirstlane_b32 s25, v1   ; wave
    s_sub_u32 s35, s22, s35       ; rot
    s_nop 2
    s_and_b32 s26, s25, 1         ; wf
    s_bfe_u32 s27, s25, 0x10001   ; wt
    s_and_b32 s24, s25, 3         ; hw
    s_cmp_ge_u32 s25, 4
    s_cbranch_scc1 Lhrole
    """)
    GLN=E('GLN',0)
    g_dma_addr(A,S)
    if GLN: g_ln_loads(A,S)
    A("s_waitcnt lgkmcnt(0)")
    A.srd(8,4,SIZE['u']); A.srd(12,76,SIZE['w1']); A.srd(16,78,SIZE['w3']); A.srd(WS,86,SIZE['ws']); A.srd(52,46,SIZE['out'])
    stamp=St(list(range(64,76,2))+[80]+list(range(84,102,2))+[56,42+0])
    stamp.regs=[r for r in stamp.regs if r not in (42,82)]
    stamp(A,0); stamp(A,1,True)
    PRE=E('GPRE',2)
    if GLN: g_ln_issue(A,S)
    for l in g_dma(S,0): A(l)
    g_lds_addr(A,S)
    for l in g_dma(S,1): A(l)
    A(f"s_cmp_eq_u32 s25, 0\ns_cbranch_scc0 Lnoci\nv_mov_b32 v{VT0}, {LCNT}\nv_mov_b32 v{VT0+1}, 0\nds_write_b32 v{VT0}, v{VT0+1}\nds_write_b32 v{VT0}, v{VT0+1} offset:4\nLnoci:")
    if PRE>=3:
        for l in g_dma(S,2): A(l)
    for i in range(96): A(f"v_mov_b32 v{ACC+i}, 0")
    if GLN:
        A(f"s_waitcnt vmcnt({10*PRE})")
        g_ln_compute(A,S,LB_L,LNRS,LST)
    def gstamp(st):
        if os.environ.get('GDIAG')=='win':
            if not isinstance(st,tuple): stamp(A,32+st)
            elif st[1] in (1,2,3,4,5): stamp(A,48+st[1])
        elif os.environ.get('GDIAG')=='g2': pass
        elif os.environ.get('GDIAG')=='rt':
            if st==0: stamp(A,32)
        elif not isinstance(st,tuple) and st in (0,3,6,9): stamp(A,32+st)
    g_loop(A,S,gstamp if DIAG else None,PRE=PRE)
    stamp(A,2)
    A("s_barrier")
    stamp(A,3)
    sig=lambda: A(f"v_mov_b32 v{VT0}, {LCNT+4}\nv_mov_b32 v{VT0+1}, 1\ns_mov_b64 s[58:59], exec\ns_mov_b64 exec, 1\nds_add_u32 v{VT0}, v{VT0+1}\ns_mov_b64 exec, s[58:59]")
    if E('EPI2',0): g_epilogue2(A,S,WS,HF,'sc1',sig)
    else:
        g_epilogue(A,S,WS,HF,'sc1'); sig()
    stamp(A,4)
    g2_phase(A,stamp)
    stamp(A,10); stamp(A,11,True)
    stamp.dump(A)
    A("s_branch Lmain_end")
    A("Lhrole:")
    A(f"v_and_b32 v{HLANE}, 63, v0")
    A(f"""
    s_mul_i32 s28, s21, 3
    s_lshl_b32 s29, s21, 1
    s_add_u32 s29, s29, 16
    s_cmp_lt_u32 s21, 16
    s_cselect_b32 s28, s28, s29
    s_cselect_b32 s101, 3, 2          ; nch
    s_mul_i32 s29, s20, 80
    s_add_u32 s28, s28, s29
    s_add_u32 s88, s28, s24           ; channel
    s_mul_i32 s89, s24, {KSCR}
    s_add_u32 s89, s89, {KB0}
    s_waitcnt lgkmcnt(0)
    s_mov_b32 s80, s44
    s_mov_b32 s81, s45
    """)
    A.srd(8,4,SIZE['u']); A.srd(WS,86,SIZE['ws'])
    A("s_cmp_eq_u32 s24, 3\ns_cbranch_scc1 Lrole_l\ns_cmp_lt_u32 s24, s101\ns_cbranch_scc0 Lrole_w")
    A.srd(40,64,245760); A.srd(44,66,245760); A.srd(48,68,245760); A.srd(52,70,245760); A.srd(56,74,1280); A.srd(12,18,SIZE['Dskip'])
    stamp=St([64,66,68,70,74,76,78,80,60,62,4,6]); stamp(A,0)
    SK=dict(S); SK['kb']=89
    P=Prog(); mark(P,-1); P.atom('s_setprio 3'); kgen_loads(P,S,HLANE,KV)
    P.i(f"s_lshl_b32 s29, s88, 1\nv_mov_b32 v30, s29"); P.vl("buffer_load_ushort v29, v30, s[12:15], 0 offen",'kp2',cost=30); P.atom('s_setprio 0')
    kgen_setup(P,S,HLANE); kgen_dt(P,S); P.wv('kp2'); kgen_groups(P,os.environ.get('PKG0','rows'),tailpk=bool(E('TAILPK',1)))
    SO=dict(S); SO['kb']=73
    P.i(f"s_add_u32 s73, s89, 16\nv_mov_b32 v28, s89\nv_mov_b32 v27, 0")
    kgen_out(P,SO,HLANE,WS,"",tolds=False) if False else None
    Pout=Prog(); Pout.l("ds_write_b32 v28, v27 offset:12"); kgen_out(Pout,SO,HLANE,WS,"",tolds=True)
    P.ext(Pout)
    P=schedule(P)
    if os.environ.get('KNOWR'): P.it=[x if not (x[0]=='L' and 'ds_write' in x[1]) else ('I','s_nop 0',4) for x in P.it]
    if os.environ.get('KNOVALU'): P.it=[x for x in P.it if not (x[0]=='I' and x[1].startswith('v_') and 'mfma' not in x[1] and 'readfirst' not in x[1])]
    SC=dict(base=30,ch=88,srd=36,t0=28,t1=29,sv=92,m0=52,m1=54,m2=56,dsk=33,kt=73,lane=HLANE)
    def w8hook():
        A(f"v_lshlrev_b32 v26, 4, v{HLANE}\ns_mov_b32 s31, {FX}\nbuffer_load_dwordx4 v[20:23], v26, s[36:39], s31 offen sc1")
        Em_[0].vm.append(('L','fx'))
    def w9hook():
        Em_[0].wait_vm('fx')
        A(spin('x',"buffer_load_dwordx4 v[20:23], v26, s[36:39], s31 offen sc1","v_and_b32 v24, v20, v21\nv_and_b32 v25, v22, v23\nv_and_b32 v24, v24, v25\nv_cmp_eq_u32 vcc, 1, v24",S,END))
        A(f"s_mul_i32 s30, s24, {CV.CW3}")
        CV.u_loads(A,SC)
        for q in range(4): Em_[0].vm.append(('L','u'))
    Em_=[None]
    Em,rest=h_schedule(A,P,E('KB',850),E('PREK',900),stamp,(0,3,6,9),hook={8:w8hook,9:w9hook},emref=Em_)
    A("s_barrier")
    A(f"s_setprio {E('XPRIO',2)}")
    stamp(A,2)
    for x in rest: Em.item(x)
    print("K role: total",sum(x[2] for x in P.it),"left after loop",sum(x[2] for x in rest))
    stamp(A,3)
    A("s_waitcnt vmcnt(0)\nv_lshlrev_b32 v29, 16, v29\ns_nop 0\nv_readfirstlane_b32 s33, v29")
    CV.u_store(A,SC)
    CV.conv_setup(A,SC)
    A("s_waitcnt lgkmcnt(0)")
    CV.conv_expand(A,SC)
    A("s_waitcnt lgkmcnt(0)")
    if E('CWAIT',1):
        A(f"""
        s_setprio 0
        v_mov_b32 v{CV.CTMP}, {LCNT+4}
        s_mov_b32 s34, 0
        Lcw:
        ds_read_b32 v{CV.CTMP+1}, v{CV.CTMP}
        s_waitcnt lgkmcnt(0)
        v_readfirstlane_b32 s28, v{CV.CTMP+1}
        s_add_u32 s34, s34, 1
        s_cmp_gt_u32 s34, {1<<23}
        s_cbranch_scc1 {END}
        s_cmp_eq_u32 s28, 4
        s_cbranch_scc1 Lcwok
        s_sleep 1
        s_branch Lcw
        Lcwok:
        """)
    stamp(A,4)
    A(f"s_setprio {E('CPRIO',1)}")
    CV.conv_main(A)
    A("s_nop 7")
    stamp(A,5)
    CV.conv_epilogue(A,SC,"sc1")
    A(f"""
    s_waitcnt vmcnt(0)
    s_lshl_b32 s28, s20, 5
    s_add_u32 s28, s28, s21
    s_lshl_b32 s28, s28, 7
    s_lshl_b32 s29, s24, 2
    s_add_u32 s28, s28, s29
    s_add_u32 s28, s28, {FD}
    v_mov_b32 v{CV.CTMP}, 0
    v_mov_b32 v{CV.CTMP+1}, 1
    s_mov_b64 s[92:93], exec
    s_mov_b64 exec, 1
    buffer_store_dword v{CV.CTMP+1}, v{CV.CTMP}, s[36:39], s28 offen sc1
    s_mov_b64 exec, s[92:93]
    """)
    stamp(A,6)
    stamp.dump(A)
    A("s_branch Lmain_end")
    A("Lrole_w:")
    A.srd(40,80,SIZE['w2'])
    A(f"s_sub_u32 s99, s21, 16\ns_lshl_b32 s99, s99, 3\ns_add_u32 s99, s99, s20\ns_mov_b32 s100, {magic(48)}\ns_mov_b32 s98, {LB_W}")
    SW=dict(S); SW['wo']=88
    P=Prog(); mark(P,-1); w2_setup(P,SW,HLANE); mark(P,0); w2b_loads(P,SW,40)
    for k in range(3):
        mark(P,k+1); w2b_unit(P,SW,k,HLANE,WS,"sc1")
    mark(P,5); s3_set_fw(P,SW,WS,WF); must(P,5)
    stamp=St([64,66,68,70,74,76,78,84,86,60,62]); Em,rest=h_schedule(A,P,800,600,stamp)
    assert not [x for x in rest if x[0] not in('MARK','MUST','LOCK')]
    A("s_barrier")
    stamp.dump(A)
    A("s_branch Lmain_end")
    A("Lrole_l:")
    A.srd(40,84,256)
    A(f"s_mov_b32 s98, {LB_L}")
    LP=None
    if E('GLN',0):
        RT=os.environ.get('GDIAG')=='rt' and DIAG
        def rts(r):
            if RT: P.atom(f"s_memrealtime s[{r}:{r+1}]")
        P=Prog(); mark(P,-1); s3_clear(P,S,WS); cs_setup(P,S,HLANE)
        if os.environ.get('LSCHED','early')=='early':
            mark(P,0); fl_cleared(P,S,40); cs_reads(P,S,0); cs_mfma(P,S,0); cs_reads(P,S,1); P.wl(('cs',1)); must(P,0)
            mark(P,1); cs_mfma(P,S,1); ln3_xt_reads(P,S,HLANE); ln3_st(P,S,HLANE,WS,"sc1",LST); cs_store(P,S,HLANE,WS,"sc1"); must(P,1)
            mark(P,2); s3_set_fl(P,S,WS,'pub1',0); rts(64); ln3_xt_stores(P,S,HLANE,WS,"sc1")
            mark(P,5); s3_set_fl(P,S,WS,'pub2',FX-FL); rts(66)
        elif os.environ.get('LSCHED')=='mid':
            mark(P,0); cs2_reads(P,S); must(P,0); fl_cleared(P,S,40)
            mark(P,1); cs2_mfma(P,S); ln3_st(P,S,HLANE,WS,"sc1",LST); cs_store(P,S,HLANE,WS,"sc1",stage=STAT,CDR=CDR2,CFR=72)
            mark(P,2); ln3_xt_reads(P,S,HLANE); s3_set_fl(P,S,WS,'pub1',0); rts(64); ln3_xt_stores(P,S,HLANE,WS,"sc1")
            mark(P,4); s3_set_fl(P,S,WS,'pub2',FX-FL); rts(66)
        mark(P,6); s3_ga_clr_load(P,S,HLANE,40)
        mark(P,7); rts(68); s3_ga_clr_check(P,S,HLANE,40,WS,END); rts(70); must(P,7)
        mark(P,8); rts(74); s3_ga_flag_check(P,S,HLANE,WS,END); rts(76)
        mark(P,9); ga_finish(P,S,HLANE); rts(78); must(P,9)
    else:
        P=Prog(); mark(P,-1); P.atom("s_setprio 3"); ln2_loads(P,S,HLANE); P.atom("s_setprio 0"); s3_clear(P,S,WS); cs_setup(P,S,HLANE)
        mark(P,0); fl_cleared(P,S,40); cs_reads(P,S,0); cs_mfma(P,S,0); cs_reads(P,S,1); P.wl(('cs',1)); must(P,0)
        cs_mfma(P,S,1); cs_store(P,S,HLANE,WS,"sc1")
        ln2_stats(P,S,HLANE,WS,"sc1")
        Pn=Prog(); ln2_norm(Pn,S,HLANE,WS,"sc1")
        n1=len(Pn.it)//4
        P.it+=Pn.it[:n1]
        mark(P,3); s3_set_fl(P,S,WS,'pub1',0)
        P.it+=Pn.it[n1:]
        mark(P,5); s3_ga_clr_load(P,S,HLANE,40)
        mark(P,6); s3_ga_clr_check(P,S,HLANE,40,WS,END); must(P,7)
        mark(P,7); s3_set_fl(P,S,WS,'pub2',FX-FL); s3_ga_flag_check(P,S,HLANE,WS,END)
        mark(P,9); ga_finish(P,S,HLANE); must(P,9)
    P=schedule(P)
    stamp=St([44,46,48,50,52,54,56,58,60,62,4]); stamp(A,0)
    if DIAG and os.environ.get('GDIAG')=='rt' and E('GLN',0): stamp.used.update({2:64,3:66,4:68,5:70,6:74,7:76,8:78})
    if LP: stamp.used.update({2:64,3:66,4:68,5:70,6:74,7:76})
    Em,rest=h_schedule(A,P,E('LB',800),E('PREL',2500),stamp)
    print("L role: total",sum(x[2] for x in P.it))
    assert not [x for x in rest if x[0] not in('MARK','MUST','LOCK')]
    A("s_barrier")
    stamp.dump(A)
    A("Lmain_end:")
    A.end(n,256); A.launch(n,256,512,lds=LDS_S3)
if __name__=='__main__':
    A=Asm(); build(A)
    print("LDS",LDS_S3)
    open(sys.argv[1],'w').write(A.text("S3: fused single launch",single=True))
```

```python
import sys, os
from g32lib import *
from kgenlib import *
from htasks import *
import conv3lib as CV
from asmlib import KMAIN
DIAG=bool(os.environ.get('DIAG'))
E=lambda k,d: int(os.environ.get(k,d))
S=dict(x=20,j=21,rb=22,cb=23,hw=24,w=25,wf=26,wt=27,t0=28,t1=29,sx=30,sw=31,mx=32,mw=33,sl=34,rot=35,
       srdx=8,srd1=12,srd3=16,hb=60,ho=61,wg=2,
       ch=88,kb=89,k0=90,k1=91,sv=92,h0=94,h1=95,h2=96,h3=97,lb=98,u=99,m48=100,nch=101,
       sA=40,sI=44,sR=48,sC=52,sD=56,fst=72,fcs=73,db=3,spin=82,lnb=83)
WS=36
KB0=HSCR
LB_L=HSCR+3*KSCR
LB_W=HSCR+2*KSCR
LCNT=LB_L+11008
LST=LCNT+64
LDS_S3=LCNT+2816
WPF=40960; WPFW=20480
ATL=LB_L; ATRS=136
HLANE=11
END="Lmain_end"
class St:
    def __init__(s,regs): s.regs=list(regs); s.used={}
    def __call__(s,A,idx,rt=False):
        if not DIAG: return
        if os.environ.get('GDIAG')=='rt':
            if idx not in (1,3,5,6,8,11,32): return
            rt=True
        if idx in s.used or not s.regs: return
        r=s.regs.pop(0); s.used[idx]=r
        A(f"{'s_memrealtime' if rt else 's_memtime'} s[{r}:{r+1}]")
    def dump(s,A):
        if not DIAG: return
        A(f"s_waitcnt vmcnt(0) lgkmcnt(0)\ns_lshl_b32 s27, s2, 11\ns_lshl_b32 s28, s25, 8\ns_add_u32 s27, s27, s28\ns_add_u32 s27, s27, {STAMP}\nv_mov_b32 v9, 0\ns_mov_b64 exec, 1")
        for idx,r in s.used.items():
            A(f"v_mov_b32 v10, s{r}\nbuffer_store_dword v10, v9, s[36:39], s27 offen offset:{4*idx}")
def mark(P,st): P.it.append(('MARK',st,0))
def must(P,st): P.it.append(('MUST',st,0))
def h_schedule(A,P,budget,pre,sv,which=range(10),hook=None,emref=None):
    Em=Emit(A)
    if emref is not None: emref[0]=Em
    items=list(P.it); pos=[0]; locked=[0]
    def run_until(cost,window):
        c=0
        while pos[0]<len(items):
            x=items[pos[0]]
            if x[0]=='MARK':
                if x[1]>window: return
                pos[0]+=1; continue
            if x[0]=='MUST': pos[0]+=1; continue
            if x[0]=='LOCK': locked[0]=x[1]; pos[0]+=1; continue
            force=any(y[0]=='MUST' and y[1]<=window for y in items[pos[0]:])
            if c>=cost and not locked[0] and not force: return
            Em.item(x); c+=x[2]; pos[0]+=1
    run_until(pre,-1)
    for st in range(NST):
        if st in which: sv(A,16+st)
        A("s_barrier")
        if hook and st in hook: hook[st]()
        run_until(budget,st)
    return Em,items[pos[0]:]
def g2_phase(A,stamp):
    ACC2=0; WR_=80; HR=160; TT=208; MS=228
    VL=MS; VLN=MS+3; VT=MS+4
    lane=VLANE
    A(f"""
    s_waitcnt vmcnt(0)
    v_mov_b32 v{VT0}, {LCNT}
    v_mov_b32 v{VT0+1}, 1
    s_mov_b64 s[58:59], exec
    s_mov_b64 exec, 1
    ds_add_rtn_u32 v{VT0+2}, v{VT0}, v{VT0+1}
    s_waitcnt lgkmcnt(0)
    v_readfirstlane_b32 s28, v{VT0+2}
    s_nop 3
    s_cmp_eq_u32 s28, 3
    s_cbranch_scc0 Lnopubh
    s_lshl_b32 s28, s22, 4
    s_add_u32 s28, s28, s23
    s_lshl_b32 s28, s28, 7
    s_add_u32 s28, s28, {FH}
    v_mov_b32 v{VT0}, 0
    buffer_store_dword v{VT0+1}, v{VT0}, s[36:39], s28 offen sc1
    Lnopubh:
    s_mov_b64 exec, s[58:59]
    """)
    stamp(A,5)
    A(f"""
    s_lshr_b32 s49, s20, 1
    s_lshl_b32 s49, s49, 3
    s_and_b32 s28, s21, 7
    s_add_u32 s49, s49, s28
    v_mov_b32 v{VLN}, v{lane}
    v_lshlrev_b32 v{VL}, 4, v{lane}
    v_add_u32 v{VL+1}, 4096, v{VL}
    v_add_u32 v{VL+2}, 8192, v{VL}
    s_mul_i32 s26, s25, 12
    """)
    for dt in range(5):
        A(f"s_mul_i32 s27, s3, 5\ns_add_u32 s27, s27, {dt}\ns_mul_i32 s27, s27, 48\ns_add_u32 s27, s27, s26\ns_lshl_b32 s27, s27, 10\ns_add_u32 s{44+dt}, s27, {W2F}")
    vm=[]
    def wreg(k,dt): return WR_+20*k+4*dt
    def hreg(s,nt): return HR+16*(s%3)+4*nt
    def wl(s,k,tag=None):
        va=VL+(s>>2); imm=1024*(s&3)
        for dt in range(5):
            A(f"buffer_load_dwordx4 v[{wreg(k,dt)}:{wreg(k,dt)+3}], v{va}, s[36:39], s{44+dt} offen offset:{imm} {os.environ.get('WSC','sc1')}"); vm.append(tag or ('w',s))
    def hl(s):
        va=VL+(s>>2); imm=1024*(s&3)
        for nt in range(4):
            A(f"buffer_load_dwordx4 v[{hreg(s,nt)}:{hreg(s,nt)+3}], v{va}, s[36:39], s{30+nt} offen offset:{imm} {os.environ.get('HSC','sc1')}"); vm.append(('h',s))
    def wait(*tags):
        idx=max(max(i for i,t in enumerate(vm) if t==tag) for tag in tags); A(f"s_waitcnt vmcnt({min(63,len(vm)-1-idx)})")
    for k in range(4): wl(4+k,k)
    A(f"s_mul_i32 s27, s25, {WPFW}\ns_add_u32 s27, s27, {WPF}\nv_add_u32 v{VT}, s27, v{VL}")
    for nt in range(4):
        A(f"s_lshl_b32 s27, s49, 2\ns_add_u32 s27, s27, {nt}\ns_mul_i32 s27, s27, 48\ns_add_u32 s27, s27, s26\ns_lshl_b32 s27, s27, 10\ns_add_u32 s{30+nt}, s27, {HF}")
    for k in range(4):
        wait(('w',4+k))
        for dt in range(5): A(f"ds_write_b128 v{VT}, v[{wreg(k,dt)}:{wreg(k,dt)+3}] offset:{(k*5+dt)*1024}")
    A("s_waitcnt lgkmcnt(0)")
    for k in range(4): wl(k,k)
    for i in range(80): A(f"v_mov_b32 v{ACC2+i}, 0")
    A(f"""
    v_and_b32 v{VT+1}, 3, v{VLN}
    v_lshlrev_b32 v{VT+1}, 7, v{VT+1}
    s_lshr_b32 s27, s49, 1
    s_lshl_b32 s27, s27, 11
    s_lshl_b32 s28, s25, 9            ; this wave's K quarter comes from column blocks 4w..4w+3
    s_add_u32 s27, s27, s28
    s_add_u32 s50, s27, {FH}
    buffer_load_dword v{VT+2}, v{VT+1}, s[36:39], s50 offen sc1
    s_waitcnt vmcnt(0)
    """)
    A(spin('h',f"buffer_load_dword v{VT+2}, v{VT+1}, s[36:39], s50 offen sc1",f"v_cmp_eq_u32 vcc, 1, v{VT+2}",S,END,sleep=1))
    stamp(A,6)
    vm.clear()
    for s in range(3): hl(s)
    lg=[]
    def tread(s,dt):
        A(f"ds_read_b128 v[{TT+4*dt}:{TT+4*dt+3}], v{VT} offset:{((s-4)*5+dt)*1024}"); lg.append((s,dt))
    def lwait(tag):
        idx=lg.index(tag); A(f"s_waitcnt lgkmcnt({len(lg)-1-idx})")
    PF=VT+4; assert PF%2==0
    XR=TT
    XA=VT+8; ATG=VT+9; ATA=VT+10; AS=WR_
    A(f"""
    v_and_b32 v{VT+3}, 31, v{VLN}
    v_lshlrev_b32 v{VT+3}, 7, v{VT+3}
    s_lshl_b32 s41, s3, 12
    s_add_u32 s41, s41, {FD}
    v_and_b32 v{VT+11}, 15, v{VLN}
    v_lshrrev_b32 v{VT+12}, 4, v{VLN}
    v_mul_u32_u24 v{VT+11}, 1280, v{VT+11}
    v_mul_u32_u24 v{VT+12}, 40, v{VT+12}
    v_add_u32 v{XA}, v{VT+11}, v{VT+12}
    s_lshl_b32 s27, s49, 6
    s_lshl_b32 s28, s25, 4
    s_add_u32 s27, s27, s28
    s_mul_i32 s27, s27, 1280
    s_mul_i32 s28, s3, 160
    s_add_u32 s40, s27, s28
    v_lshrrev_b32 v{VT+11}, 3, v{VLN}
    v_and_b32 v{VT+12}, 7, v{VLN}
    v_lshlrev_b32 v{ATG}, 12, v{VT+11}
    v_lshl_add_u32 v{ATG}, v{VT+12}, 4, v{ATG}
    v_mul_u32_u24 v{ATA}, {ATRS}, v{VT+11}
    v_lshl_add_u32 v{ATA}, v{VT+12}, 4, v{ATA}
    s_mul_i32 s27, s3, {80*4096}
    s_lshl_b32 s28, s49, 7
    s_add_u32 s27, s27, s28
    s_lshl_b32 s28, s25, 15
    s_add_u32 s27, s27, s28
    s_add_u32 s42, s27, {AT}
    s_mul_i32 s28, s25, {8*ATRS}
    s_add_u32 s43, s28, {ATL}
    v_add_u32 v{ATA}, s43, v{ATA}
    s_mov_b32 s51, 0
    """)
    def atloads(u):
        for i in range(3):
            if i<2: A(f"s_add_u32 s27, s42, {i*32*4096}\nbuffer_load_dwordx4 v[{AS+4*i}:{AS+4*i+3}], v{ATG}, s[36:39], s27 offen sc1")
            else: A(f"s_cmp_lt_u32 s25, 2\ns_cbranch_scc0 Lnoat{u}\ns_add_u32 s27, s42, {i*32*4096}\nbuffer_load_dwordx4 v[{AS+4*i}:{AS+4*i+3}], v{ATG}, s[36:39], s27 offen sc1\nLnoat{u}:")
    fdchk=f"v_and_b32 v{PF}, v{PF}, v{PF+1}\nv_and_b32 v{PF}, v{PF}, v{PF+2}\nv_cmp_eq_u32 vcc, 1, v{PF}"
    fdld=f"buffer_load_dwordx4 v[{PF}:{PF+3}], v{VT+3}, s[36:39], s41 offen sc1"
    pend=[]
    def one_h(s,nt):
        va=VL+(s>>2); imm=1024*(s&3)
        A(f"buffer_load_dwordx4 v[{hreg(s,nt)}:{hreg(s,nt)+3}], v{va}, s[36:39], s{30+nt} offen offset:{imm} {os.environ.get('HSC','sc1')}"); vm.append(('h',s))
    def one_w(s,k,dt):
        va=VL+(s>>2); imm=1024*(s&3)
        A(f"buffer_load_dwordx4 v[{wreg(k,dt)}:{wreg(k,dt)+3}], v{va}, s[36:39], s{44+dt} offen offset:{imm} {os.environ.get('WSC','sc1')}"); vm.append(('w',s))
    hq=[]; wq=[]
    def pump(n=1):
        for _ in range(n):
            if hq: f=hq.pop(0); f()
            elif wq: f=wq.pop(0); f()
    for s in range(12):
        tags=[('h',s)]+([('w',s)] if s>=8 else [])
        assert not any(True for f in hq if f.step<=s), "h load not issued in time"
        if s<=10: wait(*tags)
        if s==0: stamp(A,7)
        if os.environ.get('GDIAG')=='g2' and s in (1,2,3,4,6,8,10): stamp(A,40+s)
        lds=4<=s<8
        if lds:
            for dt in range(5):
                lwait((s,dt)); a_=TT+4*dt
                for nt in range(4):
                    a=ACC2+(nt*5+dt)*4
                    A(f"v_mfma_f32_16x16x32_bf16 v[{a}:{a+3}], v[{a_}:{a_+3}], v[{hreg(s,nt)}:{hreg(s,nt)+3}], v[{a}:{a+3}]")
                if s<7: tread(s+1,dt)
                pump()
            if s+3<12:
                for nt in range(4):
                    f=(lambda s_=s+3,nt_=nt: one_h(s_,nt_)); f.step=s+3; hq.append(f)
        else:
            for nt in range(4):
                for dt in range(5):
                    a=ACC2+(nt*5+dt)*4; a_=wreg(s%4,dt)
                    A(f"v_mfma_f32_16x16x32_bf16 v[{a}:{a+3}], v[{a_}:{a_+3}], v[{hreg(s,nt)}:{hreg(s,nt)+3}], v[{a}:{a+3}]")
                    if s==3 and nt==3: tread(4,dt)
                    if dt==1 and nt>0: pump()
                if s+3<12:
                    f=(lambda s_=s+3,nt_=nt: one_h(s_,nt_)); f.step=s+3; hq.append(f)
                pump()
                if s==11 and E('EARLYRED',0) and nt>=1: pass
            if s<4:
                for dt in range(5):
                    f=(lambda s_=8+s,k_=s,dt_=dt: one_w(s_,k_,dt_)); f.step=8+s; wq.append(f)
        if s==7:
            pump(len(hq)+len(wq))
        if s==8:
            pump(len(hq)+len(wq))
            A(fdld); vm.append(('p',0))
            A(f"buffer_load_dwordx4 v[{XR}:{XR+3}], v{XA}, s[8:11], s40 offen\nbuffer_load_dwordx4 v[{XR+4}:{XR+7}], v{XA}, s[8:11], s40 offen offset:16\nbuffer_load_dwordx2 v[{XR+8}:{XR+9}], v{XA}, s[8:11], s40 offen offset:32")
            vm.extend([('x',0)]*3)
        if s==10:
            wait(('p',0))
            A(fdchk+"\ns_nop 1\ns_cmp_eq_u64 vcc, exec\ns_cbranch_scc0 Lnotyet\ns_mov_b32 s51, 1")
            atloads('e')
            A("Lnotyet:")
    assert not hq and not wq
    stamp(A,8)
    FR=96
    A(f"s_cmp_eq_u32 s51, 1\ns_cbranch_scc1 Lhave\n{fdld}\ns_waitcnt vmcnt(0)")
    A(spin('d',fdld,fdchk,S,END,sleep=1))
    atloads('l')
    A("Lhave:")
    VA=ATA
    R0=FR
    A(f"v_add_u32 v{VL+1}, {WPF}, v{VL}\nv_add_u32 v{VL+2}, {WPF+49152}, v{VL}")
    for w in range(4):
        lab=A.label('w')
        if w<3: A(f"s_cmp_lg_u32 s25, {w}\ns_cbranch_scc1 {lab}")
        for nt in range(4):
            if nt==w: continue
            sl=nt if nt<w else nt-1
            for dt in range(5):
                a=ACC2+(nt*5+dt)*4
                off=w*WPFW+(sl*5+dt)*1024
                va,o=(VL+1,off) if off<65536-1024 else (VL+2,off-49152)
                if w==0 and nt==1 and dt==0: pass
                A(f"ds_write_b128 v{va}, v[{a}:{a+3}] offset:{o}")
        A("s_waitcnt vmcnt(0)")
        for i in range(3):
            if i==2 and w>=2: continue
            for h in range(2): A(f"ds_write_b64 v{VA}, v[{AS+4*i+2*h}:{AS+4*i+2*h+1}] offset:{i*32*ATRS+8*h}")
        A("s_waitcnt lgkmcnt(0)\ns_barrier")
        kk=0
        for src in range(4):
            if src==w: continue
            sl=w if w<src else w-1
            for dt in range(5):
                off=src*WPFW+(sl*5+dt)*1024
                va,o=(VL+1,off) if off<65536-1024 else (VL+2,off-49152)
                A(f"ds_read_b128 v[{R0+(kk*5+dt)*4}:{R0+(kk*5+dt)*4+3}], v{va} offset:{o}")
            kk+=1
        if w:
            for r in range(20): A(f"v_mov_b32 v{ACC2+r}, v{ACC2+w*20+r}")
        if w<3: A(f"s_branch Lred\n{lab}:")
    A("Lred:")
    A(f"""
    v_lshrrev_b32 v{VT}, 4, v{VLN}
    v_mul_u32_u24 v{VT}, 20, v{VT}
    v_bfe_u32 v{VT+1}, v{VLN}, 2, 2
    v_add_u32 v{VT}, v{VT}, v{VT+1}
    v_mul_u32_u24 v{VT}, {ATRS}, v{VT}
    v_and_b32 v{VT+1}, 3, v{VLN}
    v_lshl_add_u32 v{VT}, v{VT+1}, 3, v{VT}
    s_lshl_b32 s27, s25, 5
    s_add_u32 s27, s27, {ATL}
    v_add_u32 v{VT}, s27, v{VT}
    """)
    AR=R0+60
    for dt in range(5): A(f"ds_read_b64_tr_b16 v[{AR+2*dt}:{AR+2*dt+1}], v{VT} offset:{4*dt*ATRS}")
    A(f"s_waitcnt lgkmcnt(5)")
    for src in range(3):
        for r in range(0,20,2): A(f"v_pk_add_f32 v[{ACC2+r}:{ACC2+r+1}], v[{ACC2+r}:{ACC2+r+1}], v[{R0+src*20+r}:{R0+src*20+r+1}]")
    stamp(A,9)
    A("s_waitcnt lgkmcnt(0)")
    W=R0
    for e2 in range(10):
        x=XR+e2; a=AR+e2; b0=ACC2+2*e2; w=W+4*(e2%4)
        A(f"""
        v_lshlrev_b32 v{w}, 16, v{x}
        v_and_b32 v{w+1}, 0xffff0000, v{x}
        v_lshlrev_b32 v{w+2}, 16, v{a}
        v_and_b32 v{w+3}, 0xffff0000, v{a}
        v_pk_add_f32 v[{b0}:{b0+1}], v[{b0}:{b0+1}], v[{w}:{w+1}]
        v_pk_add_f32 v[{b0}:{b0+1}], v[{b0}:{b0+1}], v[{w+2}:{w+3}]
        v_cvt_pk_bf16_f32 v{W+20+e2}, v{b0}, v{b0+1}
        """)
    A(f"buffer_store_dwordx4 v[{W+20}:{W+23}], v{XA}, s[52:55], s40 offen\nbuffer_store_dwordx4 v[{W+24}:{W+27}], v{XA}, s[52:55], s40 offen offset:16\nbuffer_store_dwordx2 v[{W+28}:{W+29}], v{XA}, s[52:55], s40 offen offset:32")
def build(A):
    n=KMAIN; A.begin(n)
    A("s_cmp_ge_u32 s2, 256\ns_cbranch_scc1 Lmain_end")
    A(f"""
    s_load_dwordx2 s[4:5], s[0:1], {ARG['u']}
    s_load_dwordx4 s[76:79], s[0:1], {ARG['w1']}
    s_load_dwordx4 s[84:87], s[0:1], {ARG['dbg']}
    s_load_dwordx8 s[64:71], s[0:1], {ARG['logA']}
    s_load_dwordx2 s[74:75], s[0:1], {ARG['logdt']}
    s_load_dwordx4 s[44:47], s[0:1], {ARG['w2']}      ; w2, out
    s_load_dwordx2 s[18:19], s[0:1], {ARG['Dskip']}
    s_and_b32 s20, s2, 7          ; x
    s_lshr_b32 s21, s2, 3         ; j
    s_and_b32 s22, s20, 1
    s_lshl_b32 s22, s22, 3
    s_and_b32 s23, s21, 7
    s_add_u32 s22, s22, s23       ; rb
    s_lshr_b32 s23, s20, 1
    s_lshl_b32 s23, s23, 2
    s_lshr_b32 s24, s21, 3
    s_add_u32 s23, s23, s24       ; cb
    s_and_b32 s3, s20, 1
    s_lshl_b32 s3, s3, 2
    s_add_u32 s3, s3, s24
    v_lshrrev_b32 v1, 6, v0
    s_cmp_ge_u32 s22, 10
    s_cselect_b32 s35, 10, 0
    v_readfirstlane_b32 s25, v1   ; wave
    s_sub_u32 s35, s22, s35       ; rot
    s_nop 2
    s_and_b32 s26, s25, 1         ; wf
    s_bfe_u32 s27, s25, 0x10001   ; wt
    s_and_b32 s24, s25, 3         ; hw
    s_cmp_ge_u32 s25, 4
    s_cbranch_scc1 Lhrole
    """)
    GLN=E('GLN',0)
    g_dma_addr(A,S)
    if GLN: g_ln_loads(A,S)
    A("s_waitcnt lgkmcnt(0)")
    A.srd(8,4,SIZE['u']); A.srd(12,76,SIZE['w1']); A.srd(16,78,SIZE['w3']); A.srd(WS,86,SIZE['ws']); A.srd(52,46,SIZE['out'])
    stamp=St(list(range(64,76,2))+[80]+list(range(84,102,2))+[56,42+0])
    stamp.regs=[r for r in stamp.regs if r not in (42,82)]
    stamp(A,0); stamp(A,1,True)
    PRE=E('GPRE',2)
    if GLN: g_ln_issue(A,S)
    for l in g_dma(S,0): A(l)
    g_lds_addr(A,S)
    for l in g_dma(S,1): A(l)
    A(f"s_cmp_eq_u32 s25, 0\ns_cbranch_scc0 Lnoci\nv_mov_b32 v{VT0}, {LCNT}\nv_mov_b32 v{VT0+1}, 0\nds_write_b32 v{VT0}, v{VT0+1}\nds_write_b32 v{VT0}, v{VT0+1} offset:4\nLnoci:")
    if PRE>=3:
        for l in g_dma(S,2): A(l)
    for i in range(96): A(f"v_mov_b32 v{ACC+i}, 0")
    if GLN:
        A(f"s_waitcnt vmcnt({10*PRE})")
        g_ln_compute(A,S,LB_L,LNRS,LST)
    def gstamp(st):
        if os.environ.get('GDIAG')=='win':
            if not isinstance(st,tuple): stamp(A,32+st)
            elif st[1] in (1,2,3,4,5): stamp(A,48+st[1])
        elif os.environ.get('GDIAG')=='g2': pass
        elif os.environ.get('GDIAG')=='rt':
            if st==0: stamp(A,32)
        elif not isinstance(st,tuple) and st in (0,3,6,9): stamp(A,32+st)
    g_loop(A,S,gstamp if DIAG else None,PRE=PRE)
    stamp(A,2)
    A("s_barrier")
    stamp(A,3)
    g_epilogue(A,S,WS,HF,'sc1')
    A(f"v_mov_b32 v{VT0}, {LCNT+4}\nv_mov_b32 v{VT0+1}, 1\ns_mov_b64 s[58:59], exec\ns_mov_b64 exec, 1\nds_add_u32 v{VT0}, v{VT0+1}\ns_mov_b64 exec, s[58:59]")
    stamp(A,4)
    g2_phase(A,stamp)
    stamp(A,10); stamp(A,11,True)
    stamp.dump(A)
    A("s_branch Lmain_end")
    A("Lhrole:")
    A(f"v_and_b32 v{HLANE}, 63, v0")
    A(f"""
    s_mul_i32 s28, s21, 3
    s_lshl_b32 s29, s21, 1
    s_add_u32 s29, s29, 16
    s_cmp_lt_u32 s21, 16
    s_cselect_b32 s28, s28, s29
    s_cselect_b32 s101, 3, 2          ; nch
    s_mul_i32 s29, s20, 80
    s_add_u32 s28, s28, s29
    s_add_u32 s88, s28, s24           ; channel
    s_mul_i32 s89, s24, {KSCR}
    s_add_u32 s89, s89, {KB0}
    s_waitcnt lgkmcnt(0)
    s_mov_b32 s80, s44
    s_mov_b32 s81, s45
    """)
    A.srd(8,4,SIZE['u']); A.srd(WS,86,SIZE['ws'])
    A("s_cmp_eq_u32 s24, 3\ns_cbranch_scc1 Lrole_l\ns_cmp_lt_u32 s24, s101\ns_cbranch_scc0 Lrole_w")
    A.srd(40,64,245760); A.srd(44,66,245760); A.srd(48,68,245760); A.srd(52,70,245760); A.srd(56,74,1280); A.srd(12,18,SIZE['Dskip'])
    stamp=St([64,66,68,70,74,76,78,80,60,62,4,6]); stamp(A,0)
    SK=dict(S); SK['kb']=89
    P=Prog(); mark(P,-1); P.atom('s_setprio 3'); kgen_loads(P,S,HLANE,KV)
    P.i(f"s_lshl_b32 s29, s88, 1\nv_mov_b32 v30, s29"); P.vl("buffer_load_ushort v29, v30, s[12:15], 0 offen",'kp2',cost=30); P.atom('s_setprio 0')
    kgen_setup(P,S,HLANE); kgen_dt(P,S); P.wv('kp2'); kgen_groups(P,os.environ.get('PKG0','rows'),tailpk=bool(E('TAILPK',1)))
    SO=dict(S); SO['kb']=73
    P.i(f"s_add_u32 s73, s89, 16\nv_mov_b32 v28, s89\nv_mov_b32 v27, 0")
    kgen_out(P,SO,HLANE,WS,"",tolds=False) if False else None
    Pout=Prog(); Pout.l("ds_write_b32 v28, v27 offset:12"); kgen_out(Pout,SO,HLANE,WS,"",tolds=True)
    P.ext(Pout)
    P=schedule(P)
    if os.environ.get('KNOWR'): P.it=[x if not (x[0]=='L' and 'ds_write' in x[1]) else ('I','s_nop 0',4) for x in P.it]
    if os.environ.get('KNOVALU'): P.it=[x for x in P.it if not (x[0]=='I' and x[1].startswith('v_') and 'mfma' not in x[1] and 'readfirst' not in x[1])]
    SC=dict(base=30,ch=88,srd=36,t0=28,t1=29,sv=92,m0=52,m1=54,m2=56,dsk=33,kt=73,lane=HLANE)
    def w8hook():
        A(f"v_lshlrev_b32 v26, 4, v{HLANE}\ns_mov_b32 s31, {FX}\nbuffer_load_dwordx4 v[20:23], v26, s[36:39], s31 offen sc1")
        Em_[0].vm.append(('L','fx'))
    def w9hook():
        Em_[0].wait_vm('fx')
        A(spin('x',"buffer_load_dwordx4 v[20:23], v26, s[36:39], s31 offen sc1","v_and_b32 v24, v20, v21\nv_and_b32 v25, v22, v23\nv_and_b32 v24, v24, v25\nv_cmp_eq_u32 vcc, 1, v24",S,END))
        A(f"s_mul_i32 s30, s24, {CV.CW3}")
        CV.u_loads(A,SC)
        for q in range(4): Em_[0].vm.append(('L','u'))
    Em_=[None]
    Em,rest=h_schedule(A,P,E('KB',850),E('PREK',900),stamp,(0,3,6,9),hook={8:w8hook,9:w9hook},emref=Em_)
    A("s_barrier")
    A(f"s_setprio {E('XPRIO',2)}")
    stamp(A,2)
    for x in rest: Em.item(x)
    print("K role: total",sum(x[2] for x in P.it),"left after loop",sum(x[2] for x in rest))
    stamp(A,3)
    A("s_waitcnt vmcnt(0)\nv_lshlrev_b32 v29, 16, v29\ns_nop 0\nv_readfirstlane_b32 s33, v29")
    CV.u_store(A,SC)
    CV.conv_setup(A,SC)
    A("s_waitcnt lgkmcnt(0)")
    CV.conv_expand(A,SC)
    A("s_waitcnt lgkmcnt(0)")
    if E('CWAIT',1):
        A(f"""
        s_setprio 0
        v_mov_b32 v{CV.CTMP}, {LCNT+4}
        s_mov_b32 s34, 0
        Lcw:
        ds_read_b32 v{CV.CTMP+1}, v{CV.CTMP}
        s_waitcnt lgkmcnt(0)
        v_readfirstlane_b32 s28, v{CV.CTMP+1}
        s_add_u32 s34, s34, 1
        s_cmp_gt_u32 s34, {1<<23}
        s_cbranch_scc1 {END}
        s_cmp_eq_u32 s28, 4
        s_cbranch_scc1 Lcwok
        s_sleep 1
        s_branch Lcw
        Lcwok:
        """)
    stamp(A,4)
    A(f"s_setprio {E('CPRIO',1)}")
    CV.conv_main(A)
    A("s_nop 7")
    stamp(A,5)
    CV.conv_epilogue(A,SC,"sc1")
    A(f"""
    s_waitcnt vmcnt(0)
    s_lshl_b32 s28, s20, 5
    s_add_u32 s28, s28, s21
    s_lshl_b32 s28, s28, 7
    s_lshl_b32 s29, s24, 2
    s_add_u32 s28, s28, s29
    s_add_u32 s28, s28, {FD}
    v_mov_b32 v{CV.CTMP}, 0
    v_mov_b32 v{CV.CTMP+1}, 1
    s_mov_b64 s[92:93], exec
    s_mov_b64 exec, 1
    buffer_store_dword v{CV.CTMP+1}, v{CV.CTMP}, s[36:39], s28 offen sc1
    s_mov_b64 exec, s[92:93]
    """)
    stamp(A,6)
    stamp.dump(A)
    A("s_branch Lmain_end")
    A("Lrole_w:")
    A.srd(40,80,SIZE['w2'])
    A(f"s_sub_u32 s99, s21, 16\ns_lshl_b32 s99, s99, 3\ns_add_u32 s99, s99, s20\ns_mov_b32 s100, {magic(48)}\ns_mov_b32 s98, {LB_W}")
    SW=dict(S); SW['wo']=88
    P=Prog(); mark(P,-1); w2_setup(P,SW,HLANE); mark(P,0); w2b_loads(P,SW,40)
    for k in range(3):
        mark(P,k+1); w2b_unit(P,SW,k,HLANE,WS,"sc1")
    mark(P,5); s3_set_fw(P,SW,WS,WF); must(P,5)
    stamp=St([64,66,68,70,74,76,78,84,86,60,62]); Em,rest=h_schedule(A,P,800,600,stamp)
    assert not [x for x in rest if x[0] not in('MARK','MUST','LOCK')]
    A("s_barrier")
    stamp.dump(A)
    A("s_branch Lmain_end")
    A("Lrole_l:")
    A.srd(40,84,256)
    A(f"s_mov_b32 s98, {LB_L}")
    LP=None
    if E('GLN',0):
        RT=os.environ.get('GDIAG')=='rt' and DIAG
        def rts(r):
            if RT: P.atom(f"s_memrealtime s[{r}:{r+1}]")
        P=Prog(); mark(P,-1); s3_clear(P,S,WS); cs_setup(P,S,HLANE)
        if os.environ.get('LSCHED','early')=='early':
            mark(P,0); fl_cleared(P,S,40); cs_reads(P,S,0); cs_mfma(P,S,0); cs_reads(P,S,1); P.wl(('cs',1)); must(P,0)
            mark(P,1); cs_mfma(P,S,1); ln3_xt_reads(P,S,HLANE); ln3_st(P,S,HLANE,WS,"sc1",LST); cs_store(P,S,HLANE,WS,"sc1"); must(P,1)
            mark(P,2); s3_set_fl(P,S,WS,'pub1',0); rts(64); ln3_xt_stores(P,S,HLANE,WS,"sc1")
            mark(P,5); s3_set_fl(P,S,WS,'pub2',FX-FL); rts(66)
        elif os.environ.get('LSCHED')=='mid':
            mark(P,0); cs2_reads(P,S); must(P,0); fl_cleared(P,S,40)
            mark(P,1); cs2_mfma(P,S); ln3_st(P,S,HLANE,WS,"sc1",LST); cs_store(P,S,HLANE,WS,"sc1",stage=STAT,CDR=CDR2,CFR=72)
            mark(P,2); ln3_xt_reads(P,S,HLANE); s3_set_fl(P,S,WS,'pub1',0); rts(64); ln3_xt_stores(P,S,HLANE,WS,"sc1")
            mark(P,4); s3_set_fl(P,S,WS,'pub2',FX-FL); rts(66)
        mark(P,6); s3_ga_clr_load(P,S,HLANE,40)
        mark(P,7); rts(68); s3_ga_clr_check(P,S,HLANE,40,WS,END); rts(70); must(P,7)
        mark(P,8); rts(74); s3_ga_flag_check(P,S,HLANE,WS,END); rts(76)
        mark(P,9); ga_finish(P,S,HLANE); rts(78); must(P,9)
    else:
        P=Prog(); mark(P,-1); P.atom("s_setprio 3"); ln2_loads(P,S,HLANE); P.atom("s_setprio 0"); s3_clear(P,S,WS); cs_setup(P,S,HLANE)
        mark(P,0); fl_cleared(P,S,40); cs_reads(P,S,0); cs_mfma(P,S,0); cs_reads(P,S,1); P.wl(('cs',1)); must(P,0)
        cs_mfma(P,S,1); cs_store(P,S,HLANE,WS,"sc1")
        ln2_stats(P,S,HLANE,WS,"sc1")
        Pn=Prog(); ln2_norm(Pn,S,HLANE,WS,"sc1")
        n1=len(Pn.it)//4
        P.it+=Pn.it[:n1]
        mark(P,3); s3_set_fl(P,S,WS,'pub1',0)
        P.it+=Pn.it[n1:]
        mark(P,5); s3_ga_clr_load(P,S,HLANE,40)
        mark(P,6); s3_ga_clr_check(P,S,HLANE,40,WS,END); must(P,7)
        mark(P,7); s3_set_fl(P,S,WS,'pub2',FX-FL); s3_ga_flag_check(P,S,HLANE,WS,END)
        mark(P,9); ga_finish(P,S,HLANE); must(P,9)
    P=schedule(P)
    stamp=St([44,46,48,50,52,54,56,58,60,62,4]); stamp(A,0)
    if DIAG and os.environ.get('GDIAG')=='rt' and E('GLN',0): stamp.used.update({2:64,3:66,4:68,5:70,6:74,7:76,8:78})
    if LP: stamp.used.update({2:64,3:66,4:68,5:70,6:74,7:76})
    Em,rest=h_schedule(A,P,E('LB',800),E('PREL',2500),stamp)
    print("L role: total",sum(x[2] for x in P.it))
    assert not [x for x in rest if x[0] not in('MARK','MUST','LOCK')]
    A("s_barrier")
    stamp.dump(A)
    A("Lmain_end:")
    A.end(n,256); A.launch(n,256,512,lds=LDS_S3)
if __name__=='__main__':
    A=Asm(); build(A)
    print("LDS",LDS_S3)
    open(sys.argv[1],'w').write(A.text("S3: fused single launch",single=True))
```
